```python
import torch

def _softmax(x, axis=-1):
    return torch.softmax(x, dim=axis)
def _gelu(x):
    return torch.nn.functional.gelu(x, approximate="tanh")
def _silu(x):
    return torch.nn.functional.silu(x)
def _sigmoid(x):
    return torch.sigmoid(x)
def _layernorm(x, axis=-1, eps=1e-5):
    m = x.mean(dim=axis, keepdim=True)
    v = x.var(dim=axis, keepdim=True, unbiased=False)
    return (x - m) / torch.sqrt(v + eps)
def _scatter_add(tgt, idx, src, axis=0):
    return tgt.clone().index_add_(axis, idx, src)
def _segment_sum(src, seg, n):
    out = torch.zeros((n,) + src.shape[1:], dtype=src.dtype)
    return out.index_add_(0, seg, src)
def _pad(x, pw):
    flat = tuple(v for pair in reversed(pw) for v in pair)
    return torch.nn.functional.pad(x, flat)

kernel_name = 'parallel_sum__ssm_conv_s4d__glu_gated_geglu__prompt'

def setup_inputs():

    _w = (lambda a: (lambda t: t.to(torch.bfloat16) if t.is_floating_point() else t)(torch.as_tensor(a)))
    def _A_setup():
        Bsz, L, D, N = 1, 2048, 512, 128
        return {
            "u": _w((lambda *s: torch.randn(*s, dtype=torch.bfloat16) * 0.05)(Bsz, L, D)),
            "log_A_real": _w((lambda *s: torch.randn(*s, dtype=torch.bfloat16) * 6.4)(D, N) * 0.5),
            "A_imag": _w((lambda *s: torch.randn(*s, dtype=torch.bfloat16) * 0.05)(D, N) * 3.14),
            "C_real": _w((lambda *s: torch.randn(*s, dtype=torch.bfloat16) * 0.05)(D, N) / N ** 0.5),
            "C_imag": _w((lambda *s: torch.randn(*s, dtype=torch.bfloat16) * 0.05)(D, N) / N ** 0.5),
            "log_dt": _w((lambda *s: torch.randn(*s, dtype=torch.bfloat16) * 0.05)(D) * 0.5 - 4.0),
            "D_skip": _w((lambda *s: torch.randn(*s, dtype=torch.bfloat16) * 0.05)(D)),
        }
    _A_in = _A_setup()

    def _B_setup():
        B, S, Dm, Df = 1, 2048, 512, 1792
        return {
            "x": _w((lambda *s: torch.randn(*s, dtype=torch.bfloat16) * 0.05)(B, S, Dm)),
            "w_gate": _w((lambda *s: torch.randn(*s, dtype=torch.bfloat16) * 0.4)(Dm, Df) * (Dm ** -0.5)),
            "w_up": _w((lambda *s: torch.randn(*s, dtype=torch.bfloat16) * 0.4)(Dm, Df) * (Dm ** -0.5)),
            "w_down": _w((lambda *s: torch.randn(*s, dtype=torch.bfloat16) * 0.4)(Df, Dm) * (Df ** -0.5)),
        }
    _B_in = _B_setup()

    return {
        "A_u": _A_in["u"],
        "A_log_A_real": _A_in["log_A_real"],
        "A_A_imag": _A_in["A_imag"],
        "A_C_real": _A_in["C_real"],
        "A_C_imag": _A_in["C_imag"],
        "A_log_dt": _A_in["log_dt"],
        "A_D_skip": _A_in["D_skip"],
        "B_x": _B_in["x"],
        "B_w_gate": _B_in["w_gate"],
        "B_w_up": _B_in["w_up"],
        "B_w_down": _B_in["w_down"],
    }

def reference(A_u, A_log_A_real, A_A_imag, A_C_real, A_C_imag, A_log_dt, A_D_skip, B_x, B_w_gate, B_w_up, B_w_down):
    def _A_ref(u, log_A_real, A_imag, C_real, C_imag, log_dt, D_skip):
        L = u.shape[1]
        dt = torch.exp(log_dt)
        A = -torch.exp(log_A_real) + 1j * A_imag
        C = (C_real + 1j * C_imag) * dt[:, None]
        pos = (lambda x, dt: x.to(dt))(torch.arange(L), log_dt.dtype)
        P = torch.exp((A * dt[:, None])[:, :, None] * pos[None, None, :])
        K = 2.0 * torch.einsum("dn,dnl->dl", C, P).real
        L2 = 2 * L
        u_t = (lambda x, *d: x.permute(*d))(u, 0, 2, 1)
        Kf = (lambda x, *a, **k: torch.fft.rfft(x.float(), *a, **k))(K, L2)
        Uf = (lambda x, *a, **k: torch.fft.rfft(x.float(), *a, **k))(u_t, L2)
        y = (lambda x, *a, **k: torch.fft.irfft(x, *a, **k).to(torch.bfloat16))(Uf * Kf[None, :, :], L2)[:, :, :L]
        y = (lambda x, *d: x.permute(*d))(y, 0, 2, 1)
        return y + u * D_skip[None, None, :]

    def _B_ref(x, w_gate, w_up, w_down):
        g = torch.einsum("bsd,df->bsf", x, w_gate)
        u = torch.einsum("bsd,df->bsf", x, w_up)
        h = _gelu(g) * u
        return torch.einsum("bsf,fd->bsd", h, w_down)

    x = A_u
    xn = _layernorm(x, axis=-1)
    return x + _A_ref(xn, A_log_A_real, A_A_imag, A_C_real, A_C_imag, A_log_dt, A_D_skip) + _B_ref(xn, B_w_gate, B_w_up, B_w_down)
```

```python
import math
LDS1 = 46080
LAUNCH = f"; @launch kernel=main_kernel grid=(768,1,1) block=(256,1,1) lds={LDS1}"
def DESC(desc): return desc("main_kernel", 168)

def srd_dyn(a, s, lo, hi, off, sx, size):
    a(f"s_add_u32 s{s}, s{lo}, 0x{off:x}")
    a(f"s_addc_u32 s{s+1}, s{hi}, 0")
    a(f"s_add_u32 s{s}, s{s}, s{sx}")
    a(f"s_addc_u32 s{s+1}, s{s+1}, 0")
    a(f"s_and_b32 s{s+1}, s{s+1}, 0xffff")
    a(f"s_mov_b32 s{s+2}, 0x{size:x}")
    a(f"s_mov_b32 s{s+3}, 0x20000")

def k1(a, G):
    f32 = G.f32
    G.header(a, "main_kernel")
    a("""
    s_cmp_ge_u32 s2, 768
    s_cbranch_scc1 L1_exit
    s_load_dwordx4 s[4:7], s[0:1], 64
    s_load_dwordx2 s[8:9], s[0:1], 48
    s_load_dwordx2 s[16:17], s[0:1], 104
    v_lshrrev_b32 v5, 6, v0
    v_mov_b32 v15, v0
    v_readfirstlane_b32 s3, v5      ; wave
    v_and_b32 v0, 63, v0
    s_waitcnt lgkmcnt(0)
    s_cmp_ge_u32 s2, 256
    s_cbranch_scc1 L1_conv
    """)
    G.srd(a, 20, 16, 17, G.XN, G.SZ2M)
    G.srd(a, 28, 16, 17, G.HB, G.HSZ)
    a("""
    s_cmp_ge_u32 s3, 2
    s_cselect_b32 s24, s6, s4
    s_cselect_b32 s25, s7, s5
    s_and_b32 s25, s25, 0xffff
    s_mov_b32 s26, 0x1c0000
    s_mov_b32 s27, 0x20000
    s_and_b32 s10, s2, 15           ; ct
    s_lshr_b32 s11, s2, 4           ; rt
    s_lshl_b32 s12, s11, 7
    s_lshl_b32 s13, s3, 5
    s_add_u32 s12, s12, s13         ; t0 = 128rt+32w
    v_and_b32 v5, 15, v0
    v_lshrrev_b32 v6, 4, v0         ; gq
    v_add_u32 v1, s12, v5
    v_lshlrev_b32 v1, 10, v1
    v_lshl_add_u32 v1, v6, 4, v1
    v_add_u32 v2, 0x4000, v1
    v_mul_u32_u24 v7, 4682, v0
    v_lshrrev_b32 v7, 16, v7        ; lane/14
    v_mul_u32_u24 v8, 14, v7
    v_sub_u32 v8, v0, v8            ; lane%14
    v_mul_u32_u24 v3, 3584, v7
    v_lshl_add_u32 v3, v8, 4, v3
    s_mul_i32 s13, s10, 224
    v_add_u32 v3, s13, v3
    s_and_b32 s14, s3, 1
    s_mul_i32 s40, s14, 57344       ; 16*3584*(w&1)
    s_lshr_b32 s15, s3, 1
    s_mul_i32 s42, s15, 7680
    s_mul_i32 s14, s14, 3840
    s_add_u32 s42, s42, s14
    v_bfe_u32 v7, v0, 2, 2          ; r
    v_lshl_add_u32 v7, v6, 3, v7    ; 8gq+r
    v_mul_u32_u24 v4, 224, v7
    v_lshl_add_u32 v4, v6, 7, v4
    v_and_b32 v7, 3, v0
    v_lshl_add_u32 v4, v7, 3, v4
    s_mov_b32 s44, -1
    s_mov_b32 s45, 0x00ffffff
    """)
    ACC = 56
    def acc(nb, rb): return ACC + (nb*2+rb)*4
    for r in range(112): a(f"v_mov_b32 v{ACC+r}, 0")
    XF = 32
    def xf(s, rb): return XF + ((s % 3)*2 + rb)*4
    LOFF = [0, 896, 1920, 2816]
    def issue(s):
        a("s_mov_b64 exec, s[44:45]")
        for i in range(4):
            a(f"s_add_u32 s41, s40, {(32*s+4*i)*3584}")
            a(f"s_add_u32 m0, s42, {(s%3)*15360+LOFF[i]}")
            a("s_nop 0")
            a("buffer_load_dwordx4 v3, s[24:27], s41 offen lds")
        a("s_mov_b64 exec, -1")
        a(f"buffer_load_dwordx4 v[{xf(s,0)}:{xf(s,0)+3}], v1, s[20:23], 0 offen offset:{64*s}")
        a(f"buffer_load_dwordx4 v[{xf(s,1)}:{xf(s,1)+3}], v2, s[20:23], 0 offen offset:{64*s}")
    issue(0); issue(1)
    WF = 16
    def trread(s, nb):
        mt, nbl = nb//7, nb % 7
        b = WF + (nb % 4)*4
        base = (s % 3)*15360 + mt*7680 + 32*nbl
        a(f"ds_read_b64_tr_b16 v[{b}:{b+1}], v4 offset:{base}")
        a(f"ds_read_b64_tr_b16 v[{b+2}:{b+3}], v4 offset:{base+896}")
    for s in range(16):
        a(f"s_waitcnt vmcnt({6 if s < 15 else 0})")
        a("s_barrier")
        trread(s, 0); trread(s, 1)
        if s+2 < 16: issue(s+2)
        for nb in range(14):
            if nb+2 < 14:
                trread(s, nb+2)
                a("s_waitcnt lgkmcnt(4)")
            elif nb+1 < 14:
                a("s_waitcnt lgkmcnt(2)")
            else:
                a("s_waitcnt lgkmcnt(0)")
            b = WF + (nb % 4)*4
            for rb in range(2):
                c = acc(nb, rb)
                a(f"v_mfma_f32_16x16x32_bf16 v[{c}:{c+3}], v[{b}:{b+3}], v[{xf(s,rb)}:{xf(s,rb)+3}], v[{c}:{c+3}]")
    c0 = math.sqrt(2.0/math.pi)
    kA = -2.0*G.LOG2E*c0
    kB = kA*0.044715
    a(f"""
    s_nop 15
    v_and_b32 v5, 15, v0
    v_add_u32 v5, s12, v5
    v_mul_u32_u24 v1, 3584, v5
    v_lshl_add_u32 v1, v6, 3, v1
    v_add_u32 v1, s13, v1
    v_add_u32 v2, {16*3584}, v1
    s_mov_b32 s46, {f32(kA)}
    s_mov_b32 s47, {f32(kB)}
    """)
    for nbl in range(7):
        for rb in range(2):
            g = acc(nbl, rb); u = acc(7+nbl, rb)
            o = 8 + ((nbl*2+rb) % 4)*2
            for p in range(2):
                g0, g1, u0, u1 = g+2*p, g+2*p+1, u+2*p, u+2*p+1
                a(f"""
                v_cvt_pk_bf16_f32 v16, v{g0}, v{g1}
                v_cvt_pk_bf16_f32 v17, v{u0}, v{u1}
                v_lshlrev_b32 v18, 16, v16
                v_and_b32 v19, 0xffff0000, v16
                v_mul_f32 v20, v18, v18
                v_mul_f32 v21, v19, v19
                v_mov_b32 v22, s46
                v_mov_b32 v23, s46
                v_fma_f32 v22, v20, s47, v22
                v_fma_f32 v23, v21, s47, v23
                v_mul_f32 v22, v22, v18
                v_mul_f32 v23, v23, v19
                v_exp_f32 v22, v22
                v_exp_f32 v23, v23
                v_lshlrev_b32 v24, 16, v17
                v_and_b32 v25, 0xffff0000, v17
                v_add_f32 v22, 1.0, v22
                v_add_f32 v23, 1.0, v23
                v_rcp_f32 v22, v22
                v_rcp_f32 v23, v23
                s_nop 0
                v_mul_f32 v22, v22, v18
                v_mul_f32 v23, v23, v19
                v_cvt_pk_bf16_f32 v16, v22, v23
                v_lshlrev_b32 v18, 16, v16
                v_and_b32 v19, 0xffff0000, v16
                v_mul_f32 v18, v18, v24
                v_mul_f32 v19, v19, v25
                v_cvt_pk_bf16_f32 v{o+p}, v18, v19
                """)
            a(f"buffer_store_dwordx2 v[{o}:{o+1}], v{1+rb}, s[28:31], 0 offen offset:{32*nbl}")
    a("s_endpgm")
    KH, KL, UB = 0, 7680, 15360
    a("L1_conv:")
    a("""
    s_sub_u32 s10, s2, 256
    s_lshl_b32 s11, s10, 12
    """)
    srd_dyn(a, 20, 16, 17, G.XNT, 11, 4096)
    srd_dyn(a, 24, 16, 17, G.KHI, 11, 4096)
    srd_dyn(a, 28, 16, 17, G.KLO, 11, 4096)
    srd_dyn(a, 32, 16, 17, G.AT, 11, 4096)
    G.srd(a, 36, 8, 9, 0, 1024)
    a(f"""
    v_lshlrev_b32 v1, 4, v15
    v_add_u32 v2, -8, v1
    s_lshl_b32 s12, s10, 1
    v_mov_b32 v3, s12
    buffer_load_dwordx4 v[32:35], v1, s[20:23], 0 offen
    buffer_load_dwordx2 v[36:37], v2, s[20:23], 0 offen
    buffer_load_dwordx4 v[24:27], v1, s[24:27], 0 offen
    buffer_load_dwordx4 v[28:31], v1, s[28:31], 0 offen
    buffer_load_ushort v14, v3, s[36:39], 0 offen
    v_and_b32 v5, 31, v0
    v_lshrrev_b32 v6, 5, v0
    s_lshr_b32 s13, s3, 1
    s_lshl_b32 s13, s13, 11
    s_and_b32 s14, s3, 1
    s_lshl_b32 s14, s14, 5          ; 2(w&1)*8*2 bytes
    s_add_u32 s13, s13, s14
    v_lshlrev_b32 v13, 6, v5
    v_lshl_add_u32 v13, v6, 3, v13
    v_add_u32 v13, s13, v13
    buffer_load_dwordx2 v[8:9], v13, s[20:23], 0 offen
    buffer_load_dwordx2 v[10:11], v13, s[20:23], 0 offen offset:16
    v_mov_b32 v40, 0
    v_mov_b32 v41, 0
    v_mov_b32 v42, 0
    v_mov_b32 v43, 0
    v_cmp_gt_u32 vcc, 160, v15
    s_and_saveexec_b64 s[40:41], vcc
    ds_write_b128 v1, v[40:43] offset:{KH}
    ds_write_b128 v1, v[40:43] offset:{KL}
    s_mov_b64 exec, s[40:41]
    v_lshrrev_b32 v7, 2, v15
    v_mul_u32_u24 v7, 4160, v7
    v_and_b32 v12, 3, v15
    v_lshl_add_u32 v7, v12, 4, v7
    v_cmp_gt_u32 vcc, 16, v15
    s_and_saveexec_b64 s[40:41], vcc
    ds_write_b128 v7, v[40:43] offset:{UB+4096}
    s_mov_b64 exec, s[40:41]
    v_lshrrev_b32 v7, 2, v15
    v_mul_u32_u24 v7, 80, v7
    v_lshl_add_u32 v7, v12, 4, v7
    v_sub_u32 v12, 255, v15
    v_lshlrev_b32 v12, 4, v12
    s_mov_b32 s42, 0xffff
    v_sub_u32 v3, 3, v5
    v_and_b32 v3, 3, v3             ; r
    v_mul_u32_u24 v1, 4160, v3
    v_add_u32 v3, v3, v5            ; b+r
    v_lshlrev_b32 v3, 1, v3
    v_sub_u32 v1, v1, v3
    v_lshl_add_u32 v1, v6, 4, v1
    s_lshl_b32 s14, s3, 6
    s_sub_u32 s15, {UB+4094-3840}, s14
    v_add_u32 v1, s15, v1
    ; B base: (l&31)*80 + (l>>5)*16 - w*80
    v_mul_u32_u24 v2, 80, v5
    v_lshl_add_u32 v2, v6, 4, v2
    s_sub_u32 s14, 3, s3
    s_mul_i32 s14, s14, 80
    v_add_u32 v2, s14, v2
    s_waitcnt vmcnt(3)
    ds_write_b128 v7, v[24:27] offset:{KH+32*80}
    ds_write_b128 v7, v[28:31] offset:{KL+32*80}
    """)
    S = {-2: 36, -1: 37, 0: 32, 1: 33, 2: 34, 3: 35}
    for r in range(4):
        d = 44 + 4*r
        for j in range(4):
            if r % 2 == 0:
                p = 3 - r//2 - j
                a(f"v_alignbit_b32 v{d+j}, v{S[p]}, v{S[p]}, 16")
            else:
                p = (7-r)//2 - j
                a(f"v_bfi_b32 v{d+j}, s42, v{S[p]}, v{S[p-1]}")
        a(f"ds_write_b128 v12, v[{d}:{d+3}] offset:{UB+r*4160}")
    A0, A1 = 64, 80
    for r in range(32): a(f"v_mov_b32 v{64+r}, 0")
    a("s_waitcnt lgkmcnt(0)")
    a("s_barrier")
    steps = [(i, ks) for i in range(16) for ks in range(2)]
    def loads(n):
        i, ks = steps[n]
        af = 16 + (n % 2)*4; bf_ = 24 + (n % 2)*16
        off = 64*(60-4*i) + 32*ks
        a(f"ds_read_b64 v[{af}:{af+1}], v1 offset:{off}")
        a(f"ds_read_b64 v[{af+2}:{af+3}], v1 offset:{off+8}")
        cnt = 2
        for blk in range(2):
            if blk == 0 and i >= 8: continue
            for hl in range(2):
                img = KH if hl == 0 else KL
                o = img + (32+32*blk-4*i)*80 + 32*ks - 240
                r_ = bf_ + (blk*2+hl)*4
                a(f"ds_read_b128 v[{r_}:{r_+3}], v2 offset:{o}")
                cnt += 1
        return cnt
    loads(0)
    for n in range(32):
        i, ks = steps[n]
        if n+1 < 32:
            c = loads(n+1)
            a(f"s_waitcnt lgkmcnt({c})")
        else:
            a("s_waitcnt lgkmcnt(0)")
        af = 16 + (n % 2)*4; bf_ = 24 + (n % 2)*16
        for hl in range(2):
            for blk in range(2):
                if blk == 0 and i >= 8: continue
                r_ = bf_ + (blk*2+hl)*4
                ac = A0 if blk == 0 else A1
                a(f"v_mfma_f32_32x32x16_bf16 v[{ac}:{ac+15}], v[{af}:{af+3}], v[{r_}:{r_+3}], v[{ac}:{ac+15}]")
    a("""
    s_nop 15
    s_barrier
    s_lshl_b32 s14, s3, 13
    v_lshlrev_b32 v1, 4, v0
    v_add_u32 v2, s14, v1
    """)
    for q in range(8):
        a(f"ds_write_b128 v2, v[{64+4*q}:{67+4*q}] offset:{q*1024}")
    a("""
    s_lshl_b32 s14, s3, 11
    v_add_u32 v1, s14, v1
    s_waitcnt lgkmcnt(0)
    s_barrier
    """)
    for ww in range(4):
        for e in range(2):
            r_ = 16 + (ww*2+e)*4
            a(f"ds_read_b128 v[{r_}:{r_+3}], v1 offset:{ww*8192+e*1024}")
    a("""
    s_waitcnt lgkmcnt(0) vmcnt(0)
    v_lshlrev_b32 v14, 16, v14
    """)
    for e in range(2):
        for j in range(4):
            r_ = 16 + e*4 + j
            a(f"v_add_f32 v{r_}, v{r_}, v{r_+8}")
            a(f"v_add_f32 v{r_+16}, v{r_+16}, v{r_+24}")
            a(f"v_add_f32 v{r_}, v{r_}, v{r_+16}")
        y = 16 + e*4
        for p in range(2):
            uu = 8 + 2*e + p
            a(f"""
            v_cvt_pk_bf16_f32 v48, v{y+2*p}, v{y+2*p+1}
            v_lshlrev_b32 v49, 16, v48
            v_and_b32 v50, 0xffff0000, v48
            v_lshlrev_b32 v51, 16, v{uu}
            v_and_b32 v52, 0xffff0000, v{uu}
            v_mul_f32 v51, v51, v14
            v_mul_f32 v52, v52, v14
            v_cvt_pk_bf16_f32 v48, v51, v52
            v_lshlrev_b32 v51, 16, v48
            v_and_b32 v52, 0xffff0000, v48
            v_add_f32 v49, v49, v51
            v_add_f32 v50, v50, v52
            v_cvt_pk_bf16_f32 v{54+2*e+p}, v49, v50
            """)
        a(f"buffer_store_dwordx2 v[{54+2*e}:{55+2*e}], v13, s[32:35], 0 offen offset:{16*e}")
    a("""
    L1_exit:
    s_endpgm
    """)
```

```python
LDS2 = 131072
LAUNCH = f"; @launch kernel=out_kernel grid=(256,1,1) block=(256,1,1) lds={LDS2}"
def DESC(desc): return desc("out_kernel", 176)

def k2(a, G):
    G.header(a, "out_kernel")
    a("""
    s_cmp_ge_u32 s2, 256
    s_cbranch_scc1 L2_exit
    s_load_dwordx2 s[4:5], s[0:1], 0
    s_load_dwordx4 s[8:11], s[0:1], 80
    s_load_dwordx2 s[16:17], s[0:1], 104
    v_lshrrev_b32 v5, 6, v0
    v_and_b32 v0, 63, v0
    v_readfirstlane_b32 s3, v5      ; wave
    s_and_b32 s12, s2, 7
    s_bfe_u32 s13, s2, 0x20003
    s_lshl_b32 s13, s13, 3
    s_add_u32 s12, s12, s13         ; tt
    s_lshr_b32 s13, s2, 5           ; dt
    s_waitcnt lgkmcnt(0)
    """)
    a(f"""
    s_mul_i32 s14, s12, {64*3584}
    s_add_u32 s20, s16, 0x{G.HB:x}
    s_addc_u32 s21, s17, 0
    s_add_u32 s20, s20, s14
    s_addc_u32 s21, s21, 0
    s_and_b32 s21, s21, 0xffff
    s_mov_b32 s22, {64*3584}
    s_mov_b32 s23, 0x20000
    s_lshl_b32 s14, s13, 7
    s_add_u32 s24, s8, s14
    s_addc_u32 s25, s9, 0
    s_and_b32 s25, s25, 0xffff
    s_sub_u32 s26, {1792*1024}, s14
    s_mov_b32 s27, 0x20000
    """)
    G.srd(a, 28, 16, 17, G.AT, G.SZ2M)
    G.srd(a, 32, 4, 5, 0, G.SZ2M)
    G.srd(a, 36, 10, 11, 0, G.SZ2M)
    a(f"""
    v_and_b32 v5, 31, v0
    v_lshrrev_b32 v6, 5, v0         ; g
    s_lshr_b32 s14, s3, 1           ; rb
    s_and_b32 s15, s3, 1            ; cb
    s_lshl_b32 s40, s12, 6
    s_lshl_b32 s14, s14, 5
    s_add_u32 s40, s40, s14
    s_lshl_b32 s41, s13, 6
    s_lshl_b32 s15, s15, 5
    s_add_u32 s41, s41, s15
    v_add_u32 v7, s41, v5           ; d
    v_lshl_add_u32 v8, v6, 2, s40   ; t = tbase+4g
    v_lshlrev_b32 v9, 12, v7
    v_lshl_add_u32 v9, v8, 1, v9
    v_lshlrev_b32 v10, 10, v8
    v_lshl_add_u32 v10, v7, 1, v10
    s_mov_b32 s60, 0
    s_mov_b32 s61, 8192
    s_mov_b32 s62, 16384
    s_mov_b32 s63, 24576
    """)
    AT_R, X_R = 144, 152
    for q in range(4):
        a(f"buffer_load_dwordx2 v[{AT_R+2*q}:{AT_R+2*q+1}], v9, s[28:31], 0 offen offset:{16*q}")
    for q in range(4):
        for e in range(4):
            a(f"buffer_load_ushort v{X_R+4*q+e}, v10, s[32:35], s{60+q} offen offset:{1024*e}")
    a(f"""
    v_lshrrev_b32 v7, 2, v0
    v_mul_u32_u24 v1, 3584, v7
    v_bfe_u32 v7, v0, 4, 2
    v_and_b32 v8, 3, v0
    v_xor_b32 v7, v7, v8
    v_lshl_add_u32 v1, v7, 4, v1
    v_lshrrev_b32 v7, 3, v0
    v_lshlrev_b32 v2, 10, v7
    v_bfe_u32 v7, v0, 4, 1
    v_lshlrev_b32 v7, 2, v7
    v_and_b32 v8, 7, v0
    v_xor_b32 v7, v7, v8
    v_lshl_add_u32 v2, v7, 4, v2
    s_mul_i32 s42, s3, 896
    s_mul_i32 s43, s3, {448*1024}
    s_lshl_b32 s44, s3, 15
    v_bfe_u32 v7, v0, 2, 2
    v_xor_b32 v7, v7, v6
    v_lshlrev_b32 v3, 6, v5
    v_lshl_add_u32 v3, v7, 4, v3
    v_add_u32 v3, s44, v3
    v_xor_b32 v4, 32, v3
    v_bfe_u32 v7, v0, 2, 2          ; j>>2
    v_lshl_add_u32 v7, v6, 3, v7    ; row
    v_lshlrev_b32 v11, 7, v7
    v_bfe_u32 v7, v0, 4, 1          ; G&1
    v_lshlrev_b32 v7, 1, v7
    v_bfe_u32 v8, v0, 1, 1
    v_add_u32 v7, v7, v8
    v_bfe_u32 v8, v0, 3, 1
    v_lshl_add_u32 v7, v8, 2, v7
    v_lshl_add_u32 v11, v7, 4, v11
    v_and_b32 v8, 1, v0
    v_lshl_add_u32 v11, v8, 3, v11
    v_add_u32 v11, s44, v11
    v_add_u32 v11, 0x1000, v11
    v_xor_b32 v12, 64, v11
    """)
    NS = 14
    def issue(s):
        for i in range(4):
            a(f"s_add_u32 s45, s42, {64*s + i*16*3584}")
            a(f"s_add_u32 m0, s44, {(s%4)*8192 + i*1024}")
            a("s_nop 0")
            a("buffer_load_dwordx4 v1, s[20:23], s45 offen lds")
            a(f"s_add_u32 s46, s43, {(32*s+8*i)*1024}")
            a(f"s_add_u32 m0, s44, {(s%4)*8192 + 4096 + i*1024}")
            a("s_nop 0")
            a("buffer_load_dwordx4 v2, s[24:27], s46 offen lds")
    ACC = 80
    def acc(rb, cb): return ACC + (rb*2+cb)*16
    def af(s, rb, ks): return 16 + (s % 2)*32 + (rb*2+ks)*4
    def bfr(s, cb, ks): return 32 + (s % 2)*32 + (cb*2+ks)*4
    def reads(s):
        so = (s % 4)*8192
        for ks in range(2):
            for rb in range(2):
                r = af(s, rb, ks)
                a(f"ds_read_b128 v[{r}:{r+3}], v{3+ks} offset:{so + 2048*rb}")
            for cb in range(2):
                r = bfr(s, cb, ks)
                a(f"ds_read_b64_tr_b16 v[{r}:{r+1}], v{11+cb} offset:{so + 2048*ks}")
                a(f"ds_read_b64_tr_b16 v[{r+2}:{r+3}], v{11+cb} offset:{so + 2048*ks + 512}")
    for s in range(4): issue(s)
    for r in range(64): a(f"v_mov_b32 v{ACC+r}, 0")
    a("s_waitcnt vmcnt(24)")
    reads(0)
    for s in range(NS):
        a("s_waitcnt lgkmcnt(0)")
        if s+4 < NS: issue(s+4)
        if s+1 < NS:
            outst = min(NS-1, s+4) - (s+1)
            a(f"s_waitcnt vmcnt({8*outst})")
            reads(s+1)
        for ks in range(2):
            for rb in range(2):
                for cb in range(2):
                    c = acc(rb, cb); x = af(s, rb, ks); y = bfr(s, cb, ks)
                    a(f"v_mfma_f32_32x32x16_bf16 v[{c}:{c+15}], v[{x}:{x+3}], v[{y}:{y+3}], v[{c}:{c+15}]")
    a("""
    v_lshlrev_b32 v1, 4, v0
    v_add_u32 v2, s44, v1
    s_lshl_b32 s45, s3, 12
    v_add_u32 v1, s45, v1
    v_add_u32 v3, 0x10000, v1
    s_nop 15
    """)
    for i in range(16):
        a(f"ds_write_b128 v2, v[{ACC+4*i}:{ACC+4*i+3}] offset:{i*1024}")
    a("""
    s_waitcnt lgkmcnt(0)
    s_barrier
    """)
    for ww in range(4):
        for q in range(4):
            r = 16 + (ww*4+q)*4
            a(f"ds_read_b128 v[{r}:{r+3}], v{1 if ww < 2 else 3} offset:{(ww&1)*32768 + q*1024}")
    a("s_waitcnt vmcnt(0)")
    for q in range(4):
        a(f"s_waitcnt lgkmcnt({3-q})") if False else None
    a("s_waitcnt lgkmcnt(0)")
    for q in range(4):
        for e in range(4):
            r = 16 + q*4 + e
            a(f"v_add_f32 v{r}, v{r}, v{r+16}")
            a(f"v_add_f32 v{r+32}, v{r+32}, v{r+48}")
            a(f"v_add_f32 v{r}, v{r}, v{r+32}")
        for p in range(2):
            r = 16 + q*4 + 2*p
            at = AT_R + 2*q + p
            x0 = X_R + 4*q + 2*p
            o = 88 + (q*2+p)
            a(f"""
            v_lshlrev_b32 v80, 16, v{at}
            v_and_b32 v81, 0xffff0000, v{at}
            v_lshlrev_b32 v82, 16, v{x0}
            v_lshlrev_b32 v83, 16, v{x0+1}
            v_add_f32 v80, v80, v82
            v_add_f32 v81, v81, v83
            v_cvt_pk_bf16_f32 v82, v{r}, v{r+1}
            v_cvt_pk_bf16_f32 v80, v80, v81
            v_lshlrev_b32 v84, 16, v82
            v_and_b32 v85, 0xffff0000, v82
            v_and_b32 v81, 0xffff0000, v80
            v_lshlrev_b32 v80, 16, v80
            v_add_f32 v80, v80, v84
            v_add_f32 v81, v81, v85
            v_cvt_pk_bf16_f32 v{o}, v80, v81
            buffer_store_short v{o}, v10, s[36:39], s{60+q} offen offset:{1024*(2*p)}
            buffer_store_short_d16_hi v{o}, v10, s[36:39], s{60+q} offen offset:{1024*(2*p+1)}
            """)
    a("""
    L2_exit:
    s_endpgm
    """)
```

```python
import sys, struct
OUT = "parallel_sum__ssm_conv_s4d__glu_gated_geglu__prompt.s"

class A:
    def __init__(self): self.l = []
    def __call__(self, s):
        for ln in s.strip("\n").split("\n"):
            self.l.append("    " + ln.strip() if not ln.strip().endswith(":") else ln.strip())
    def raw(self, s): self.l.append(s)
    def text(self): return "\n".join(self.l) + "\n"

def f32(x): return "0x%08x" % struct.unpack("<I", struct.pack("<f", x))[0]
import math
LOG2E = 1.4426950408889634

XN, XNT, KHI, KLO, HB, AT = 0, 2<<20, 4<<20, 6<<20, 8<<20, 16<<20
SZ2M = 2<<20
HSZ = 2048*1792*2

def srd(a, s, lo, hi, off, size):
    if off:
        a(f"s_add_u32 s{s}, s{lo}, 0x{off:x}")
        a(f"s_addc_u32 s{s+1}, s{hi}, 0")
        a(f"s_and_b32 s{s+1}, s{s+1}, 0xffff")
    else:
        a(f"s_mov_b32 s{s}, s{lo}")
        a(f"s_and_b32 s{s+1}, s{hi}, 0xffff")
    a(f"s_mov_b32 s{s+2}, 0x{size:x}")
    a(f"s_mov_b32 s{s+3}, 0x20000")

def header(a, name):
    a.raw(f".globl {name}")
    a.raw(".p2align 8")
    a.raw(f".type {name},@function")
    a.raw(f"{name}:")

def desc(name, vgpr, sgpr=96):
    acc = (vgpr + 3)//4*4
    return f""".p2align 6
.amdhsa_kernel {name}
  .amdhsa_next_free_vgpr {vgpr}
  .amdhsa_next_free_sgpr {sgpr}
  .amdhsa_accum_offset {acc}
  .amdhsa_group_segment_fixed_size 0
  .amdhsa_kernarg_size 112
  .amdhsa_user_sgpr_count 2
  .amdhsa_user_sgpr_kernarg_segment_ptr 1
  .amdhsa_system_sgpr_workgroup_id_x 1
.end_amdhsa_kernel
"""

def k0(a):
    header(a, "prep_kernel")
    a("""
    s_cmp_ge_u32 s2, 640
    s_cbranch_scc1 L0_exit
    s_load_dwordx4 s[4:7], s[0:1], 0
    s_load_dwordx4 s[8:11], s[0:1], 16
    s_load_dwordx4 s[12:15], s[0:1], 32
    s_load_dwordx2 s[16:17], s[0:1], 104
    s_waitcnt lgkmcnt(0)
    s_cmp_lt_u32 s2, 512
    s_cbranch_scc1 L0_kgen
    """)
    srd(a, 20, 4, 5, 0, SZ2M)
    srd(a, 24, 16, 17, XN, SZ2M)
    srd(a, 28, 16, 17, XNT, SZ2M)
    a("""
    s_sub_u32 s3, s2, 512
    s_lshl_b32 s3, s3, 4            ; r0
    v_lshrrev_b32 v1, 4, v0
    v_and_b32 v2, 15, v0            ; j
    v_add_u32 v3, s3, v1            ; row
    v_lshlrev_b32 v3, 10, v3
    v_lshl_add_u32 v3, v2, 4, v3    ; voffset
    """)
    for c in range(4):
        a(f"buffer_load_dwordx4 v[{8+4*c}:{11+4*c}], v3, s[20:23], 0 offen offset:{c*256}")
    a("s_waitcnt vmcnt(0)")
    for i in range(16):
        a(f"v_lshlrev_b32 v{32+2*i}, 16, v{8+i}")
        a(f"v_and_b32 v{33+2*i}, 0xffff0000, v{8+i}")
    a("v_add_f32 v4, v32, v33")
    a("v_add_f32 v5, v34, v35")
    for i in range(36, 64, 2):
        a(f"v_add_f32 v4, v4, v{i}")
        a(f"v_add_f32 v5, v5, v{i+1}")
    a("v_add_f32 v4, v4, v5")
    def rowsum(r):
        for ror in (8, 4, 2, 1):
            a("s_nop 1")
            a(f"v_add_f32_dpp v{r}, v{r}, v{r} row_ror:{ror} row_mask:0xf bank_mask:0xf")
    rowsum(4)
    a(f"v_mul_f32 v4, {f32(1.0/512)}, v4")
    a("v_sub_f32 v6, v32, v4")
    a("v_mul_f32 v5, v6, v6")
    a("v_sub_f32 v6, v33, v4")
    a("v_mul_f32 v7, v6, v6")
    for i in range(34, 64, 2):
        a(f"v_sub_f32 v6, v{i}, v4")
        a(f"v_fma_f32 v5, v6, v6, v5")
        a(f"v_sub_f32 v64, v{i+1}, v4")
        a(f"v_fma_f32 v7, v64, v64, v7")
    a("v_add_f32 v5, v5, v7")
    rowsum(5)
    a(f"""
    v_mul_f32 v5, {f32(1.0/512)}, v5
    v_cvt_pk_bf16_f32 v4, v4, v5
    v_and_b32 v5, 0xffff0000, v4
    v_lshlrev_b32 v4, 16, v4
    v_add_f32 v5, {f32(1e-5)}, v5
    v_cvt_pk_bf16_f32 v5, v5, v5
    v_lshlrev_b32 v5, 16, v5
    v_sqrt_f32 v5, v5
    s_nop 0
    v_cvt_pk_bf16_f32 v5, v5, v5
    v_lshlrev_b32 v5, 16, v5         ; s (bf16)
    v_rcp_f32 v6, v5
    s_nop 0
    """)
    for i in range(16):
        x0, x1 = 32+2*i, 33+2*i
        a(f"""
        v_sub_f32 v{x0}, v{x0}, v4
        v_sub_f32 v{x1}, v{x1}, v4
        v_cvt_pk_bf16_f32 v7, v{x0}, v{x1}
        v_lshlrev_b32 v{x0}, 16, v7
        v_and_b32 v{x1}, 0xffff0000, v7
        v_mul_f32 v64, v{x0}, v6
        v_mul_f32 v65, v{x1}, v6
        v_fma_f32 v66, -v64, v5, v{x0}
        v_fma_f32 v67, -v65, v5, v{x1}
        v_fma_f32 v64, v66, v6, v64
        v_fma_f32 v65, v67, v6, v65
        v_cvt_pk_bf16_f32 v{8+i}, v64, v65
        """)
    a("""
    v_lshlrev_b32 v7, 10, v1
    v_lshl_add_u32 v7, v2, 4, v7
    """)
    for c in range(4):
        a(f"buffer_store_dwordx4 v[{8+4*c}:{11+4*c}], v3, s[24:27], 0 offen offset:{c*256}")
        a(f"ds_write_b128 v7, v[{8+4*c}:{11+4*c}] offset:{c*256}")
    a("""
    s_waitcnt lgkmcnt(0)
    s_barrier
    v_lshlrev_b32 v7, 2, v0
    """)
    for r in range(16):
        a(f"ds_read_b32 v{32+r}, v7 offset:{r*1024}")
    a("""
    s_mov_b32 s32, 0x05040100
    s_mov_b32 s33, 0x07060302
    v_lshlrev_b32 v3, 13, v0        ; d=2*tid -> d*4096
    s_lshl_b32 s3, s3, 1            ; r0*2 bytes
    v_add_u32 v3, s3, v3
    s_waitcnt lgkmcnt(0)
    """)
    for q in range(8):
        a(f"v_perm_b32 v{48+q}, v{33+2*q}, v{32+2*q}, s32")
        a(f"v_perm_b32 v{56+q}, v{33+2*q}, v{32+2*q}, s33")
    a("""
    buffer_store_dwordx4 v[48:51], v3, s[28:31], 0 offen
    buffer_store_dwordx4 v[52:55], v3, s[28:31], 0 offen offset:16
    v_add_u32 v3, 0x1000, v3
    buffer_store_dwordx4 v[56:59], v3, s[28:31], 0 offen
    buffer_store_dwordx4 v[60:63], v3, s[28:31], 0 offen offset:16
    s_endpgm
    """)
    PAR, TAB = 0, 2048
    a("L0_kgen:")
    srd(a, 20, 6, 7, 0, 131072)
    srd(a, 24, 8, 9, 0, 131072)
    srd(a, 28, 10, 11, 0, 131072)
    srd(a, 32, 12, 13, 0, 131072)
    srd(a, 36, 14, 15, 0, 1024)
    srd(a, 40, 16, 17, KHI, SZ2M)
    srd(a, 44, 16, 17, KLO, SZ2M)
    a(f"""
    v_and_b32 v1, 127, v0           ; n
    s_lshl_b32 s3, s2, 8            ; d*256 bytes
    v_lshl_add_u32 v2, v1, 1, s3
    s_lshl_b32 s48, s2, 1
    v_mov_b32 v3, s48
    buffer_load_ushort v4, v2, s[20:23], 0 offen
    buffer_load_ushort v5, v2, s[24:27], 0 offen
    buffer_load_ushort v6, v2, s[28:31], 0 offen
    buffer_load_ushort v7, v2, s[32:35], 0 offen
    buffer_load_ushort v8, v3, s[36:39], 0 offen
    v_lshrrev_b32 v9, 6, v0
    s_nop 0
    v_readfirstlane_b32 s49, v9     ; segment
    s_waitcnt vmcnt(0)
    v_lshlrev_b32 v4, 16, v4
    v_lshlrev_b32 v5, 16, v5
    v_lshlrev_b32 v6, 16, v6
    v_lshlrev_b32 v7, 16, v7
    v_lshlrev_b32 v8, 16, v8
    v_mul_f32 v4, {f32(LOG2E)}, v4
    v_mul_f32 v8, {f32(LOG2E)}, v8
    v_exp_f32 v4, v4
    v_exp_f32 v8, v8
    s_nop 0
    v_cvt_pk_bf16_f32 v4, v4, v8
    v_and_b32 v8, 0xffff0000, v4    ; dt
    v_lshlrev_b32 v4, 16, v4
    v_mul_f32 v4, v4, v8            ; Ar*dt
    v_mul_f32 v5, v5, v8            ; Ai*dt
    v_mul_f32 v6, v6, v8
    v_mul_f32 v7, v7, v8
    v_mul_f32 v4, {f32(-LOG2E)}, v4
    v_mul_f32 v5, {f32(1.0/(2*math.pi))}, v5
    v_add_f32 v6, v6, v6
    v_add_f32 v7, v7, v7
    v_lshlrev_b32 v9, 4, v1
    ds_write_b128 v9, v[4:7] offset:{PAR}
    v_and_b32 v10, 15, v0           ; i / j
    v_bfe_u32 v11, v0, 4, 2         ; q
    s_lshl_b32 s50, 1, s49          ; step
    s_lshl_b32 s51, 128, s49
    s_cmp_eq_u32 s49, 0
    s_cselect_b32 s51, 0, s51
    v_mul_lo_u32 v12, v10, s50      ; step*j
    v_lshlrev_b32 v13, 4, v12
    v_add_u32 v13, s51, v13         ; base+16*step*i
    v_cvt_f32_u32 v12, v12          ; P2
    v_cvt_f32_u32 v13, v13          ; P1
    v_lshlrev_b32 v14, 9, v11
    v_mov_b32 v16, 0
    v_mov_b32 v17, 0
    v_mov_b32 v18, 0
    v_mov_b32 v19, 0
    v_mov_b32 v20, 0
    v_mov_b32 v21, 0
    v_mov_b32 v22, 0
    v_mov_b32 v23, 0
    s_waitcnt lgkmcnt(0)
    s_barrier
    ds_read_b128 v[24:27], v14 offset:{PAR}
    """)
    for t in range(32):
        p = 24 + 4*(t & 1); pn = 24 + 4*((t+1) & 1)
        if t < 31:
            a(f"ds_read_b128 v[{pn}:{pn+3}], v14 offset:{PAR+(t+1)*16}")
            a("s_waitcnt lgkmcnt(1)")
        else:
            a("s_waitcnt lgkmcnt(0)")
        a(f"""
        v_mul_f32 v32, v{p}, v13
        v_mul_f32 v33, v{p}, v12
        v_mul_f32 v34, v{p+1}, v13
        v_mul_f32 v35, v{p+1}, v12
        v_exp_f32 v32, v32
        v_exp_f32 v33, v33
        v_sin_f32 v36, v34
        v_cos_f32 v37, v34
        v_sin_f32 v38, v35
        v_cos_f32 v39, v35
        v_mul_f32 v40, v{p+2}, v37
        v_mul_f32 v41, v{p+2}, v36
        v_fma_f32 v40, -v{p+3}, v36, v40
        v_fma_f32 v41, v{p+3}, v37, v41
        v_mul_f32 v42, v39, v33
        v_mul_f32 v43, v38, v33
        v_mul_f32 v40, v40, v32
        v_mul_f32 v41, -v41, v32
        s_nop 1
        v_mfma_f32_16x16x4_f32 v[16:19], v40, v42, v[16:19]
        v_mfma_f32_16x16x4_f32 v[20:23], v41, v43, v[20:23]
        """)
    a(f"""
    s_nop 15
    v_add_f32 v16, v16, v20
    v_add_f32 v17, v17, v21
    v_add_f32 v18, v18, v22
    v_add_f32 v19, v19, v23
    s_lshl_b32 s52, s49, 10
    v_lshlrev_b32 v9, 8, v11
    v_lshl_add_u32 v9, v10, 2, v9
    v_add_u32 v9, s52, v9
    ds_write_b32 v9, v16 offset:{TAB}
    ds_write_b32 v9, v17 offset:{TAB+64}
    ds_write_b32 v9, v18 offset:{TAB+128}
    ds_write_b32 v9, v19 offset:{TAB+192}
    v_mov_b32 v1, 0
    v_cmp_le_u32 vcc, 32, v0
    s_nop 1
    v_addc_co_u32 v1, vcc, 0, v1, vcc
    v_cmp_le_u32 vcc, 64, v0
    s_nop 1
    v_addc_co_u32 v1, vcc, 0, v1, vcc
    v_cmp_le_u32 vcc, 128, v0
    s_nop 1
    v_addc_co_u32 v1, vcc, 0, v1, vcc     ; s
    v_lshlrev_b32 v2, v1, 1
    v_lshrrev_b32 v2, 1, v2
    v_add_u32 v2, -1, v2                  ; half-1
    v_lshlrev_b32 v3, 3, v0               ; j0
    v_lshlrev_b32 v4, 10, v1              ; s*1024
    v_cmp_eq_u32 vcc, 0, v1
    s_waitcnt lgkmcnt(0)
    s_barrier
    """)
    for i in range(8):
        a(f"""
        v_add_u32 v5, {i}, v3
        v_lshrrev_b32 v6, v1, v5
        v_and_b32 v6, 1, v6
        v_add3_u32 v6, v5, v2, v6
        v_lshrrev_b32 v6, v1, v6
        v_add_u32 v6, -128, v6
        v_cndmask_b32 v6, v6, v5, vcc
        v_lshl_add_u32 v6, v6, 2, v4
        ds_read_b32 v{24+i}, v6 offset:{TAB}
        """)
    a("""
    s_lshl_b32 s3, s2, 12
    v_lshl_add_u32 v7, v0, 4, s3
    s_waitcnt lgkmcnt(0)
    """)
    for i in range(4):
        k0_, k1_ = 24+2*i, 25+2*i
        a(f"""
        v_cvt_pk_bf16_f32 v{32+i}, v{k0_}, v{k1_}
        v_lshlrev_b32 v5, 16, v{32+i}
        v_and_b32 v6, 0xffff0000, v{32+i}
        v_sub_f32 v5, v{k0_}, v5
        v_sub_f32 v6, v{k1_}, v6
        v_cvt_pk_bf16_f32 v{36+i}, v5, v6
        """)
    a("""
    buffer_store_dwordx4 v[32:35], v7, s[40:43], 0 offen
    buffer_store_dwordx4 v[36:39], v7, s[44:47], 0 offen
    L0_exit:
    s_endpgm
    """)

def build(stages=3):
    a = A()
    launches = ["; @launch kernel=prep_kernel grid=(640,1,1) block=(256,1,1) lds=16384"]
    descs = [desc("prep_kernel", 72)]
    body = A()
    k0(body)
    if stages >= 2:
        import gen_k1
        launches.append(gen_k1.LAUNCH); descs.append(gen_k1.DESC(desc)); gen_k1.k1(body, sys.modules[__name__])
    if stages >= 3:
        import gen_k2
        launches.append(gen_k2.LAUNCH); descs.append(gen_k2.DESC(desc)); gen_k2.k2(body, sys.modules[__name__])
    txt = "\n".join(launches) + "\n"
    txt += '.amdgcn_target "amdgcn-amd-amdhsa--gfx950"\n.text\n'
    txt += body.text()
    txt += '.section .rodata,"a"\n' + "".join(descs)
    return txt

if __name__ == "__main__":
    st = int(sys.argv[1]) if len(sys.argv) > 1 else 3
    out = sys.argv[2] if len(sys.argv) > 2 else OUT
    open(out, "w").write(build(st))
    print("wrote", out)
```

```python
import math
LDS1 = 65536
NG = 224
LAUNCH = f"; @launch kernel=main_kernel grid=({NG+256},1,1) block=(256,1,1) lds={LDS1}"
NV = 160
def DESC(desc): return desc("main_kernel", 256, acc=NV)

def srd_dyn(a, s, lo, hi, off, sx, size):
    a(f"s_add_u32 s{s}, s{lo}, 0x{off:x}")
    a(f"s_addc_u32 s{s+1}, s{hi}, 0")
    a(f"s_add_u32 s{s}, s{s}, s{sx}")
    a(f"s_addc_u32 s{s+1}, s{s+1}, 0")
    a(f"s_and_b32 s{s+1}, s{s+1}, 0xffff")
    a(f"s_mov_b32 s{s+2}, 0x{size:x}")
    a(f"s_mov_b32 s{s+3}, 0x20000")

import os
TSON = os.environ.get("TS", "") != ""
TSWG = int(os.environ.get("TS", "0") or 0)
def TS(a, i):
    if not TSON: return
    a(f"s_memtime s[94:95]")
    a("s_waitcnt lgkmcnt(0)")
    a(f"s_mov_b32 s{64+i}, s94")
def TSDUMP(a, G, n, tag):
    if not TSON: return
    a(f"""
    s_cmp_lg_u32 s2, {TSWG}
    s_cbranch_scc1 Lts_{tag}
    s_cmp_lg_u32 s3, 0
    s_cbranch_scc1 Lts_{tag}
    s_load_dwordx2 s[92:93], s[0:1], 96
    s_waitcnt lgkmcnt(0)
    """)
    G.srd(a, 88, 92, 93, 0, 256)
    a("v_mov_b32 v1, 0")
    for i in range(n):
        a(f"v_mov_b32 v2, s{64+i}")
        a(f"buffer_store_dword v2, v1, s[88:91], 0 offen offset:{4*i}")
    a(f"Lts_{tag}:")

def gemm1(a, G):
    TS(a, 0)
    f32 = G.f32
    G.srd(a, 20, 16, 17, G.XN, G.SZ2M)
    G.srd(a, 28, 16, 17, G.HB, G.HSZ)
    a(f"""
    s_cmp_ge_u32 s3, 2
    s_cselect_b32 s24, s6, s4
    s_cselect_b32 s25, s7, s5
    s_and_b32 s25, s25, 0xffff
    s_mov_b32 s26, 0x1c0000
    s_mov_b32 s27, 0x20000
    ; x=g&7, q=g>>3 ; ct=(x&3)*7+q%7 ; rt=(x>>2)*4+q/7
    s_lshr_b32 s12, s2, 3
    s_mul_i32 s13, s12, 37
    s_lshr_b32 s13, s13, 8          ; q/7
    s_mul_i32 s14, s13, 7
    s_sub_u32 s14, s12, s14         ; q%7
    s_and_b32 s15, s2, 3
    s_mul_i32 s15, s15, 7
    s_add_u32 s10, s15, s14         ; ct
    s_bfe_u32 s15, s2, 0x10002
    s_lshl_b32 s15, s15, 2
    s_add_u32 s11, s15, s13         ; rt
    s_lshl_b32 s12, s11, 4
    s_lshl_b32 s13, s3, 2
    s_add_u32 s12, s12, s13
    s_lshl_b32 s12, s12, 14
    v_lshlrev_b32 v1, 4, v0
    v_add_u32 v1, s12, v1
    v_lshrrev_b32 v5, 3, v0         ; row8
    v_and_b32 v6, 7, v0             ; c'
    v_and_b32 v7, 2, v5             ; ((row8>>1)&1)*2
    v_xor_b32 v6, v6, v7
    v_mul_u32_u24 v2, 3584, v5
    s_lshl_b32 s13, s10, 7
    v_add_u32 v2, s13, v2
    v_xor_b32 v7, 4, v6
    v_lshl_add_u32 v3, v7, 4, v2
    v_lshl_add_u32 v2, v6, 4, v2
    s_and_b32 s14, s3, 1
    s_mul_i32 s40, s14, {16*3584}
    s_lshr_b32 s15, s3, 1
    s_lshl_b32 s42, s15, 12
    s_lshl_b32 s14, s14, 11
    s_add_u32 s42, s42, s14
    v_lshrrev_b32 v6, 4, v0         ; gq
    v_bfe_u32 v7, v0, 2, 2          ; r
    v_lshl_add_u32 v5, v6, 3, v7    ; row
    v_lshlrev_b32 v5, 7, v5
    v_and_b32 v12, 3, v0
    v_lshl_add_u32 v5, v12, 3, v5
    v_lshrrev_b32 v7, 1, v7         ; (r>>1)&1
    v_and_b32 v12, 1, v6
    v_lshl_add_u32 v7, v12, 1, v7   ; g
    v_lshl_add_u32 v8, v7, 5, v5
    v_xor_b32 v9, 32, v8
    v_xor_b32 v10, 64, v8
    v_xor_b32 v11, 96, v8
    """)
    for rb in range(4):
        for h in range(4):
            a(f"s_mov_b32 s{48+rb*4+h}, {rb*16384+h*4096}")
    ACC = 32
    def acc(mat, nb, rb): return ACC + ((mat*4+nb)*4+rb)*4
    NS, NSL, XS = 16, 8, 6
    q = []
    def wait_for(tag):
        idx = max(i for i, t in enumerate(q) if t == tag)
        n = len(q) - 1 - idx
        assert n <= 63
        a(f"s_waitcnt vmcnt({n})")
    def xr(s, rb): return (s % XS)*16 + rb*4
    def issue_w(s):
        for i in range(2):
            a(f"s_add_u32 s41, s40, {(32*s+8*i)*3584}")
            a(f"s_add_u32 m0, s42, {(s%NSL)*8192+i*1024}")
            a("s_nop 0")
            a(f"buffer_load_dwordx4 v{2+i}, s[24:27], s41 offen lds")
            q.append(("w", s))
    def issue_x(s):
        for rb in range(4):
            r = xr(s, rb)
            a(f"buffer_load_dwordx4 a[{r}:{r+3}], v1, s[20:23], s{48+rb*4+(s>>2)} offen offset:{(s&3)*1024}")
            q.append(("x", s))
    for s in range(NSL-1):
        issue_w(s)
        if s < XS: issue_x(s)
    for r in range(128): a(f"v_mov_b32 v{ACC+r}, 0")
    WF = 16
    def trread(s, blk):
        mat, nb = blk // 4, blk % 4
        b = WF + (blk % 4)*4
        base = (s % NSL)*8192 + mat*4096
        a(f"ds_read_b64_tr_b16 v[{b}:{b+1}], v{8+nb} offset:{base}")
        a(f"ds_read_b64_tr_b16 v[{b+2}:{b+3}], v{8+nb} offset:{base+512}")
    TS(a, 1)
    for s in range(NS):
        wait_for(("w", s))
        a("s_barrier")
        TS(a, 2+s)
        trread(s, 0); trread(s, 1)
        if s+NSL-1 < NS: issue_w(s+NSL-1)
        if ("x", s) in q[max(0, len(q)-64):]: wait_for(("x", s))
        for blk in range(8):
            if blk+2 < 8:
                trread(s, blk+2)
                a("s_waitcnt lgkmcnt(4)")
            elif blk+1 < 8:
                a("s_waitcnt lgkmcnt(2)")
            else:
                a("s_waitcnt lgkmcnt(0)")
            b = WF + (blk % 4)*4
            for rb in range(4):
                c = acc(blk//4, blk % 4, rb)
                a(f"v_mfma_f32_16x16x32_bf16 v[{c}:{c+3}], v[{b}:{b+3}], a[{xr(s,rb)}:{xr(s,rb)+3}], v[{c}:{c+3}]")
        if s+XS < NS: issue_x(s+XS)
    TS(a, 18)
    c0 = math.sqrt(2.0/math.pi)
    kA = -2.0*G.LOG2E*c0
    kB = kA*0.044715
    a(f"""
    v_and_b32 v5, 15, v0
    v_lshrrev_b32 v7, 1, v6
    v_lshl_add_u32 v5, v7, 5, v5
    v_lshlrev_b32 v1, 4, v5
    v_and_b32 v7, 1, v6
    v_lshl_add_u32 v1, v7, 3, v1
    s_lshl_b32 s12, s11, 3
    s_lshl_b32 s13, s3, 1
    s_add_u32 s12, s12, s13
    s_mul_i32 s12, s12, 112
    s_lshl_b32 s13, s10, 2
    s_add_u32 s12, s12, s13
    s_lshl_b32 s12, s12, 10
    s_add_u32 s13, s12, {112*1024}
    s_mov_b32 s46, {f32(kA)}
    s_mov_b32 s47, {f32(kB)}
    s_nop 7
    """)
    for nb in range(4):
        for rb in range(4):
            g = acc(0, nb, rb); u = acc(1, nb, rb)
            o = 8 + ((nb*4+rb) % 4)*2
            for p in range(2):
                g0, g1, u0, u1 = g+2*p, g+2*p+1, u+2*p, u+2*p+1
                a(f"""
                v_cvt_pk_bf16_f32 v16, v{g0}, v{g1}
                v_cvt_pk_bf16_f32 v17, v{u0}, v{u1}
                v_lshlrev_b32 v18, 16, v16
                v_and_b32 v19, 0xffff0000, v16
                v_mul_f32 v20, v18, v18
                v_mul_f32 v21, v19, v19
                v_mov_b32 v22, s46
                v_mov_b32 v23, s46
                v_fma_f32 v22, v20, s47, v22
                v_fma_f32 v23, v21, s47, v23
                v_mul_f32 v22, v22, v18
                v_mul_f32 v23, v23, v19
                v_exp_f32 v22, v22
                v_exp_f32 v23, v23
                v_lshlrev_b32 v24, 16, v17
                v_and_b32 v25, 0xffff0000, v17
                v_add_f32 v22, 1.0, v22
                v_add_f32 v23, 1.0, v23
                v_rcp_f32 v22, v22
                v_rcp_f32 v23, v23
                s_nop 0
                v_mul_f32 v22, v22, v18
                v_mul_f32 v23, v23, v19
                v_cvt_pk_bf16_f32 v16, v22, v23
                v_lshlrev_b32 v18, 16, v16
                v_and_b32 v19, 0xffff0000, v16
                v_mul_f32 v18, v18, v24
                v_mul_f32 v19, v19, v25
                v_cvt_pk_bf16_f32 v{o+p}, v18, v19
                """)
            a(f"buffer_store_dwordx2 v[{o}:{o+1}], v1, s[28:31], s{12+(rb>>1)} offen offset:{nb*1024+(rb&1)*256}")
    TS(a, 19)
    a("s_waitcnt vmcnt(0)")
    TS(a, 20)
    TSDUMP(a, G, 21, "g")
    a("s_endpgm")

def conv2(a, G):
    KH, KL, UB = 0, 7680, 15360
    CB = 32768
    a(f"""
    s_sub_u32 s10, s2, {NG}
    s_lshl_b32 s10, s10, 1          ; channel c0
    s_lshl_b32 s11, s10, 12
    """)
    srd_dyn(a, 20, 16, 17, G.XNT, 11, 8192)
    srd_dyn(a, 24, 16, 17, G.KHI, 11, 8192)
    srd_dyn(a, 28, 16, 17, G.KLO, 11, 8192)
    srd_dyn(a, 32, 16, 17, G.AT, 11, 8192)
    G.srd(a, 36, 8, 9, 0, 1024)
    LR = [dict(U=32, Um=36, KHr=24, KLr=28, D=14, Ue=8), dict(U=128, Um=132, KHr=136, KLr=140, D=134, Ue=144)]
    a(f"""
    v_lshlrev_b32 v1, 4, v15
    v_add_u32 v2, -8, v1
    s_lshl_b32 s12, s10, 1
    v_mov_b32 v3, s12
    s_mov_b32 s43, 0
    s_mov_b32 s44, 4096
    v_and_b32 v5, 31, v0
    v_lshrrev_b32 v6, 5, v0
    s_lshr_b32 s13, s3, 1
    s_lshl_b32 s13, s13, 11
    s_and_b32 s14, s3, 1
    s_lshl_b32 s14, s14, 5          ; 2(w&1)*8*2 bytes
    s_add_u32 s13, s13, s14
    v_lshlrev_b32 v13, 6, v5
    v_lshl_add_u32 v13, v6, 3, v13
    v_add_u32 v13, s13, v13
    """)
    for c in range(2):
        R = LR[c]
        a(f"""
        buffer_load_dwordx4 v[{R['U']}:{R['U']+3}], v1, s[20:23], s{43+c} offen
        buffer_load_dwordx2 v[{R['Um']}:{R['Um']+1}], v2, s[20:23], s{43+c} offen
        buffer_load_dwordx4 v[{R['KHr']}:{R['KHr']+3}], v1, s[24:27], s{43+c} offen
        buffer_load_dwordx4 v[{R['KLr']}:{R['KLr']+3}], v1, s[28:31], s{43+c} offen
        """)
    for c in range(2):
        R = LR[c]
        a(f"""
        buffer_load_ushort v{R['D']}, v3, s[36:39], 0 offen offset:{2*c}
        buffer_load_dwordx2 v[{R['Ue']}:{R['Ue']+1}], v13, s[20:23], s{43+c} offen
        buffer_load_dwordx2 v[{R['Ue']+2}:{R['Ue']+3}], v13, s[20:23], s{43+c} offen offset:16
        """)
    a(f"""
    v_mov_b32 v40, 0
    v_mov_b32 v41, 0
    v_mov_b32 v42, 0
    v_mov_b32 v43, 0
    v_cmp_gt_u32 vcc, 160, v15
    s_and_saveexec_b64 s[40:41], vcc
    ds_write_b128 v1, v[40:43] offset:{KH}
    ds_write_b128 v1, v[40:43] offset:{KL}
    ds_write_b128 v1, v[40:43] offset:{CB+KH}
    ds_write_b128 v1, v[40:43] offset:{CB+KL}
    s_mov_b64 exec, s[40:41]
    v_lshrrev_b32 v7, 2, v15
    v_mul_u32_u24 v7, 4160, v7
    v_and_b32 v12, 3, v15
    v_lshl_add_u32 v7, v12, 4, v7
    v_cmp_gt_u32 vcc, 16, v15
    s_and_saveexec_b64 s[40:41], vcc
    ds_write_b128 v7, v[40:43] offset:{UB+4096}
    ds_write_b128 v7, v[40:43] offset:{CB+UB+4096}
    s_mov_b64 exec, s[40:41]
    v_lshrrev_b32 v7, 2, v15
    v_mul_u32_u24 v7, 80, v7
    v_lshl_add_u32 v7, v12, 4, v7
    v_sub_u32 v12, 255, v15
    v_lshlrev_b32 v12, 4, v12
    s_mov_b32 s42, 0xffff
    v_sub_u32 v3, 3, v5
    v_and_b32 v3, 3, v3             ; r
    v_mul_u32_u24 v1, 4160, v3
    v_add_u32 v3, v3, v5            ; b+r
    v_lshlrev_b32 v3, 1, v3
    v_sub_u32 v1, v1, v3
    v_lshl_add_u32 v1, v6, 4, v1
    s_lshl_b32 s14, s3, 6
    s_sub_u32 s15, {UB+4094-3840}, s14
    v_add_u32 v1, s15, v1
    ; B base: (l&31)*80 + (l>>5)*16 - w*80
    v_mul_u32_u24 v2, 80, v5
    v_lshl_add_u32 v2, v6, 4, v2
    s_sub_u32 s14, 3, s3
    s_mul_i32 s14, s14, 80
    v_add_u32 v2, s14, v2
    v_cmp_eq_u32 vcc, 0, v15
    """)
    for c in range(2):
        R = LR[c]
        a(f"s_waitcnt vmcnt({6+4*(1-c)})")
        if c == 1:
            a(f"v_cndmask_b32 v{R['Um']}, v{R['Um']}, 0, vcc") if False else None
            a(f"v_cndmask_b32_e64 v{R['Um']}, v{R['Um']}, 0, vcc")
            a(f"v_cndmask_b32_e64 v{R['Um']+1}, v{R['Um']+1}, 0, vcc")
        a(f"ds_write_b128 v7, v[{R['KHr']}:{R['KHr']+3}] offset:{c*CB+KH+32*80}")
        a(f"ds_write_b128 v7, v[{R['KLr']}:{R['KLr']+3}] offset:{c*CB+KL+32*80}")
        S = {-2: R['Um'], -1: R['Um']+1, 0: R['U'], 1: R['U']+1, 2: R['U']+2, 3: R['U']+3}
        for r in range(4):
            d = 44 + 4*r
            for j in range(4):
                if r % 2 == 0:
                    p = 3 - r//2 - j
                    a(f"v_alignbit_b32 v{d+j}, v{S[p]}, v{S[p]}, 16")
                else:
                    p = (7-r)//2 - j
                    a(f"v_bfi_b32 v{d+j}, s42, v{S[p]}, v{S[p-1]}")
            a(f"ds_write_b128 v12, v[{d}:{d+3}] offset:{c*CB+UB+r*4160}")
    for r in range(64): a(f"v_mov_b32 v{64+r}, 0")
    a("s_waitcnt lgkmcnt(0)")
    a("s_barrier")
    steps = [(c, i, ks) for c in range(2) for i in range(16) for ks in range(2)]
    def loads(n):
        c, i, ks = steps[n]
        af = 16 + (n % 2)*4; bf_ = 24 + (n % 2)*16
        off = c*CB + 64*(60-4*i) + 32*ks
        a(f"ds_read_b64 v[{af}:{af+1}], v1 offset:{off}")
        a(f"ds_read_b64 v[{af+2}:{af+3}], v1 offset:{off+8}")
        cnt = 2
        for blk in range(2):
            if blk == 0 and i >= 8: continue
            for hl in range(2):
                img = KH if hl == 0 else KL
                o = c*CB + img + (32+32*blk-4*i)*80 + 32*ks - 240
                r_ = bf_ + (blk*2+hl)*4
                a(f"ds_read_b128 v[{r_}:{r_+3}], v2 offset:{o}")
                cnt += 1
        return cnt
    loads(0)
    NST = len(steps)
    for n in range(NST):
        c, i, ks = steps[n]
        if n+1 < NST:
            cn = loads(n+1)
            a(f"s_waitcnt lgkmcnt({cn})")
        else:
            a("s_waitcnt lgkmcnt(0)")
        af = 16 + (n % 2)*4; bf_ = 24 + (n % 2)*16
        for hl in range(2):
            for blk in range(2):
                if blk == 0 and i >= 8: continue
                r_ = bf_ + (blk*2+hl)*4
                ac = 64 + c*32 + blk*16
                a(f"v_mfma_f32_32x32x16_bf16 v[{ac}:{ac+15}], v[{af}:{af+3}], v[{r_}:{r_+3}], v[{ac}:{ac+15}]")
    a("""
    s_nop 15
    s_barrier
    s_lshl_b32 s14, s3, 13
    v_lshlrev_b32 v1, 4, v0
    v_add_u32 v2, s14, v1
    """)
    for c in range(2):
        for qq in range(8):
            a(f"ds_write_b128 v2, v[{64+32*c+4*qq}:{67+32*c+4*qq}] offset:{c*CB+qq*1024}")
    a("""
    s_lshl_b32 s14, s3, 11
    v_add_u32 v1, s14, v1
    s_waitcnt lgkmcnt(0)
    s_barrier
    """)
    for c in range(2):
        for ww in range(4):
            for e in range(2):
                r_ = 64 + c*32 + (ww*2+e)*4
                a(f"ds_read_b128 v[{r_}:{r_+3}], v1 offset:{c*CB+ww*8192+e*1024}")
    a("s_waitcnt lgkmcnt(0) vmcnt(0)")
    for c in range(2):
        R = LR[c]
        a(f"v_lshlrev_b32 v{R['D']}, 16, v{R['D']}")
        for e in range(2):
            for j in range(4):
                r_ = 64 + c*32 + e*4 + j
                a(f"v_add_f32 v{r_}, v{r_}, v{r_+8}")
                a(f"v_add_f32 v{r_+16}, v{r_+16}, v{r_+24}")
                a(f"v_add_f32 v{r_}, v{r_}, v{r_+16}")
            y = 64 + c*32 + e*4
            o = 54 + 4*c + 2*e
            for p in range(2):
                uu = R['Ue'] + 2*e + p
                a(f"""
                v_cvt_pk_bf16_f32 v48, v{y+2*p}, v{y+2*p+1}
                v_lshlrev_b32 v49, 16, v48
                v_and_b32 v50, 0xffff0000, v48
                v_lshlrev_b32 v51, 16, v{uu}
                v_and_b32 v52, 0xffff0000, v{uu}
                v_mul_f32 v51, v51, v{R['D']}
                v_mul_f32 v52, v52, v{R['D']}
                v_cvt_pk_bf16_f32 v48, v51, v52
                v_lshlrev_b32 v51, 16, v48
                v_and_b32 v52, 0xffff0000, v48
                v_add_f32 v49, v49, v51
                v_add_f32 v50, v50, v52
                v_cvt_pk_bf16_f32 v{o+p}, v49, v50
                """)
            a(f"buffer_store_dwordx2 v[{o}:{o+1}], v13, s[32:35], s{43+c} offen offset:{16*e}")

def k1(a, G):
    G.header(a, "main_kernel")
    a(f"""
    s_cmp_ge_u32 s2, {NG+256}
    s_cbranch_scc1 L1_exit
    s_load_dwordx4 s[4:7], s[0:1], 64
    s_load_dwordx2 s[8:9], s[0:1], 48
    s_load_dwordx2 s[16:17], s[0:1], 104
    v_lshrrev_b32 v5, 6, v0
    v_mov_b32 v15, v0
    v_readfirstlane_b32 s3, v5      ; wave
    v_and_b32 v0, 63, v0
    s_waitcnt lgkmcnt(0)
    s_cmp_ge_u32 s2, {NG}
    s_cbranch_scc1 L1_conv
    """)
    gemm1(a, G)
    a("L1_conv:")
    conv2(a, G)
    a("""
    L1_exit:
    s_endpgm
    """)
```

```python
LDS2 = 65536
LAUNCH = f"; @launch kernel=out_kernel grid=(256,1,1) block=(256,1,1) lds={LDS2}"
NV = 128
def DESC(desc): return desc("out_kernel", NV+256, acc=NV)

def k2(a, G):
    G.header(a, "out_kernel")
    a("""
    s_cmp_ge_u32 s2, 256
    s_cbranch_scc1 L2_exit
    s_load_dwordx2 s[4:5], s[0:1], 0
    s_load_dwordx2 s[10:11], s[0:1], 88
    s_load_dwordx2 s[16:17], s[0:1], 104
    v_lshrrev_b32 v5, 6, v0
    v_and_b32 v0, 63, v0
    v_readfirstlane_b32 s3, v5      ; wave
    s_and_b32 s12, s2, 7
    s_bfe_u32 s13, s2, 0x20003
    s_lshl_b32 s13, s13, 3
    s_add_u32 s12, s12, s13         ; tt
    s_lshr_b32 s13, s2, 5           ; dt
    v_lshlrev_b32 v1, 4, v0         ; lane*16
    s_mul_i32 s14, s3, 28
    s_mul_i32 s40, s12, 224
    s_add_u32 s40, s40, s14
    s_lshl_b32 s40, s40, 10
    s_add_u32 s41, s40, 112*1024    ; A rb1
    s_mul_i32 s42, s13, 224
    s_add_u32 s42, s42, s14
    s_lshl_b32 s42, s42, 10         ; B cb0
    s_add_u32 s43, s42, 112*1024    ; B cb1
    s_waitcnt lgkmcnt(0)
    """)
    G.srd(a, 20, 16, 17, G.HB, G.HSZ)
    G.srd(a, 24, 16, 17, G.WF, 1792*1024)
    q = []
    def wait_for(tag):
        idx = max(i for i, t in enumerate(q) if t == tag)
        n = len(q) - 1 - idx
        assert n <= 63
        a(f"s_waitcnt vmcnt({n})")
    NS, PF, NSLOT = 28, 15, 16
    def slot(st, j): return (st % NSLOT)*16 + j*4
    def issue(st):
        if st % 4 == 0 and st > 0:
            for j in range(4): a(f"s_add_u32 s{40+j}, s{40+j}, 0x1000")
        for j in range(4):
            r = slot(st, j)
            a(f"buffer_load_dwordx4 a[{r}:{r+3}], v1, s[{20 if j < 2 else 24}:{23 if j < 2 else 27}], s{40+j} offen offset:{(st%4)*1024}")
            q.append(("st", st))
    for st in range(PF): issue(st)
    G.srd(a, 28, 16, 17, G.AT, G.SZ2M)
    G.srd(a, 32, 4, 5, 0, G.SZ2M)
    G.srd(a, 36, 10, 11, 0, G.SZ2M)
    a(f"""
    v_and_b32 v5, 31, v0
    v_lshrrev_b32 v6, 5, v0         ; g
    s_lshr_b32 s14, s3, 1           ; rb
    s_and_b32 s15, s3, 1            ; cb
    s_lshl_b32 s50, s12, 6
    s_lshl_b32 s14, s14, 5
    s_add_u32 s50, s50, s14
    s_lshl_b32 s51, s13, 6
    s_lshl_b32 s15, s15, 5
    s_add_u32 s51, s51, s15
    v_add_u32 v7, s51, v5           ; d
    v_lshl_add_u32 v8, v6, 2, s50   ; t = tbase+4g
    v_lshlrev_b32 v9, 12, v7
    v_lshl_add_u32 v9, v8, 1, v9
    v_lshlrev_b32 v10, 10, v8
    v_lshl_add_u32 v10, v7, 1, v10
    s_mov_b32 s60, 0
    s_mov_b32 s61, 8192
    s_mov_b32 s62, 16384
    s_mov_b32 s63, 24576
    """)
    AT_R, X_R = 96, 104
    ACC = 16
    def acc(rb, cb): return ACC + (rb*2+cb)*16
    for r in range(64): a(f"v_mov_b32 v{ACC+r}, 0")
    def epi_loads():
        for qq in range(4):
            a(f"buffer_load_dwordx2 v[{AT_R+2*qq}:{AT_R+2*qq+1}], v9, s[28:31], 0 offen offset:{16*qq}")
            q.append(("epi", 0))
        for qq in range(4):
            for e in range(4):
                a(f"buffer_load_ushort v{X_R+4*qq+e}, v10, s[32:35], s{60+qq} offen offset:{1024*e}")
                q.append(("epi", 0))
    for st in range(NS):
        wait_for(("st", st))
        for rb in range(2):
            for cb in range(2):
                c = acc(rb, cb); x = slot(st, rb); y = slot(st, 2+cb)
                a(f"v_mfma_f32_32x32x16_bf16 v[{c}:{c+15}], a[{x}:{x+3}], a[{y}:{y+3}], v[{c}:{c+15}]")
        if st + PF < NS: issue(st + PF)
        if st + PF == NS + 4: epi_loads()
    a("""
    s_lshl_b32 s44, s3, 14
    v_add_u32 v2, s44, v1
    s_lshl_b32 s45, s3, 12
    v_add_u32 v3, s45, v1
    s_nop 15
    """)
    for i in range(16):
        a(f"ds_write_b128 v2, v[{ACC+4*i}:{ACC+4*i+3}] offset:{i*1024}")
    a("""
    s_waitcnt lgkmcnt(0)
    s_barrier
    """)
    for ww in range(4):
        for qq in range(4):
            r = 16 + (ww*4+qq)*4
            a(f"ds_read_b128 v[{r}:{r+3}], v3 offset:{ww*16384 + qq*1024}")
    a("s_waitcnt vmcnt(0) lgkmcnt(0)")
    for qq in range(4):
        for e in range(4):
            r = 16 + qq*4 + e
            a(f"v_add_f32 v{r}, v{r}, v{r+16}")
            a(f"v_add_f32 v{r+32}, v{r+32}, v{r+48}")
            a(f"v_add_f32 v{r}, v{r}, v{r+32}")
        for p in range(2):
            r = 16 + qq*4 + 2*p
            at = AT_R + 2*qq + p
            x0 = X_R + 4*qq + 2*p
            o = 88 + (qq*2+p)
            a(f"""
            v_lshlrev_b32 v80, 16, v{at}
            v_and_b32 v81, 0xffff0000, v{at}
            v_lshlrev_b32 v82, 16, v{x0}
            v_lshlrev_b32 v83, 16, v{x0+1}
            v_add_f32 v80, v80, v82
            v_add_f32 v81, v81, v83
            v_cvt_pk_bf16_f32 v82, v{r}, v{r+1}
            v_cvt_pk_bf16_f32 v80, v80, v81
            v_lshlrev_b32 v84, 16, v82
            v_and_b32 v85, 0xffff0000, v82
            v_and_b32 v81, 0xffff0000, v80
            v_lshlrev_b32 v80, 16, v80
            v_add_f32 v80, v80, v84
            v_add_f32 v81, v81, v85
            v_cvt_pk_bf16_f32 v{o}, v80, v81
            buffer_store_short v{o}, v10, s[36:39], s{60+qq} offen offset:{1024*(2*p)}
            buffer_store_short_d16_hi v{o}, v10, s[36:39], s{60+qq} offen offset:{1024*(2*p+1)}
            """)
    a("""
    L2_exit:
    s_endpgm
    """)
```

```python
import sys, struct
OUT = "parallel_sum__ssm_conv_s4d__glu_gated_geglu__prompt.s"

class A:
    def __init__(self): self.l = []
    def __call__(self, s):
        for ln in s.strip("\n").split("\n"):
            self.l.append("    " + ln.strip() if not ln.strip().endswith(":") else ln.strip())
    def raw(self, s): self.l.append(s)
    def text(self): return "\n".join(self.l) + "\n"

def f32(x): return "0x%08x" % struct.unpack("<I", struct.pack("<f", x))[0]
import math
LOG2E = 1.4426950408889634

XN, XNT, KHI, KLO, HB, AT, WF = 0, 2<<20, 4<<20, 6<<20, 8<<20, 16<<20, 18<<20
SZ2M = 2<<20
HSZ = 2048*1792*2

def srd(a, s, lo, hi, off, size):
    if off:
        a(f"s_add_u32 s{s}, s{lo}, 0x{off:x}")
        a(f"s_addc_u32 s{s+1}, s{hi}, 0")
        a(f"s_and_b32 s{s+1}, s{s+1}, 0xffff")
    else:
        a(f"s_mov_b32 s{s}, s{lo}")
        a(f"s_and_b32 s{s+1}, s{hi}, 0xffff")
    a(f"s_mov_b32 s{s+2}, 0x{size:x}")
    a(f"s_mov_b32 s{s+3}, 0x20000")

def header(a, name):
    a.raw(f".globl {name}")
    a.raw(".p2align 8")
    a.raw(f".type {name},@function")
    a.raw(f"{name}:")

def desc(name, vgpr, sgpr=96, acc=None):
    if acc is None: acc = (vgpr + 3)//4*4
    return f""".p2align 6
.amdhsa_kernel {name}
  .amdhsa_next_free_vgpr {vgpr}
  .amdhsa_next_free_sgpr {sgpr}
  .amdhsa_accum_offset {acc}
  .amdhsa_group_segment_fixed_size 0
  .amdhsa_kernarg_size 112
  .amdhsa_user_sgpr_count 2
  .amdhsa_user_sgpr_kernarg_segment_ptr 1
  .amdhsa_system_sgpr_workgroup_id_x 1
.end_amdhsa_kernel
"""

def k0(a):
    header(a, "prep_kernel")
    a("""
    s_cmp_ge_u32 s2, 752
    s_cbranch_scc1 L0_exit
    s_load_dwordx4 s[4:7], s[0:1], 0
    s_load_dwordx4 s[8:11], s[0:1], 16
    s_load_dwordx4 s[12:15], s[0:1], 32
    s_load_dwordx2 s[16:17], s[0:1], 104
    s_waitcnt lgkmcnt(0)
    s_cmp_lt_u32 s2, 512
    s_cbranch_scc1 L0_kgen
    s_cmp_ge_u32 s2, 640
    s_cbranch_scc1 L0_swz
    """)
    srd(a, 20, 4, 5, 0, SZ2M)
    srd(a, 24, 16, 17, XN, SZ2M)
    srd(a, 28, 16, 17, XNT, SZ2M)
    a("""
    s_sub_u32 s3, s2, 512
    s_lshl_b32 s3, s3, 4            ; r0
    v_lshrrev_b32 v1, 4, v0
    v_and_b32 v2, 15, v0            ; j
    v_add_u32 v3, s3, v1            ; row
    v_lshlrev_b32 v3, 10, v3
    v_lshl_add_u32 v3, v2, 4, v3    ; voffset
    """)
    for c in range(4):
        a(f"buffer_load_dwordx4 v[{8+4*c}:{11+4*c}], v3, s[20:23], 0 offen offset:{c*256}")
    a("s_waitcnt vmcnt(0)")
    for i in range(16):
        a(f"v_lshlrev_b32 v{32+2*i}, 16, v{8+i}")
        a(f"v_and_b32 v{33+2*i}, 0xffff0000, v{8+i}")
    a("v_add_f32 v4, v32, v33")
    a("v_add_f32 v5, v34, v35")
    for i in range(36, 64, 2):
        a(f"v_add_f32 v4, v4, v{i}")
        a(f"v_add_f32 v5, v5, v{i+1}")
    a("v_add_f32 v4, v4, v5")
    def rowsum(r):
        for ror in (8, 4, 2, 1):
            a("s_nop 1")
            a(f"v_add_f32_dpp v{r}, v{r}, v{r} row_ror:{ror} row_mask:0xf bank_mask:0xf")
    rowsum(4)
    a(f"v_mul_f32 v4, {f32(1.0/512)}, v4")
    a("v_sub_f32 v6, v32, v4")
    a("v_mul_f32 v5, v6, v6")
    a("v_sub_f32 v6, v33, v4")
    a("v_mul_f32 v7, v6, v6")
    for i in range(34, 64, 2):
        a(f"v_sub_f32 v6, v{i}, v4")
        a(f"v_fma_f32 v5, v6, v6, v5")
        a(f"v_sub_f32 v64, v{i+1}, v4")
        a(f"v_fma_f32 v7, v64, v64, v7")
    a("v_add_f32 v5, v5, v7")
    rowsum(5)
    a(f"""
    v_mul_f32 v5, {f32(1.0/512)}, v5
    v_cvt_pk_bf16_f32 v4, v4, v5
    v_and_b32 v5, 0xffff0000, v4
    v_lshlrev_b32 v4, 16, v4
    v_add_f32 v5, {f32(1e-5)}, v5
    v_cvt_pk_bf16_f32 v5, v5, v5
    v_lshlrev_b32 v5, 16, v5
    v_sqrt_f32 v5, v5
    s_nop 0
    v_cvt_pk_bf16_f32 v5, v5, v5
    v_lshlrev_b32 v5, 16, v5         ; s (bf16)
    v_rcp_f32 v6, v5
    s_nop 0
    """)
    for i in range(16):
        x0, x1 = 32+2*i, 33+2*i
        a(f"""
        v_sub_f32 v{x0}, v{x0}, v4
        v_sub_f32 v{x1}, v{x1}, v4
        v_cvt_pk_bf16_f32 v7, v{x0}, v{x1}
        v_lshlrev_b32 v{x0}, 16, v7
        v_and_b32 v{x1}, 0xffff0000, v7
        v_mul_f32 v64, v{x0}, v6
        v_mul_f32 v65, v{x1}, v6
        v_fma_f32 v66, -v64, v5, v{x0}
        v_fma_f32 v67, -v65, v5, v{x1}
        v_fma_f32 v64, v66, v6, v64
        v_fma_f32 v65, v67, v6, v65
        v_cvt_pk_bf16_f32 v{8+i}, v64, v65
        """)
    a("""
    v_lshlrev_b32 v7, 10, v1
    v_lshl_add_u32 v7, v2, 4, v7
    v_lshrrev_b32 v64, 2, v2
    v_lshlrev_b32 v64, 10, v64
    v_and_b32 v65, 3, v2
    v_lshl_add_u32 v64, v65, 8, v64
    v_lshl_add_u32 v64, v1, 4, v64
    s_lshl_b32 s34, s3, 10          ; r0*1024 = rb*16384
    s_add_u32 s35, s34, 0x1000
    s_add_u32 s36, s34, 0x2000
    s_add_u32 s37, s34, 0x3000
    """)
    for c in range(4):
        a(f"buffer_store_dwordx4 v[{8+4*c}:{11+4*c}], v64, s[24:27], s{34+c} offen")
        a(f"ds_write_b128 v7, v[{8+4*c}:{11+4*c}] offset:{c*256}")
    a("""
    s_waitcnt lgkmcnt(0)
    s_barrier
    v_lshlrev_b32 v7, 2, v0
    """)
    for r in range(16):
        a(f"ds_read_b32 v{32+r}, v7 offset:{r*1024}")
    a("""
    s_mov_b32 s32, 0x05040100
    s_mov_b32 s33, 0x07060302
    v_lshlrev_b32 v3, 13, v0        ; d=2*tid -> d*4096
    s_lshl_b32 s3, s3, 1            ; r0*2 bytes
    v_add_u32 v3, s3, v3
    s_waitcnt lgkmcnt(0)
    """)
    for q in range(8):
        a(f"v_perm_b32 v{48+q}, v{33+2*q}, v{32+2*q}, s32")
        a(f"v_perm_b32 v{56+q}, v{33+2*q}, v{32+2*q}, s33")
    a("""
    buffer_store_dwordx4 v[48:51], v3, s[28:31], 0 offen
    buffer_store_dwordx4 v[52:55], v3, s[28:31], 0 offen offset:16
    v_add_u32 v3, 0x1000, v3
    buffer_store_dwordx4 v[56:59], v3, s[28:31], 0 offen
    buffer_store_dwordx4 v[60:63], v3, s[28:31], 0 offen offset:16
    s_endpgm
    """)
    a("L0_swz:")
    a("s_load_dwordx2 s[18:19], s[0:1], 80")
    srd(a, 24, 16, 17, WF, 1792*1024)
    a("s_waitcnt lgkmcnt(0)")
    srd(a, 20, 18, 19, 0, 1792*1024)
    a("""
    s_sub_u32 s3, s2, 640
    s_lshl_b32 s32, s3, 14
    v_lshlrev_b32 v1, 2, v0
    s_add_u32 s33, s32, 0x1000
    s_add_u32 s34, s32, 0x2000
    s_add_u32 s35, s32, 0x3000
    """)
    for e in range(16):
        a(f"buffer_load_dword v{8+e}, v1, s[20:23], s{32+e//4} offen offset:{(e%4)*1024}")
    a("""
    v_lshrrev_b32 v2, 4, v0
    v_mul_u32_u24 v2, 112*1024, v2
    v_and_b32 v3, 15, v0
    v_lshl_add_u32 v2, v3, 5, v2
    s_lshl_b32 s36, s3, 10
    s_mov_b32 s37, 0x05040100
    s_mov_b32 s38, 0x07060302
    """)
    for h in range(2):
        a(f"s_waitcnt vmcnt({8*(1-h)})")
        for p in range(4):
            a(f"v_perm_b32 v{32+8*h+p}, v{9+8*h+2*p}, v{8+8*h+2*p}, s37")
            a(f"v_perm_b32 v{36+8*h+p}, v{9+8*h+2*p}, v{8+8*h+2*p}, s38")
    for h in range(2):
        a(f"buffer_store_dwordx4 v[{32+8*h}:{35+8*h}], v2, s[24:27], s36 offen offset:{512*h}")
        a(f"buffer_store_dwordx4 v[{36+8*h}:{39+8*h}], v2, s[24:27], s36 offen offset:{512*h+16}")
    a("s_endpgm")
    PAR, TAB = 0, 2048
    a("L0_kgen:")
    srd(a, 20, 6, 7, 0, 131072)
    srd(a, 24, 8, 9, 0, 131072)
    srd(a, 28, 10, 11, 0, 131072)
    srd(a, 32, 12, 13, 0, 131072)
    srd(a, 36, 14, 15, 0, 1024)
    srd(a, 40, 16, 17, KHI, SZ2M)
    srd(a, 44, 16, 17, KLO, SZ2M)
    a(f"""
    v_and_b32 v1, 127, v0           ; n
    s_lshl_b32 s3, s2, 8            ; d*256 bytes
    v_lshl_add_u32 v2, v1, 1, s3
    s_lshl_b32 s48, s2, 1
    v_mov_b32 v3, s48
    buffer_load_ushort v4, v2, s[20:23], 0 offen
    buffer_load_ushort v5, v2, s[24:27], 0 offen
    buffer_load_ushort v6, v2, s[28:31], 0 offen
    buffer_load_ushort v7, v2, s[32:35], 0 offen
    buffer_load_ushort v8, v3, s[36:39], 0 offen
    v_lshrrev_b32 v9, 6, v0
    s_nop 0
    v_readfirstlane_b32 s49, v9     ; segment
    s_waitcnt vmcnt(0)
    v_lshlrev_b32 v4, 16, v4
    v_lshlrev_b32 v5, 16, v5
    v_lshlrev_b32 v6, 16, v6
    v_lshlrev_b32 v7, 16, v7
    v_lshlrev_b32 v8, 16, v8
    v_mul_f32 v4, {f32(LOG2E)}, v4
    v_mul_f32 v8, {f32(LOG2E)}, v8
    v_exp_f32 v4, v4
    v_exp_f32 v8, v8
    s_nop 0
    v_cvt_pk_bf16_f32 v4, v4, v8
    v_and_b32 v8, 0xffff0000, v4    ; dt
    v_lshlrev_b32 v4, 16, v4
    v_mul_f32 v4, v4, v8            ; Ar*dt
    v_mul_f32 v5, v5, v8            ; Ai*dt
    v_mul_f32 v6, v6, v8
    v_mul_f32 v7, v7, v8
    v_mul_f32 v4, {f32(-LOG2E)}, v4
    v_mul_f32 v5, {f32(1.0/(2*math.pi))}, v5
    v_add_f32 v6, v6, v6
    v_add_f32 v7, v7, v7
    v_lshlrev_b32 v9, 4, v1
    ds_write_b128 v9, v[4:7] offset:{PAR}
    v_and_b32 v10, 15, v0           ; i / j
    v_bfe_u32 v11, v0, 4, 2         ; q
    s_lshl_b32 s50, 1, s49          ; step
    s_lshl_b32 s51, 128, s49
    s_cmp_eq_u32 s49, 0
    s_cselect_b32 s51, 0, s51
    v_mul_lo_u32 v12, v10, s50      ; step*j
    v_lshlrev_b32 v13, 4, v12
    v_add_u32 v13, s51, v13         ; base+16*step*i
    v_cvt_f32_u32 v12, v12          ; P2
    v_cvt_f32_u32 v13, v13          ; P1
    v_lshlrev_b32 v14, 9, v11
    v_mov_b32 v16, 0
    v_mov_b32 v17, 0
    v_mov_b32 v18, 0
    v_mov_b32 v19, 0
    v_mov_b32 v20, 0
    v_mov_b32 v21, 0
    v_mov_b32 v22, 0
    v_mov_b32 v23, 0
    s_waitcnt lgkmcnt(0)
    s_barrier
    ds_read_b128 v[24:27], v14 offset:{PAR}
    """)
    for t in range(32):
        p = 24 + 4*(t & 1); pn = 24 + 4*((t+1) & 1)
        if t < 31:
            a(f"ds_read_b128 v[{pn}:{pn+3}], v14 offset:{PAR+(t+1)*16}")
            a("s_waitcnt lgkmcnt(1)")
        else:
            a("s_waitcnt lgkmcnt(0)")
        a(f"""
        v_mul_f32 v32, v{p}, v13
        v_mul_f32 v33, v{p}, v12
        v_mul_f32 v34, v{p+1}, v13
        v_mul_f32 v35, v{p+1}, v12
        v_exp_f32 v32, v32
        v_exp_f32 v33, v33
        v_sin_f32 v36, v34
        v_cos_f32 v37, v34
        v_sin_f32 v38, v35
        v_cos_f32 v39, v35
        v_mul_f32 v40, v{p+2}, v37
        v_mul_f32 v41, v{p+2}, v36
        v_fma_f32 v40, -v{p+3}, v36, v40
        v_fma_f32 v41, v{p+3}, v37, v41
        v_mul_f32 v42, v39, v33
        v_mul_f32 v43, v38, v33
        v_mul_f32 v40, v40, v32
        v_mul_f32 v41, -v41, v32
        s_nop 1
        v_mfma_f32_16x16x4_f32 v[16:19], v40, v42, v[16:19]
        v_mfma_f32_16x16x4_f32 v[20:23], v41, v43, v[20:23]
        """)
    a(f"""
    s_nop 15
    v_add_f32 v16, v16, v20
    v_add_f32 v17, v17, v21
    v_add_f32 v18, v18, v22
    v_add_f32 v19, v19, v23
    s_lshl_b32 s52, s49, 10
    v_lshlrev_b32 v9, 8, v11
    v_lshl_add_u32 v9, v10, 2, v9
    v_add_u32 v9, s52, v9
    ds_write_b32 v9, v16 offset:{TAB}
    ds_write_b32 v9, v17 offset:{TAB+64}
    ds_write_b32 v9, v18 offset:{TAB+128}
    ds_write_b32 v9, v19 offset:{TAB+192}
    v_mov_b32 v1, 0
    v_cmp_le_u32 vcc, 32, v0
    s_nop 1
    v_addc_co_u32 v1, vcc, 0, v1, vcc
    v_cmp_le_u32 vcc, 64, v0
    s_nop 1
    v_addc_co_u32 v1, vcc, 0, v1, vcc
    v_cmp_le_u32 vcc, 128, v0
    s_nop 1
    v_addc_co_u32 v1, vcc, 0, v1, vcc     ; s
    v_lshlrev_b32 v2, v1, 1
    v_lshrrev_b32 v2, 1, v2
    v_add_u32 v2, -1, v2                  ; half-1
    v_lshlrev_b32 v3, 3, v0               ; j0
    v_lshlrev_b32 v4, 10, v1              ; s*1024
    v_cmp_eq_u32 vcc, 0, v1
    s_waitcnt lgkmcnt(0)
    s_barrier
    """)
    for i in range(8):
        a(f"""
        v_add_u32 v5, {i}, v3
        v_lshrrev_b32 v6, v1, v5
        v_and_b32 v6, 1, v6
        v_add3_u32 v6, v5, v2, v6
        v_lshrrev_b32 v6, v1, v6
        v_add_u32 v6, -128, v6
        v_cndmask_b32 v6, v6, v5, vcc
        v_lshl_add_u32 v6, v6, 2, v4
        ds_read_b32 v{24+i}, v6 offset:{TAB}
        """)
    a("""
    s_lshl_b32 s3, s2, 12
    v_lshl_add_u32 v7, v0, 4, s3
    s_waitcnt lgkmcnt(0)
    """)
    for i in range(4):
        k0_, k1_ = 24+2*i, 25+2*i
        a(f"""
        v_cvt_pk_bf16_f32 v{32+i}, v{k0_}, v{k1_}
        v_lshlrev_b32 v5, 16, v{32+i}
        v_and_b32 v6, 0xffff0000, v{32+i}
        v_sub_f32 v5, v{k0_}, v5
        v_sub_f32 v6, v{k1_}, v6
        v_cvt_pk_bf16_f32 v{36+i}, v5, v6
        """)
    a("""
    buffer_store_dwordx4 v[32:35], v7, s[40:43], 0 offen
    buffer_store_dwordx4 v[36:39], v7, s[44:47], 0 offen
    L0_exit:
    s_endpgm
    """)

def build(stages=3):
    a = A()
    launches = ["; @launch kernel=prep_kernel grid=(752,1,1) block=(256,1,1) lds=16384"]
    descs = [desc("prep_kernel", 72)]
    body = A()
    k0(body)
    if stages >= 2:
        import gen_k1
        launches.append(gen_k1.LAUNCH); descs.append(gen_k1.DESC(desc)); gen_k1.k1(body, sys.modules[__name__])
    if stages >= 3:
        import gen_k2
        launches.append(gen_k2.LAUNCH); descs.append(gen_k2.DESC(desc)); gen_k2.k2(body, sys.modules[__name__])
    txt = "\n".join(launches) + "\n"
    txt += '.amdgcn_target "amdgcn-amd-amdhsa--gfx950"\n.text\n'
    txt += body.text()
    txt += '.section .rodata,"a"\n' + "".join(descs)
    return txt

if __name__ == "__main__":
    st = int(sys.argv[1]) if len(sys.argv) > 1 else 3
    out = sys.argv[2] if len(sys.argv) > 2 else OUT
    open(out, "w").write(build(st))
    print("wrote", out)
```

```python
import math
LDS1 = 65536
NG = 224
LAUNCH = f"; @launch kernel=main_kernel grid=({NG+256},1,1) block=(256,1,1) lds={LDS1}"
NV = 160
def DESC(desc): return desc("main_kernel", 256, acc=NV)

def srd_dyn(a, s, lo, hi, off, sx, size):
    a(f"s_add_u32 s{s}, s{lo}, 0x{off:x}")
    a(f"s_addc_u32 s{s+1}, s{hi}, 0")
    a(f"s_add_u32 s{s}, s{s}, s{sx}")
    a(f"s_addc_u32 s{s+1}, s{s+1}, 0")
    a(f"s_and_b32 s{s+1}, s{s+1}, 0xffff")
    a(f"s_mov_b32 s{s+2}, 0x{size:x}")
    a(f"s_mov_b32 s{s+3}, 0x20000")

import os
TSON = os.environ.get("TS", "") != ""
TSWG = int(os.environ.get("TS", "0") or 0)
def TS(a, i):
    if not TSON: return
    a(f"s_memtime s[94:95]")
    a("s_waitcnt lgkmcnt(0)")
    a(f"s_mov_b32 s{64+i}, s94")
def TSDUMP(a, G, n, tag):
    if not TSON: return
    a(f"""
    s_cmp_lg_u32 s2, {TSWG}
    s_cbranch_scc1 Lts_{tag}
    s_cmp_lg_u32 s3, 0
    s_cbranch_scc1 Lts_{tag}
    s_load_dwordx2 s[92:93], s[0:1], 96
    s_waitcnt lgkmcnt(0)
    """)
    G.srd(a, 88, 92, 93, 0, 256)
    a("v_mov_b32 v1, 0")
    for i in range(n):
        a(f"v_mov_b32 v2, s{64+i}")
        a(f"buffer_store_dword v2, v1, s[88:91], 0 offen offset:{4*i}")
    a(f"Lts_{tag}:")

def TR(a, i):
    if not TSON: return
    a(f"s_memrealtime s[94:95]")
    a("s_waitcnt lgkmcnt(0)")
    a(f"s_mov_b32 s{64+i}, s94")
def gemm1(a, G):
    TS(a, 0)
    TR(a, 21)
    if os.environ.get("PRIO"): a(f"s_setprio {os.environ['PRIO']}")
    f32 = G.f32
    G.srd(a, 20, 16, 17, G.XN, G.SZ2M)
    G.srd(a, 28, 16, 17, G.HB, G.HSZ)
    a(f"""
    s_cmp_ge_u32 s3, 2
    s_cselect_b32 s24, s6, s4
    s_cselect_b32 s25, s7, s5
    s_and_b32 s25, s25, 0xffff
    s_mov_b32 s26, 0x1c0000
    s_mov_b32 s27, 0x20000
    ; x=g&7, q=g>>3 ; ct=(x&3)*7+q%7 ; rt=(x>>2)*4+q/7
    s_lshr_b32 s12, s2, 3
    s_mul_i32 s13, s12, 37
    s_lshr_b32 s13, s13, 8          ; q/7
    s_mul_i32 s14, s13, 7
    s_sub_u32 s14, s12, s14         ; q%7
    s_and_b32 s15, s2, 3
    s_mul_i32 s15, s15, 7
    s_add_u32 s10, s15, s14         ; ct
    s_bfe_u32 s15, s2, 0x10002
    s_lshl_b32 s15, s15, 2
    s_add_u32 s11, s15, s13         ; rt
    s_lshl_b32 s12, s11, 4
    s_lshl_b32 s13, s3, 2
    s_add_u32 s12, s12, s13
    s_lshl_b32 s12, s12, 14
    v_lshlrev_b32 v1, 4, v0
    v_add_u32 v1, s12, v1
    v_lshrrev_b32 v5, 3, v0         ; row8
    v_and_b32 v6, 7, v0             ; c'
    v_and_b32 v7, 2, v5             ; ((row8>>1)&1)*2
    v_xor_b32 v6, v6, v7
    v_mul_u32_u24 v2, 3584, v5
    s_lshl_b32 s13, s10, 7
    v_add_u32 v2, s13, v2
    v_xor_b32 v7, 4, v6
    v_lshl_add_u32 v3, v7, 4, v2
    v_lshl_add_u32 v2, v6, 4, v2
    s_and_b32 s14, s3, 1
    s_mul_i32 s40, s14, {16*3584}
    s_lshr_b32 s15, s3, 1
    s_lshl_b32 s42, s15, 12
    s_lshl_b32 s14, s14, 11
    s_add_u32 s42, s42, s14
    v_lshrrev_b32 v6, 4, v0         ; gq
    v_bfe_u32 v7, v0, 2, 2          ; r
    v_lshl_add_u32 v5, v6, 3, v7    ; row
    v_lshlrev_b32 v5, 7, v5
    v_and_b32 v12, 3, v0
    v_lshl_add_u32 v5, v12, 3, v5
    v_lshrrev_b32 v7, 1, v7         ; (r>>1)&1
    v_and_b32 v12, 1, v6
    v_lshl_add_u32 v7, v12, 1, v7   ; g
    v_lshl_add_u32 v8, v7, 5, v5
    v_xor_b32 v9, 32, v8
    v_xor_b32 v10, 64, v8
    v_xor_b32 v11, 96, v8
    """)
    for rb in range(4):
        for h in range(4):
            a(f"s_mov_b32 s{48+rb*4+h}, {rb*16384+h*4096}")
    ACC = 32
    def acc(mat, nb, rb): return ACC + ((mat*4+nb)*4+rb)*4
    NS, NSL, XS = 16, 8, 6
    q = []
    def wait_for(tag):
        idx = max(i for i, t in enumerate(q) if t == tag)
        n = len(q) - 1 - idx
        assert n <= 63
        a(f"s_waitcnt vmcnt({n})")
    def xr(s, rb): return (s % XS)*16 + rb*4
    def issue_w(s):
        for i in range(2):
            a(f"s_add_u32 s41, s40, {(32*s+8*i)*3584}")
            a(f"s_add_u32 m0, s42, {(s%NSL)*8192+i*1024}")
            a("s_nop 0")
            a(f"buffer_load_dwordx4 v{2+i}, s[24:27], s41 offen lds")
            q.append(("w", s))
    def issue_x(s):
        for rb in range(4):
            r = xr(s, rb)
            a(f"buffer_load_dwordx4 a[{r}:{r+3}], v1, s[20:23], s{48+rb*4+(s>>2)} offen offset:{(s&3)*1024}")
            q.append(("x", s))
    WF = 16
    def trread(n):
        s, blk = n // 8, n % 8
        mat, nb = blk // 4, blk % 4
        b = WF + (n % 4)*4
        base = (s % NSL)*8192 + mat*4096
        a(f"ds_read_b64_tr_b16 v[{b}:{b+1}], v{8+nb} offset:{base}")
        a(f"ds_read_b64_tr_b16 v[{b+2}:{b+3}], v{8+nb} offset:{base+512}")
    pend = []
    for s in range(NS):
        pend += [("w", s, 0), ("w", s, 1)] + [("x", s, rb) for rb in range(4)]
    def issue1(t):
        k, s, i = t
        if k == "w":
            a(f"s_add_u32 s41, s40, {(32*s+8*i)*3584}")
            a(f"s_add_u32 m0, s42, {(s%NSL)*8192+i*1024}")
            a("s_nop 0")
            a(f"buffer_load_dwordx4 v{2+i}, s[24:27], s41 offen lds")
        else:
            r = xr(s, i)
            a(f"buffer_load_dwordx4 a[{r}:{r+3}], v1, s[20:23], s{48+i*4+(s>>2)} offen offset:{(s&3)*1024}")
        q.append((k, s))
    barr = -1
    def allowed(t, n):
        k, s, i = t
        if k == "w": return s < NSL or barr >= s-6
        return s < XS or n//8 >= s-5
    PRO = int(os.environ.get("PRO", "3"))
    for _ in range(6*PRO): issue1(pend.pop(0))
    TS(a, 1)
    PD = 3
    def do_barrier(s):
        nonlocal barr
        wait_for(("w", s))
        a("s_barrier")
        barr = s
    do_barrier(0)
    for n in range(PD): trread(n)
    for n in range(NS*8):
        s, blk = n // 8, n % 8
        if blk == 0 and s in (0, 4, 8, 12): TS(a, 2+s)
        if n+PD < NS*8:
            if (n+PD) % 8 == 0: do_barrier((n+PD)//8)
            trread(n+PD)
        if blk == 0: wait_for(("x", s))
        a(f"s_waitcnt lgkmcnt({2*min(PD, NS*8-1-n)})")
        b = WF + (n % 4)*4
        for rb in range(4):
            c = acc(blk//4, blk % 4, rb)
            cin = "0" if s == 0 else f"v[{c}:{c+3}]"
            a(f"v_mfma_f32_16x16x32_bf16 v[{c}:{c+3}], v[{b}:{b+3}], a[{xr(s,rb)}:{xr(s,rb)+3}], {cin}")
            if rb == 1 or rb == 3:
                if pend and allowed(pend[0], n) and (rb == 3 and pend[0][1] - s <= PRO):
                    issue1(pend.pop(0))
    assert not pend
    TS(a, 18)
    c0 = math.sqrt(2.0/math.pi)
    kA = -2.0*G.LOG2E*c0
    kB = kA*0.044715
    a(f"""
    v_and_b32 v5, 15, v0
    v_lshrrev_b32 v7, 1, v6
    v_lshl_add_u32 v5, v7, 5, v5
    v_lshlrev_b32 v1, 4, v5
    v_and_b32 v7, 1, v6
    v_lshl_add_u32 v1, v7, 3, v1
    s_lshl_b32 s12, s11, 3
    s_lshl_b32 s13, s3, 1
    s_add_u32 s12, s12, s13
    s_mul_i32 s12, s12, 112
    s_lshl_b32 s13, s10, 2
    s_add_u32 s12, s12, s13
    s_lshl_b32 s12, s12, 10
    s_add_u32 s13, s12, {112*1024}
    s_mov_b32 s46, {f32(kA)}
    s_mov_b32 s47, {f32(kB)}
    s_nop 7
    """)
    for nb in range(4):
        for rb in range(4):
            g = acc(0, nb, rb); u = acc(1, nb, rb)
            o = 8 + ((nb*4+rb) % 4)*2
            for p in range(2):
                g0, g1, u0, u1 = g+2*p, g+2*p+1, u+2*p, u+2*p+1
                a(f"""
                v_cvt_pk_bf16_f32 v16, v{g0}, v{g1}
                v_cvt_pk_bf16_f32 v17, v{u0}, v{u1}
                v_lshlrev_b32 v18, 16, v16
                v_and_b32 v19, 0xffff0000, v16
                v_mul_f32 v20, v18, v18
                v_mul_f32 v21, v19, v19
                v_mov_b32 v22, s46
                v_mov_b32 v23, s46
                v_fma_f32 v22, v20, s47, v22
                v_fma_f32 v23, v21, s47, v23
                v_mul_f32 v22, v22, v18
                v_mul_f32 v23, v23, v19
                v_exp_f32 v22, v22
                v_exp_f32 v23, v23
                v_lshlrev_b32 v24, 16, v17
                v_and_b32 v25, 0xffff0000, v17
                v_add_f32 v22, 1.0, v22
                v_add_f32 v23, 1.0, v23
                v_rcp_f32 v22, v22
                v_rcp_f32 v23, v23
                s_nop 0
                v_mul_f32 v22, v22, v18
                v_mul_f32 v23, v23, v19
                v_cvt_pk_bf16_f32 v16, v22, v23
                v_lshlrev_b32 v18, 16, v16
                v_and_b32 v19, 0xffff0000, v16
                v_mul_f32 v18, v18, v24
                v_mul_f32 v19, v19, v25
                v_cvt_pk_bf16_f32 v{o+p}, v18, v19
                """)
            a(f"buffer_store_dwordx2 v[{o}:{o+1}], v1, s[28:31], s{12+(rb>>1)} offen offset:{nb*1024+(rb&1)*256}")
    TS(a, 19)
    a("s_waitcnt vmcnt(0)")
    TS(a, 20)
    TR(a, 22)
    TSDUMP(a, G, 23, "g")
    a("s_endpgm")

def conv2(a, G):
    KH, KL, UB = 0, 7680, 15360
    CB = 32768
    TS(a, 0)
    TR(a, 6)
    if os.environ.get("CPRIO"): a(f"s_setprio {os.environ['CPRIO']}")
    a(f"""
    s_sub_u32 s10, s2, {NG}
    s_lshl_b32 s10, s10, 1          ; channel c0
    s_lshl_b32 s11, s10, 12
    """)
    srd_dyn(a, 20, 16, 17, G.XNT, 11, 8192)
    srd_dyn(a, 24, 16, 17, G.KHI, 11, 8192)
    srd_dyn(a, 28, 16, 17, G.KLO, 11, 8192)
    srd_dyn(a, 32, 16, 17, G.AT, 11, 8192)
    G.srd(a, 36, 8, 9, 0, 1024)
    LR = [dict(U=32, Um=36, KHr=24, KLr=28, D=14, Ue=8), dict(U=128, Um=132, KHr=136, KLr=140, D=134, Ue=144)]
    a(f"""
    v_lshlrev_b32 v1, 4, v15
    v_add_u32 v2, -8, v1
    s_lshl_b32 s12, s10, 1
    v_mov_b32 v3, s12
    s_mov_b32 s43, 0
    s_mov_b32 s44, 4096
    v_and_b32 v5, 31, v0
    v_lshrrev_b32 v6, 5, v0
    s_lshr_b32 s13, s3, 1
    s_lshl_b32 s13, s13, 11
    s_and_b32 s14, s3, 1
    s_lshl_b32 s14, s14, 5          ; 2(w&1)*8*2 bytes
    s_add_u32 s13, s13, s14
    v_lshlrev_b32 v13, 6, v5
    v_lshl_add_u32 v13, v6, 3, v13
    v_add_u32 v13, s13, v13
    """)
    for c in range(2):
        R = LR[c]
        a(f"""
        buffer_load_dwordx4 v[{R['U']}:{R['U']+3}], v1, s[20:23], s{43+c} offen
        buffer_load_dwordx2 v[{R['Um']}:{R['Um']+1}], v2, s[20:23], s{43+c} offen
        buffer_load_dwordx4 v[{R['KHr']}:{R['KHr']+3}], v1, s[24:27], s{43+c} offen
        buffer_load_dwordx4 v[{R['KLr']}:{R['KLr']+3}], v1, s[28:31], s{43+c} offen
        """)
    for c in range(2):
        R = LR[c]
        a(f"""
        buffer_load_ushort v{R['D']}, v3, s[36:39], 0 offen offset:{2*c}
        buffer_load_dwordx2 v[{R['Ue']}:{R['Ue']+1}], v13, s[20:23], s{43+c} offen
        buffer_load_dwordx2 v[{R['Ue']+2}:{R['Ue']+3}], v13, s[20:23], s{43+c} offen offset:16
        """)
    a(f"""
    v_mov_b32 v40, 0
    v_mov_b32 v41, 0
    v_mov_b32 v42, 0
    v_mov_b32 v43, 0
    v_cmp_gt_u32 vcc, 160, v15
    s_and_saveexec_b64 s[40:41], vcc
    ds_write_b128 v1, v[40:43] offset:{KH}
    ds_write_b128 v1, v[40:43] offset:{KL}
    ds_write_b128 v1, v[40:43] offset:{CB+KH}
    ds_write_b128 v1, v[40:43] offset:{CB+KL}
    s_mov_b64 exec, s[40:41]
    v_lshrrev_b32 v7, 2, v15
    v_mul_u32_u24 v7, 4160, v7
    v_and_b32 v12, 3, v15
    v_lshl_add_u32 v7, v12, 4, v7
    v_cmp_gt_u32 vcc, 16, v15
    s_and_saveexec_b64 s[40:41], vcc
    ds_write_b128 v7, v[40:43] offset:{UB+4096}
    ds_write_b128 v7, v[40:43] offset:{CB+UB+4096}
    s_mov_b64 exec, s[40:41]
    v_lshrrev_b32 v7, 2, v15
    v_mul_u32_u24 v7, 80, v7
    v_lshl_add_u32 v7, v12, 4, v7
    v_sub_u32 v12, 255, v15
    v_lshlrev_b32 v12, 4, v12
    s_mov_b32 s42, 0xffff
    v_sub_u32 v3, 3, v5
    v_and_b32 v3, 3, v3             ; r
    v_mul_u32_u24 v1, 4160, v3
    v_add_u32 v3, v3, v5            ; b+r
    v_lshlrev_b32 v3, 1, v3
    v_sub_u32 v1, v1, v3
    v_lshl_add_u32 v1, v6, 4, v1
    s_lshl_b32 s14, s3, 6
    s_sub_u32 s15, {UB+4094-3840}, s14
    v_add_u32 v1, s15, v1
    ; B base: (l&31)*80 + (l>>5)*16 - w*80
    v_mul_u32_u24 v2, 80, v5
    v_lshl_add_u32 v2, v6, 4, v2
    s_sub_u32 s14, 3, s3
    s_mul_i32 s14, s14, 80
    v_add_u32 v2, s14, v2
    v_cmp_eq_u32 vcc, 0, v15
    """)
    for c in range(2):
        R = LR[c]
        a(f"s_waitcnt vmcnt({6+4*(1-c)})")
        if c == 1:
            a(f"v_cndmask_b32 v{R['Um']}, v{R['Um']}, 0, vcc") if False else None
            a(f"v_cndmask_b32_e64 v{R['Um']}, v{R['Um']}, 0, vcc")
            a(f"v_cndmask_b32_e64 v{R['Um']+1}, v{R['Um']+1}, 0, vcc")
        a(f"ds_write_b128 v7, v[{R['KHr']}:{R['KHr']+3}] offset:{c*CB+KH+32*80}")
        a(f"ds_write_b128 v7, v[{R['KLr']}:{R['KLr']+3}] offset:{c*CB+KL+32*80}")
        S = {-2: R['Um'], -1: R['Um']+1, 0: R['U'], 1: R['U']+1, 2: R['U']+2, 3: R['U']+3}
        for r in range(4):
            d = 44 + 4*r
            for j in range(4):
                if r % 2 == 0:
                    p = 3 - r//2 - j
                    a(f"v_alignbit_b32 v{d+j}, v{S[p]}, v{S[p]}, 16")
                else:
                    p = (7-r)//2 - j
                    a(f"v_bfi_b32 v{d+j}, s42, v{S[p]}, v{S[p-1]}")
            a(f"ds_write_b128 v12, v[{d}:{d+3}] offset:{c*CB+UB+r*4160}")
    for r in range(64): a(f"v_mov_b32 v{64+r}, 0")
    a("s_waitcnt lgkmcnt(0)")
    a("s_barrier")
    TS(a, 1)
    steps = [(c, i, ks) for c in range(2) for i in range(16) for ks in range(2)]
    def loads(n):
        c, i, ks = steps[n]
        af = 16 + (n % 2)*4; bf_ = 24 + (n % 2)*16
        off = c*CB + 64*(60-4*i) + 32*ks
        a(f"ds_read_b64 v[{af}:{af+1}], v1 offset:{off}")
        a(f"ds_read_b64 v[{af+2}:{af+3}], v1 offset:{off+8}")
        cnt = 2
        for blk in range(2):
            if blk == 0 and i >= 8: continue
            for hl in range(2):
                img = KH if hl == 0 else KL
                o = c*CB + img + (32+32*blk-4*i)*80 + 32*ks - 240
                r_ = bf_ + (blk*2+hl)*4
                a(f"ds_read_b128 v[{r_}:{r_+3}], v2 offset:{o}")
                cnt += 1
        return cnt
    loads(0)
    NST = len(steps)
    for n in range(NST):
        c, i, ks = steps[n]
        if n+1 < NST:
            cn = loads(n+1)
            a(f"s_waitcnt lgkmcnt({cn})")
        else:
            a("s_waitcnt lgkmcnt(0)")
        af = 16 + (n % 2)*4; bf_ = 24 + (n % 2)*16
        for hl in range(2):
            for blk in range(2):
                if blk == 0 and i >= 8: continue
                r_ = bf_ + (blk*2+hl)*4
                ac = 64 + c*32 + blk*16
                a(f"v_mfma_f32_32x32x16_bf16 v[{ac}:{ac+15}], v[{af}:{af+3}], v[{r_}:{r_+3}], v[{ac}:{ac+15}]")
    TS(a, 2)
    a("""
    s_nop 15
    s_barrier
    s_lshl_b32 s14, s3, 13
    v_lshlrev_b32 v1, 4, v0
    v_add_u32 v2, s14, v1
    """)
    for c in range(2):
        for qq in range(8):
            a(f"ds_write_b128 v2, v[{64+32*c+4*qq}:{67+32*c+4*qq}] offset:{c*CB+qq*1024}")
    a("""
    s_lshl_b32 s14, s3, 11
    v_add_u32 v1, s14, v1
    s_waitcnt lgkmcnt(0)
    s_barrier
    """)
    for c in range(2):
        for ww in range(4):
            for e in range(2):
                r_ = 64 + c*32 + (ww*2+e)*4
                a(f"ds_read_b128 v[{r_}:{r_+3}], v1 offset:{c*CB+ww*8192+e*1024}")
    a("s_waitcnt lgkmcnt(0) vmcnt(0)")
    for c in range(2):
        R = LR[c]
        a(f"v_lshlrev_b32 v{R['D']}, 16, v{R['D']}")
        for e in range(2):
            for j in range(4):
                r_ = 64 + c*32 + e*4 + j
                a(f"v_add_f32 v{r_}, v{r_}, v{r_+8}")
                a(f"v_add_f32 v{r_+16}, v{r_+16}, v{r_+24}")
                a(f"v_add_f32 v{r_}, v{r_}, v{r_+16}")
            y = 64 + c*32 + e*4
            o = 54 + 4*c + 2*e
            for p in range(2):
                uu = R['Ue'] + 2*e + p
                a(f"""
                v_cvt_pk_bf16_f32 v48, v{y+2*p}, v{y+2*p+1}
                v_lshlrev_b32 v49, 16, v48
                v_and_b32 v50, 0xffff0000, v48
                v_lshlrev_b32 v51, 16, v{uu}
                v_and_b32 v52, 0xffff0000, v{uu}
                v_mul_f32 v51, v51, v{R['D']}
                v_mul_f32 v52, v52, v{R['D']}
                v_cvt_pk_bf16_f32 v48, v51, v52
                v_lshlrev_b32 v51, 16, v48
                v_and_b32 v52, 0xffff0000, v48
                v_add_f32 v49, v49, v51
                v_add_f32 v50, v50, v52
                v_cvt_pk_bf16_f32 v{o+p}, v49, v50
                """)
            a(f"buffer_store_dwordx2 v[{o}:{o+1}], v13, s[32:35], s{43+c} offen offset:{16*e}")
    TS(a, 3)
    if TSON: a("s_waitcnt vmcnt(0)")
    TS(a, 4)
    TR(a, 7)
    TSDUMP(a, G, 8, "c")

def k1(a, G):
    G.header(a, "main_kernel")
    a(f"""
    s_cmp_ge_u32 s2, {NG+256}
    s_cbranch_scc1 L1_exit
    s_load_dwordx4 s[4:7], s[0:1], 64
    s_load_dwordx2 s[8:9], s[0:1], 48
    s_load_dwordx2 s[16:17], s[0:1], 104
    v_lshrrev_b32 v5, 6, v0
    v_mov_b32 v15, v0
    v_readfirstlane_b32 s3, v5      ; wave
    v_and_b32 v0, 63, v0
    s_waitcnt lgkmcnt(0)
    s_cmp_ge_u32 s2, {NG}
    s_cbranch_scc1 L1_conv
    """)
    gemm1(a, G)
    a("L1_conv:")
    if os.environ.get("NOCONV"): a("s_endpgm")
    conv2(a, G)
    a("""
    L1_exit:
    s_endpgm
    """)
```

```python
import sys, struct
OUT = "parallel_sum__ssm_conv_s4d__glu_gated_geglu__prompt.s"

class A:
    def __init__(self): self.l = []
    def __call__(self, s):
        for ln in s.strip("\n").split("\n"):
            self.l.append("    " + ln.strip() if not ln.strip().endswith(":") else ln.strip())
    def raw(self, s): self.l.append(s)
    def text(self): return "\n".join(self.l) + "\n"

def f32(x): return "0x%08x" % struct.unpack("<I", struct.pack("<f", x))[0]
import math
LOG2E = 1.4426950408889634

XN, XNT, KHI, KLO, HB, AT, WF = 0, 2<<20, 4<<20, 6<<20, 8<<20, 16<<20, 18<<20
SZ2M = 2<<20
HSZ = 2048*1792*2

def srd(a, s, lo, hi, off, size):
    if off:
        a(f"s_add_u32 s{s}, s{lo}, 0x{off:x}")
        a(f"s_addc_u32 s{s+1}, s{hi}, 0")
        a(f"s_and_b32 s{s+1}, s{s+1}, 0xffff")
    else:
        a(f"s_mov_b32 s{s}, s{lo}")
        a(f"s_and_b32 s{s+1}, s{hi}, 0xffff")
    a(f"s_mov_b32 s{s+2}, 0x{size:x}")
    a(f"s_mov_b32 s{s+3}, 0x20000")

def header(a, name):
    a.raw(f".globl {name}")
    a.raw(".p2align 8")
    a.raw(f".type {name},@function")
    a.raw(f"{name}:")

def desc(name, vgpr, sgpr=96, acc=None):
    if acc is None: acc = (vgpr + 3)//4*4
    return f""".p2align 6
.amdhsa_kernel {name}
  .amdhsa_next_free_vgpr {vgpr}
  .amdhsa_next_free_sgpr {sgpr}
  .amdhsa_accum_offset {acc}
  .amdhsa_group_segment_fixed_size 0
  .amdhsa_kernarg_size 112
  .amdhsa_user_sgpr_count 2
  .amdhsa_user_sgpr_kernarg_segment_ptr 1
  .amdhsa_system_sgpr_workgroup_id_x 1
.end_amdhsa_kernel
"""

def k0(a):
    header(a, "prep_kernel")
    a("""
    s_cmp_ge_u32 s2, 496
    s_cbranch_scc1 L0_exit
    s_load_dwordx4 s[4:7], s[0:1], 0
    s_load_dwordx4 s[8:11], s[0:1], 16
    s_load_dwordx4 s[12:15], s[0:1], 32
    s_load_dwordx2 s[16:17], s[0:1], 104
    s_waitcnt lgkmcnt(0)
    s_cmp_lt_u32 s2, 256
    s_cbranch_scc1 L0_kgen
    s_sub_u32 s2, s2, 256
    s_cmp_ge_u32 s2, 128
    s_cbranch_scc1 L0_swz
    """)
    srd(a, 20, 4, 5, 0, SZ2M)
    srd(a, 24, 16, 17, XN, SZ2M)
    srd(a, 28, 16, 17, XNT, SZ2M)
    a("""
    s_lshl_b32 s3, s2, 4            ; r0
    v_lshrrev_b32 v1, 4, v0
    v_and_b32 v2, 15, v0            ; j
    v_add_u32 v3, s3, v1            ; row
    v_lshlrev_b32 v3, 10, v3
    v_lshl_add_u32 v3, v2, 4, v3    ; voffset
    """)
    for c in range(4):
        a(f"buffer_load_dwordx4 v[{8+4*c}:{11+4*c}], v3, s[20:23], 0 offen offset:{c*256}")
    a("s_waitcnt vmcnt(0)")
    for i in range(16):
        a(f"v_lshlrev_b32 v{32+2*i}, 16, v{8+i}")
        a(f"v_and_b32 v{33+2*i}, 0xffff0000, v{8+i}")
    a("v_add_f32 v4, v32, v33")
    a("v_add_f32 v5, v34, v35")
    for i in range(36, 64, 2):
        a(f"v_add_f32 v4, v4, v{i}")
        a(f"v_add_f32 v5, v5, v{i+1}")
    a("v_add_f32 v4, v4, v5")
    def rowsum(r):
        for ror in (8, 4, 2, 1):
            a("s_nop 1")
            a(f"v_add_f32_dpp v{r}, v{r}, v{r} row_ror:{ror} row_mask:0xf bank_mask:0xf")
    rowsum(4)
    a(f"v_mul_f32 v4, {f32(1.0/512)}, v4")
    a("v_sub_f32 v6, v32, v4")
    a("v_mul_f32 v5, v6, v6")
    a("v_sub_f32 v6, v33, v4")
    a("v_mul_f32 v7, v6, v6")
    for i in range(34, 64, 2):
        a(f"v_sub_f32 v6, v{i}, v4")
        a(f"v_fma_f32 v5, v6, v6, v5")
        a(f"v_sub_f32 v64, v{i+1}, v4")
        a(f"v_fma_f32 v7, v64, v64, v7")
    a("v_add_f32 v5, v5, v7")
    rowsum(5)
    a(f"""
    v_mul_f32 v5, {f32(1.0/512)}, v5
    v_cvt_pk_bf16_f32 v4, v4, v5
    v_and_b32 v5, 0xffff0000, v4
    v_lshlrev_b32 v4, 16, v4
    v_add_f32 v5, {f32(1e-5)}, v5
    v_cvt_pk_bf16_f32 v5, v5, v5
    v_lshlrev_b32 v5, 16, v5
    v_sqrt_f32 v5, v5
    s_nop 0
    v_cvt_pk_bf16_f32 v5, v5, v5
    v_lshlrev_b32 v5, 16, v5         ; s (bf16)
    v_rcp_f32 v6, v5
    s_nop 0
    """)
    for i in range(16):
        x0, x1 = 32+2*i, 33+2*i
        a(f"""
        v_sub_f32 v{x0}, v{x0}, v4
        v_sub_f32 v{x1}, v{x1}, v4
        v_cvt_pk_bf16_f32 v7, v{x0}, v{x1}
        v_lshlrev_b32 v{x0}, 16, v7
        v_and_b32 v{x1}, 0xffff0000, v7
        v_mul_f32 v64, v{x0}, v6
        v_mul_f32 v65, v{x1}, v6
        v_fma_f32 v66, -v64, v5, v{x0}
        v_fma_f32 v67, -v65, v5, v{x1}
        v_fma_f32 v64, v66, v6, v64
        v_fma_f32 v65, v67, v6, v65
        v_cvt_pk_bf16_f32 v{8+i}, v64, v65
        """)
    a("""
    v_lshlrev_b32 v7, 10, v1
    v_lshl_add_u32 v7, v2, 4, v7
    v_lshrrev_b32 v64, 2, v2
    v_lshlrev_b32 v64, 10, v64
    v_and_b32 v65, 3, v2
    v_lshl_add_u32 v64, v65, 8, v64
    v_lshl_add_u32 v64, v1, 4, v64
    s_lshl_b32 s34, s3, 10          ; r0*1024 = rb*16384
    s_add_u32 s35, s34, 0x1000
    s_add_u32 s36, s34, 0x2000
    s_add_u32 s37, s34, 0x3000
    """)
    for c in range(4):
        a(f"buffer_store_dwordx4 v[{8+4*c}:{11+4*c}], v64, s[24:27], s{34+c} offen")
        a(f"ds_write_b128 v7, v[{8+4*c}:{11+4*c}] offset:{c*256}")
    a("""
    s_waitcnt lgkmcnt(0)
    s_barrier
    v_lshlrev_b32 v7, 2, v0
    """)
    for r in range(16):
        a(f"ds_read_b32 v{32+r}, v7 offset:{r*1024}")
    a("""
    s_mov_b32 s32, 0x05040100
    s_mov_b32 s33, 0x07060302
    v_lshlrev_b32 v3, 13, v0        ; d=2*tid -> d*4096
    s_lshl_b32 s3, s3, 1            ; r0*2 bytes
    v_add_u32 v3, s3, v3
    s_waitcnt lgkmcnt(0)
    """)
    for q in range(8):
        a(f"v_perm_b32 v{48+q}, v{33+2*q}, v{32+2*q}, s32")
        a(f"v_perm_b32 v{56+q}, v{33+2*q}, v{32+2*q}, s33")
    a("""
    buffer_store_dwordx4 v[48:51], v3, s[28:31], 0 offen
    buffer_store_dwordx4 v[52:55], v3, s[28:31], 0 offen offset:16
    v_add_u32 v3, 0x1000, v3
    buffer_store_dwordx4 v[56:59], v3, s[28:31], 0 offen
    buffer_store_dwordx4 v[60:63], v3, s[28:31], 0 offen offset:16
    s_endpgm
    """)
    a("L0_swz:")
    a("s_load_dwordx2 s[18:19], s[0:1], 80")
    srd(a, 24, 16, 17, WF, 1792*1024)
    a("s_waitcnt lgkmcnt(0)")
    srd(a, 20, 18, 19, 0, 1792*1024)
    a("""
    s_sub_u32 s3, s2, 128
    s_lshl_b32 s32, s3, 14
    v_lshlrev_b32 v1, 2, v0
    s_add_u32 s33, s32, 0x1000
    s_add_u32 s34, s32, 0x2000
    s_add_u32 s35, s32, 0x3000
    """)
    for e in range(16):
        a(f"buffer_load_dword v{8+e}, v1, s[20:23], s{32+e//4} offen offset:{(e%4)*1024}")
    a("""
    v_lshrrev_b32 v2, 4, v0
    v_mul_u32_u24 v2, 112*1024, v2
    v_and_b32 v3, 15, v0
    v_lshl_add_u32 v2, v3, 5, v2
    s_lshl_b32 s36, s3, 10
    s_mov_b32 s37, 0x05040100
    s_mov_b32 s38, 0x07060302
    """)
    for h in range(2):
        a(f"s_waitcnt vmcnt({8*(1-h)})")
        for p in range(4):
            a(f"v_perm_b32 v{32+8*h+p}, v{9+8*h+2*p}, v{8+8*h+2*p}, s37")
            a(f"v_perm_b32 v{36+8*h+p}, v{9+8*h+2*p}, v{8+8*h+2*p}, s38")
    for h in range(2):
        a(f"buffer_store_dwordx4 v[{32+8*h}:{35+8*h}], v2, s[24:27], s36 offen offset:{512*h}")
        a(f"buffer_store_dwordx4 v[{36+8*h}:{39+8*h}], v2, s[24:27], s36 offen offset:{512*h+16}")
    a("s_endpgm")
    kgen(a)
    a("""
    L0_exit:
    s_endpgm
    """)

def kgen(a):
    RS = 528
    WB = 16*RS
    TRS = 208
    a("L0_kgen:")
    import gen_k1
    TS = lambda i: gen_k1.TS(a, i)
    TS(0)
    gen_k1.TR(a, 6)
    srd(a, 24, 6, 7, 0, 131072)
    srd(a, 28, 8, 9, 0, 131072)
    srd(a, 48, 10, 11, 0, 131072)
    srd(a, 52, 12, 13, 0, 131072)
    srd(a, 56, 14, 15, 0, 1024)
    a(f"""
    v_mov_b32 v15, v0
    v_lshrrev_b32 v5, 6, v0
    s_lshl_b32 s12, s2, 9
    v_lshl_add_u32 v2, v15, 1, s12
    s_lshl_b32 s12, s2, 2
    v_lshrrev_b32 v3, 7, v15
    v_lshl_add_u32 v3, v3, 1, s12
    buffer_load_ushort v16, v2, s[24:27], 0 offen
    buffer_load_ushort v17, v2, s[28:31], 0 offen
    buffer_load_ushort v18, v2, s[48:51], 0 offen
    buffer_load_ushort v19, v2, s[52:55], 0 offen
    buffer_load_ushort v20, v3, s[56:59], 0 offen
    v_readfirstlane_b32 s3, v5      ; wave
    v_and_b32 v0, 63, v0
    v_lshlrev_b32 v1, 4, v15
    """)
    srd(a, 40, 16, 17, KHI, SZ2M)
    srd(a, 44, 16, 17, KLO, SZ2M)
    a(f"""
    s_mul_i32 s14, s3, {WB}
    v_lshl_add_u32 v2, v0, 3, s14
    v_and_b32 v4, 15, v0            ; r / j
    v_lshrrev_b32 v5, 4, v0         ; q
    v_mul_u32_u24 v3, {RS}, v4
    v_lshl_add_u32 v3, v5, 4, v3
    v_add_u32 v3, s14, v3
    v_mul_u32_u24 v60, {4*TRS}, v5
    v_lshl_add_u32 v60, v4, 2, v60
    v_add_u32 v60, s14, v60
    v_mov_b32 v6, 0
    v_cmp_le_u32 vcc, 32, v15
    s_nop 1
    v_addc_co_u32 v6, vcc, 0, v6, vcc
    v_cmp_le_u32 vcc, 64, v15
    s_nop 1
    v_addc_co_u32 v6, vcc, 0, v6, vcc
    v_cmp_le_u32 vcc, 128, v15
    s_nop 1
    v_addc_co_u32 v6, vcc, 0, v6, vcc     ; s
    v_lshlrev_b32 v7, v6, 1
    v_lshrrev_b32 v7, 1, v7
    v_add_u32 v7, -1, v7                  ; half-1
    v_lshlrev_b32 v8, 3, v15              ; l0
    v_lshlrev_b32 v9, 3, v6               ; 8s
    v_lshrrev_b32 v12, v6, 16             ; 16>>s
    v_cmp_eq_u32 vcc, 0, v6
    """)
    for e in range(8):
        a(f"""
        v_add_u32 v10, {e}, v8
        v_lshrrev_b32 v11, v6, v10
        v_and_b32 v11, 1, v11
        v_add3_u32 v11, v10, v7, v11
        v_lshrrev_b32 v11, v6, v11
        v_cndmask_b32 v11, v11, v10, vcc      ; m
        v_lshlrev_b32 v11, v6, v11            ; p
        v_lshrrev_b32 v10, 8, v11
        v_mad_u32_u24 v10, v10, v12, v9       ; 8s + (p>>8)*(16>>s)
        v_and_b32 v13, 15, v11
        v_lshrrev_b32 v13, v6, v13
        v_add_u32 v10, v10, v13               ; col
        v_bfe_u32 v11, v11, 4, 4              ; row
        v_mul_u32_u24 v11, {TRS}, v11
        v_lshl_add_u32 v{52+e}, v10, 2, v11
        """)
    a("s_waitcnt vmcnt(0)")
    TS(1)
    a(f"""
    v_lshlrev_b32 v16, 16, v16
    v_lshlrev_b32 v17, 16, v17
    v_lshlrev_b32 v18, 16, v18
    v_lshlrev_b32 v19, 16, v19
    v_lshlrev_b32 v20, 16, v20
    v_mul_f32 v16, {f32(LOG2E)}, v16
    v_mul_f32 v20, {f32(LOG2E)}, v20
    v_exp_f32 v16, v16
    v_exp_f32 v20, v20
    s_nop 0
    v_cvt_pk_bf16_f32 v16, v16, v20
    v_and_b32 v20, 0xffff0000, v16    ; dt
    v_lshlrev_b32 v16, 16, v16
    v_mul_f32 v16, v16, v20
    v_mul_f32 v17, v17, v20
    v_mul_f32 v18, v18, v20
    v_mul_f32 v19, v19, v20
    v_mul_f32 v16, {f32(-LOG2E)}, v16
    v_mul_f32 v17, {f32(1.0/(2*math.pi))}, v17
    v_add_f32 v18, v18, v18
    v_mul_f32 v19, -2.0, v19
    """)
    regs = {"C": 18}
    nxt = [184]
    def R(name):
        if name not in regs:
            regs[name] = nxt[0]; nxt[0] += 2
            assert nxt[0] <= 250
        return regs[name]
    def pr(r): return f"v[{r}:{r+1}]"
    anch = [("W16", 16, 1), ("W64", 64, 1), ("W128", 128, 1), ("Z1", 1, 0), ("Z4", 4, 0), ("Z8", 8, 0), ("Z256", 256, 0), ("Z512", 512, 0), ("Z1024", 1024, 0)]
    for k, (nm, p, cj) in enumerate(anch):
        d = R(nm); t = 20 + 2*k
        a(f"v_mul_f32 v{t}, {f32(float(p))}, v16")
        a(f"v_mul_f32 v{t+1}, {f32(float(p))}, v17")
        a(f"v_exp_f32 v{t}, v{t}")
        a(f"v_cos_f32 v{d}, v{t+1}")
        a(f"v_sin_f32 v{d+1}, {'-' if cj else ''}v{t+1}")
    a("s_nop 0")
    for k, (nm, p, cj) in enumerate(anch):
        d = R(nm); t = 20 + 2*k
        a(f"v_pk_mul_f32 {pr(d)}, {pr(d)}, {pr(t)} op_sel:[0,0] op_sel_hi:[1,0]")
    tcnt = [0]
    def cmul(d, x, y):
        d, x, y = R(d), R(x), R(y)
        tmp = 40 + 2*(tcnt[0] % 2); tcnt[0] += 1
        a(f"v_pk_mul_f32 {pr(tmp)}, {pr(x)}, {pr(y)} op_sel:[1,1] op_sel_hi:[0,1]")
        a(f"v_pk_fma_f32 {pr(d)}, {pr(x)}, {pr(y)}, {pr(tmp)} op_sel:[0,0,0] op_sel_hi:[1,0,1] neg_lo:[0,0,1]")
    scnt = [0]
    nds = [0]
    def put(nm, row):
        v = R(nm)
        h = 44 + 2*(scnt[0] % 2); u = 48 + 2*(scnt[0] % 2); scnt[0] += 1
        a(f"""
        v_cvt_pk_bf16_f32 v{h}, v{v}, v{v+1}
        v_lshlrev_b32 v{u}, 16, v{h}
        v_and_b32 v{u+1}, 0xffff0000, v{h}
        v_pk_add_f32 {pr(u)}, {pr(v)}, {pr(u)} neg_lo:[0,1] neg_hi:[0,1]
        v_cvt_pk_bf16_f32 v{h+1}, v{u}, v{u+1}
        ds_write_b64 v2, {pr(h)} offset:{row*RS}
        """)
        nds[0] += 1
    A1, A2, BO, ACC = 64, 96, 128, 160
    cmul("w2", "W16", "W16"); cmul("w3", "w2", "W16"); cmul("W192", "W128", "W64")
    regs["w1"] = regs["W16"]
    for aa in range(4):
        if aa == 0: regs["CW"] = regs["C"]
        else:
            regs["CW"] = R("CWt"); cmul("CWt", "C", f"W{64*aa}")
        put("CW", 4*aa)
        for b in range(1, 4):
            nm = f"T{b%2}"
            cmul(nm, "CW", f"w{b}"); put(nm, 4*aa+b)
    for ks in range(8):
        a(f"ds_read_b128 v[{A1+4*ks}:{A1+4*ks+3}], v3 offset:{ks*64}")
        a(f"ds_read2_b32 v[{A2+4*ks}:{A2+4*ks+1}], v3 offset0:{ks*16+1} offset1:{ks*16}")
        a(f"ds_read2_b32 v[{A2+4*ks+2}:{A2+4*ks+3}], v3 offset0:{ks*16+3} offset1:{ks*16+2}")
        nds[0] += 3
    def breads():
        for ks in range(8):
            a(f"ds_read_b128 v[{BO+4*ks}:{BO+4*ks+3}], v3 offset:{ks*64}")
            nds[0] += 1
        return nds[0]
    def mfmas(tau, mark):
        n = nds[0] - mark
        assert n <= 15
        a(f"s_waitcnt lgkmcnt({n})")
        for ks in range(8):
            for h, A_ in enumerate((A1, A2)):
                c = ACC + tau*8 + h*4
                cin = "0" if ks == 0 else f"v[{c}:{c+3}]"
                a(f"v_mfma_f32_16x16x32_bf16 v[{c}:{c+3}], v[{A_+4*ks}:{A_+4*ks+3}], v[{BO+4*ks}:{BO+4*ks+3}], {cin}")
    a(f"v_mov_b32 v{R('Z0')}, 1.0")
    a(f"v_mov_b32 v{R('Z0')+1}, 0")
    cmul("Z2", "Z1", "Z1"); cmul("Z3", "Z2", "Z1"); cmul("Z12", "Z8", "Z4")
    for aa in range(4):
        put(f"Z{4*aa}", 4*aa)
        for b in range(1, 4):
            j = 4*aa+b
            if aa > 0:
                nm = f"Z{j}" if j % 2 == 0 else f"T{(j//2)%2}"
                cmul(nm, f"Z{4*aa}", f"Z{b}")
            else: nm = f"Z{j}"
            put(nm, j)
    mark = breads()
    cmul("Z768", "Z512", "Z256")
    vals = [("Z256", 2*j) for j in range(8)] + [("Z512", 4*r) for r in range(4)] + [("Z768", 4*r) for r in range(4)]
    for j, (bs, e) in enumerate(vals):
        if e == 0: nm = bs
        else:
            nm = f"T{j%2}"; cmul(nm, bs, f"Z{e}")
        put(nm, j)
        if j == 3: mfmas(0, mark)
    mark = breads()
    cmul("Z1280", "Z1024", "Z256"); cmul("Z1536", "Z1024", "Z512"); cmul("Z1792", "Z1024", "Z768"); cmul("Z2048", "Z1024", "Z1024")
    vals = [(f"Z{1024+256*c}", 8*e) for c in range(4) for e in range(2)] + [("Z2048", 0)]
    for j, (bs, e) in enumerate(vals):
        if e == 0: nm = bs
        else:
            nm = f"T{j%2}"; cmul(nm, bs, f"Z{e}")
        put(nm, j)
        if j == 3: mfmas(1, mark)
    mark = breads()
    mfmas(2, mark)
    TS(3)
    a("s_nop 7")
    for tau in range(3):
        for r in range(4):
            c = ACC + tau*8 + r
            a(f"v_add_f32 v{c}, v{c}, v{c+4}")
            a(f"ds_write_b32 v60, v{c} offset:{r*TRS+tau*64}")
    a(f"""
    s_lshl_b32 s12, s2, 13
    s_add_u32 s13, s12, 4096
    s_waitcnt lgkmcnt(0)
    s_barrier
    """)
    for c in range(2):
        for e in range(8):
            a(f"ds_read2st64_b32 v[{64+c*16+2*e}:{65+c*16+2*e}], v{52+e} offset0:{66*c} offset1:{66*c+33}")
    for c in range(2):
        a(f"s_waitcnt lgkmcnt({8*(1-c)})")
        for e in range(8):
            a(f"v_add_f32 v{64+c*16+2*e}, v{64+c*16+2*e}, v{65+c*16+2*e}")
        for i in range(4):
            k0_, k1_ = 64+c*16+4*i, 66+c*16+4*i
            a(f"""
            v_cvt_pk_bf16_f32 v{32+8*c+i}, v{k0_}, v{k1_}
            v_lshlrev_b32 v20, 16, v{32+8*c+i}
            v_and_b32 v21, 0xffff0000, v{32+8*c+i}
            v_sub_f32 v20, v{k0_}, v20
            v_sub_f32 v21, v{k1_}, v21
            v_cvt_pk_bf16_f32 v{36+8*c+i}, v20, v21
            """)
        a(f"buffer_store_dwordx4 v[{32+8*c}:{35+8*c}], v1, s[40:43], s{12+c} offen")
        a(f"buffer_store_dwordx4 v[{36+8*c}:{39+8*c}], v1, s[44:47], s{12+c} offen")
    TS(4)
    if gen_k1.TSON: a("s_waitcnt vmcnt(0)")
    TS(5)
    gen_k1.TR(a, 7)
    gen_k1.TSDUMP(a, sys.modules[__name__], 8, "k")
    a("s_endpgm")

def build(stages=3):
    a = A()
    launches = ["; @launch kernel=prep_kernel grid=(496,1,1) block=(256,1,1) lds=33792"]
    descs = [desc("prep_kernel", 252)]
    body = A()
    k0(body)
    if stages >= 2:
        import gen_k1
        launches.append(gen_k1.LAUNCH); descs.append(gen_k1.DESC(desc)); gen_k1.k1(body, sys.modules[__name__])
    if stages >= 3:
        import gen_k2
        launches.append(gen_k2.LAUNCH); descs.append(gen_k2.DESC(desc)); gen_k2.k2(body, sys.modules[__name__])
    txt = "\n".join(launches) + "\n"
    txt += '.amdgcn_target "amdgcn-amd-amdhsa--gfx950"\n.text\n'
    txt += body.text()
    txt += '.section .rodata,"a"\n' + "".join(descs)
    return txt

if __name__ == "__main__":
    st = int(sys.argv[1]) if len(sys.argv) > 1 else 3
    out = sys.argv[2] if len(sys.argv) > 2 else OUT
    open(out, "w").write(build(st))
    print("wrote", out)
```

```python
import sys, struct, math, os
OUT = "parallel_sum__ssm_conv_s4d__glu_gated_geglu__prompt.s"

class A:
    def __init__(self): self.l = []
    def __call__(self, s):
        for ln in s.strip("\n").split("\n"):
            self.l.append("    " + ln.strip() if not ln.strip().endswith(":") else ln.strip())
    def raw(self, s): self.l.append(s)
    def text(self): return "\n".join(self.l) + "\n"

def f32(x): return "0x%08x" % struct.unpack("<I", struct.pack("<f", x))[0]
LOG2E = 1.4426950408889634

XN, XNT, HB, AT, WF, FLG = 0, 2<<20, 8<<20, 16<<20, 18<<20, 20<<20
SZ2M = 2<<20
HSZ = 2048*1792*2
POLL_LIMIT = 60000

def srd(a, s, lo, hi, off, size):
    if off:
        a(f"s_add_u32 s{s}, s{lo}, 0x{off:x}")
        a(f"s_addc_u32 s{s+1}, s{hi}, 0")
        a(f"s_and_b32 s{s+1}, s{s+1}, 0xffff")
    else:
        a(f"s_mov_b32 s{s}, s{lo}")
        a(f"s_and_b32 s{s+1}, s{hi}, 0xffff")
    a(f"s_mov_b32 s{s+2}, 0x{size:x}")
    a(f"s_mov_b32 s{s+3}, 0x20000")

def srd_dyn(a, s, lo, hi, off, sx, size):
    a(f"s_add_u32 s{s}, s{lo}, 0x{off:x}")
    a(f"s_addc_u32 s{s+1}, s{hi}, 0")
    a(f"s_add_u32 s{s}, s{s}, s{sx}")
    a(f"s_addc_u32 s{s+1}, s{s+1}, 0")
    a(f"s_and_b32 s{s+1}, s{s+1}, 0xffff")
    a(f"s_mov_b32 s{s+2}, 0x{size:x}")
    a(f"s_mov_b32 s{s+3}, 0x20000")

def header(a, name):
    a.raw(f".globl {name}")
    a.raw(".p2align 8")
    a.raw(f".type {name},@function")
    a.raw(f"{name}:")

def desc(name, vgpr, sgpr=100, acc=None):
    if acc is None: acc = (vgpr + 3)//4*4
    return f""".p2align 6
.amdhsa_kernel {name}
  .amdhsa_next_free_vgpr {vgpr}
  .amdhsa_next_free_sgpr {sgpr}
  .amdhsa_accum_offset {acc}
  .amdhsa_group_segment_fixed_size 0
  .amdhsa_kernarg_size 112
  .amdhsa_user_sgpr_count 2
  .amdhsa_user_sgpr_kernarg_segment_ptr 1
  .amdhsa_system_sgpr_workgroup_id_x 1
.end_amdhsa_kernel
"""

TSON = os.environ.get("TS", "") != ""
TSWG = int(os.environ.get("TS", "0") or 0)
def TS(a, i):
    if not TSON: return
    a("s_memtime s[94:95]")
    a("s_waitcnt lgkmcnt(0)")
    a(f"s_mov_b32 s{64+i}, s94")
def TR(a, i):
    if not TSON: return
    a("s_memrealtime s[94:95]")
    a("s_waitcnt lgkmcnt(0)")
    a(f"s_mov_b32 s{64+i}, s94")
def TSDUMP(a, n, tag):
    if not TSON: return
    a(f"""
    s_cmp_lg_u32 s96, {TSWG}
    s_cbranch_scc1 Lts_{tag}
    s_cmp_lg_u32 s3, 0
    s_cbranch_scc1 Lts_{tag}
    s_load_dwordx2 s[92:93], s[0:1], 96
    s_waitcnt lgkmcnt(0)
    """)
    srd(a, 88, 92, 93, 0, 256)
    a("v_mov_b32 v1, 0")
    for i in range(n):
        a(f"v_mov_b32 v2, s{64+i}")
        a(f"buffer_store_dword v2, v1, s[88:91], 0 offen offset:{4*i}")
    a(f"Lts_{tag}:")

NK0 = 241
def k0(a):
    header(a, "prep_kernel")
    a(f"""
    s_cmp_ge_u32 s2, {NK0}
    s_cbranch_scc1 L0_exit
    s_load_dwordx2 s[4:5], s[0:1], 0
    s_load_dwordx2 s[18:19], s[0:1], 80
    s_load_dwordx2 s[16:17], s[0:1], 104
    s_waitcnt lgkmcnt(0)
    s_cmp_ge_u32 s2, 128
    s_cbranch_scc1 L0_swz
    """)
    srd(a, 20, 4, 5, 0, SZ2M)
    srd(a, 24, 16, 17, XN, SZ2M)
    srd(a, 28, 16, 17, XNT, SZ2M)
    a("""
    s_lshl_b32 s3, s2, 4            ; r0
    v_lshrrev_b32 v1, 4, v0
    v_and_b32 v2, 15, v0            ; j
    v_add_u32 v3, s3, v1            ; row
    v_lshlrev_b32 v3, 10, v3
    v_lshl_add_u32 v3, v2, 4, v3    ; voffset
    """)
    for c in range(4):
        a(f"buffer_load_dwordx4 v[{8+4*c}:{11+4*c}], v3, s[20:23], 0 offen offset:{c*256}")
    a("s_waitcnt vmcnt(0)")
    for i in range(16):
        a(f"v_lshlrev_b32 v{32+2*i}, 16, v{8+i}")
        a(f"v_and_b32 v{33+2*i}, 0xffff0000, v{8+i}")
    a("v_add_f32 v4, v32, v33")
    a("v_add_f32 v5, v34, v35")
    for i in range(36, 64, 2):
        a(f"v_add_f32 v4, v4, v{i}")
        a(f"v_add_f32 v5, v5, v{i+1}")
    a("v_add_f32 v4, v4, v5")
    def rowsum(r):
        for ror in (8, 4, 2, 1):
            a("s_nop 1")
            a(f"v_add_f32_dpp v{r}, v{r}, v{r} row_ror:{ror} row_mask:0xf bank_mask:0xf")
    rowsum(4)
    a(f"v_mul_f32 v4, {f32(1.0/512)}, v4")
    a("v_sub_f32 v6, v32, v4")
    a("v_mul_f32 v5, v6, v6")
    a("v_sub_f32 v6, v33, v4")
    a("v_mul_f32 v7, v6, v6")
    for i in range(34, 64, 2):
        a(f"v_sub_f32 v6, v{i}, v4")
        a(f"v_fma_f32 v5, v6, v6, v5")
        a(f"v_sub_f32 v64, v{i+1}, v4")
        a(f"v_fma_f32 v7, v64, v64, v7")
    a("v_add_f32 v5, v5, v7")
    rowsum(5)
    a(f"""
    v_mul_f32 v5, {f32(1.0/512)}, v5
    v_cvt_pk_bf16_f32 v4, v4, v5
    v_and_b32 v5, 0xffff0000, v4
    v_lshlrev_b32 v4, 16, v4
    v_add_f32 v5, {f32(1e-5)}, v5
    v_cvt_pk_bf16_f32 v5, v5, v5
    v_lshlrev_b32 v5, 16, v5
    v_sqrt_f32 v5, v5
    s_nop 0
    v_cvt_pk_bf16_f32 v5, v5, v5
    v_lshlrev_b32 v5, 16, v5         ; s (bf16)
    v_rcp_f32 v6, v5
    s_nop 0
    """)
    for i in range(16):
        x0, x1 = 32+2*i, 33+2*i
        a(f"""
        v_sub_f32 v{x0}, v{x0}, v4
        v_sub_f32 v{x1}, v{x1}, v4
        v_cvt_pk_bf16_f32 v7, v{x0}, v{x1}
        v_lshlrev_b32 v{x0}, 16, v7
        v_and_b32 v{x1}, 0xffff0000, v7
        v_mul_f32 v64, v{x0}, v6
        v_mul_f32 v65, v{x1}, v6
        v_fma_f32 v66, -v64, v5, v{x0}
        v_fma_f32 v67, -v65, v5, v{x1}
        v_fma_f32 v64, v66, v6, v64
        v_fma_f32 v65, v67, v6, v65
        v_cvt_pk_bf16_f32 v{8+i}, v64, v65
        """)
    a("""
    v_lshlrev_b32 v7, 10, v1
    v_lshl_add_u32 v7, v2, 4, v7
    v_lshrrev_b32 v64, 2, v2
    v_lshlrev_b32 v64, 10, v64
    v_and_b32 v65, 3, v2
    v_lshl_add_u32 v64, v65, 8, v64
    v_lshl_add_u32 v64, v1, 4, v64
    s_lshl_b32 s34, s3, 10          ; r0*1024 = rb*16384
    s_add_u32 s35, s34, 0x1000
    s_add_u32 s36, s34, 0x2000
    s_add_u32 s37, s34, 0x3000
    """)
    for c in range(4):
        a(f"buffer_store_dwordx4 v[{8+4*c}:{11+4*c}], v64, s[24:27], s{34+c} offen")
        a(f"ds_write_b128 v7, v[{8+4*c}:{11+4*c}] offset:{c*256}")
    a("""
    s_waitcnt lgkmcnt(0)
    s_barrier
    v_lshlrev_b32 v7, 2, v0
    """)
    for r in range(16):
        a(f"ds_read_b32 v{32+r}, v7 offset:{r*1024}")
    a("""
    s_mov_b32 s32, 0x05040100
    s_mov_b32 s33, 0x07060302
    v_lshlrev_b32 v3, 13, v0        ; d=2*tid -> d*4096
    s_lshl_b32 s3, s3, 1            ; r0*2 bytes
    v_add_u32 v3, s3, v3
    s_waitcnt lgkmcnt(0)
    """)
    for q in range(8):
        a(f"v_perm_b32 v{48+q}, v{33+2*q}, v{32+2*q}, s32")
        a(f"v_perm_b32 v{56+q}, v{33+2*q}, v{32+2*q}, s33")
    a("""
    buffer_store_dwordx4 v[48:51], v3, s[28:31], 0 offen
    buffer_store_dwordx4 v[52:55], v3, s[28:31], 0 offen offset:16
    v_add_u32 v3, 0x1000, v3
    buffer_store_dwordx4 v[56:59], v3, s[28:31], 0 offen
    buffer_store_dwordx4 v[60:63], v3, s[28:31], 0 offen offset:16
    s_endpgm
    """)
    a(f"""
    L0_swz:
    s_cmp_ge_u32 s2, 240
    s_cbranch_scc1 L0_zero
    """)
    srd(a, 24, 16, 17, WF, 1792*1024)
    srd(a, 20, 18, 19, 0, 1792*1024)
    a("""
    s_sub_u32 s3, s2, 128
    s_lshl_b32 s32, s3, 14
    v_lshlrev_b32 v1, 2, v0
    s_add_u32 s33, s32, 0x1000
    s_add_u32 s34, s32, 0x2000
    s_add_u32 s35, s32, 0x3000
    """)
    for e in range(16):
        a(f"buffer_load_dword v{8+e}, v1, s[20:23], s{32+e//4} offen offset:{(e%4)*1024}")
    a("""
    v_lshrrev_b32 v2, 4, v0
    v_mul_u32_u24 v2, 112*1024, v2
    v_and_b32 v3, 15, v0
    v_lshl_add_u32 v2, v3, 5, v2
    s_lshl_b32 s36, s3, 10
    s_mov_b32 s37, 0x05040100
    s_mov_b32 s38, 0x07060302
    """)
    for h in range(2):
        a(f"s_waitcnt vmcnt({8*(1-h)})")
        for p in range(4):
            a(f"v_perm_b32 v{32+8*h+p}, v{9+8*h+2*p}, v{8+8*h+2*p}, s37")
            a(f"v_perm_b32 v{36+8*h+p}, v{9+8*h+2*p}, v{8+8*h+2*p}, s38")
    for h in range(2):
        a(f"buffer_store_dwordx4 v[{32+8*h}:{35+8*h}], v2, s[24:27], s36 offen offset:{512*h}")
        a(f"buffer_store_dwordx4 v[{36+8*h}:{39+8*h}], v2, s[24:27], s36 offen offset:{512*h+16}")
    a("s_endpgm")
    a("L0_zero:")
    srd(a, 24, 16, 17, FLG, 65536)
    a("""
    v_lshlrev_b32 v1, 8, v0
    v_mov_b32 v2, 0
    buffer_store_dword v2, v1, s[24:27], 0 offen
    L0_exit:
    s_endpgm
    """)

def cpath(a):
    RS = 528
    WB = 16*RS
    TRS = 208
    KH, KL, UB = 0, 7680, 15360
    CB = 32768
    TS(a, 0)
    TR(a, 7)
    if os.environ.get("CPRIO"): a(f"s_setprio {os.environ['CPRIO']}")
    a("""
    s_load_dwordx8 s[72:79], s[0:1], 8
    s_load_dwordx2 s[80:81], s[0:1], 40
    s_lshl_b32 s10, s2, 1           ; channel c0
    s_lshl_b32 s11, s10, 12
    """)
    srd_dyn(a, 20, 16, 17, XNT, 11, 8192)
    srd_dyn(a, 32, 16, 17, AT, 11, 8192)
    srd(a, 36, 8, 9, 0, 1024)
    a("s_waitcnt lgkmcnt(0)")
    srd(a, 24, 72, 73, 0, 131072)
    srd(a, 28, 74, 75, 0, 131072)
    srd(a, 48, 76, 77, 0, 131072)
    srd(a, 52, 78, 79, 0, 131072)
    srd(a, 56, 80, 81, 0, 1024)
    a(f"""
    s_lshl_b32 s12, s2, 9           ; c0*256 bytes
    v_lshl_add_u32 v2, v15, 1, s12
    s_lshl_b32 s12, s2, 2
    v_lshrrev_b32 v3, 7, v15
    v_lshl_add_u32 v3, v3, 1, s12
    buffer_load_ushort v16, v2, s[24:27], 0 offen
    buffer_load_ushort v17, v2, s[28:31], 0 offen
    buffer_load_ushort v18, v2, s[48:51], 0 offen
    buffer_load_ushort v19, v2, s[52:55], 0 offen
    buffer_load_ushort v20, v3, s[56:59], 0 offen
    s_lshr_b32 s14, s3, 1
    s_lshl_b32 s14, s14, 15
    s_and_b32 s15, s3, 1
    s_mul_i32 s15, s15, {WB}
    s_add_u32 s14, s14, s15
    s_add_u32 s14, s14, {UB}
    v_lshl_add_u32 v2, v0, 3, s14
    v_and_b32 v4, 15, v0            ; r / j
    v_lshrrev_b32 v5, 4, v0         ; q
    v_mul_u32_u24 v3, {RS}, v4
    v_lshl_add_u32 v3, v5, 4, v3
    v_add_u32 v3, s14, v3
    v_mul_u32_u24 v60, {4*TRS}, v5
    v_lshl_add_u32 v60, v4, 2, v60
    v_add_u32 v60, s14, v60
    v_mov_b32 v6, 0
    v_cmp_le_u32 vcc, 32, v15
    s_nop 1
    v_addc_co_u32 v6, vcc, 0, v6, vcc
    v_cmp_le_u32 vcc, 64, v15
    s_nop 1
    v_addc_co_u32 v6, vcc, 0, v6, vcc
    v_cmp_le_u32 vcc, 128, v15
    s_nop 1
    v_addc_co_u32 v6, vcc, 0, v6, vcc     ; s
    v_lshlrev_b32 v7, v6, 1
    v_lshrrev_b32 v7, 1, v7
    v_add_u32 v7, -1, v7                  ; half-1
    v_lshlrev_b32 v8, 3, v15              ; l0
    v_lshlrev_b32 v9, 3, v6               ; 8s
    v_lshrrev_b32 v12, v6, 16             ; 16>>s
    v_cmp_eq_u32 vcc, 0, v6
    """)
    for e in range(8):
        a(f"""
        v_add_u32 v10, {e}, v8
        v_lshrrev_b32 v11, v6, v10
        v_and_b32 v11, 1, v11
        v_add3_u32 v11, v10, v7, v11
        v_lshrrev_b32 v11, v6, v11
        v_cndmask_b32 v11, v11, v10, vcc      ; m
        v_lshlrev_b32 v11, v6, v11            ; p
        v_lshrrev_b32 v10, 8, v11
        v_mad_u32_u24 v10, v10, v12, v9       ; 8s + (p>>8)*(16>>s)
        v_and_b32 v13, 15, v11
        v_lshrrev_b32 v13, v6, v13
        v_add_u32 v10, v10, v13               ; col
        v_bfe_u32 v11, v11, 4, 4              ; row
        v_mul_u32_u24 v11, {TRS}, v11
        v_lshl_add_u32 v{52+e}, v10, 2, v11
        """)
    a("s_waitcnt vmcnt(0)")
    TS(a, 1)
    a(f"""
    v_lshlrev_b32 v16, 16, v16
    v_lshlrev_b32 v17, 16, v17
    v_lshlrev_b32 v18, 16, v18
    v_lshlrev_b32 v19, 16, v19
    v_lshlrev_b32 v20, 16, v20
    v_mul_f32 v16, {f32(LOG2E)}, v16
    v_mul_f32 v20, {f32(LOG2E)}, v20
    v_exp_f32 v16, v16
    v_exp_f32 v20, v20
    s_nop 0
    v_cvt_pk_bf16_f32 v16, v16, v20
    v_and_b32 v20, 0xffff0000, v16    ; dt
    v_lshlrev_b32 v16, 16, v16
    v_mul_f32 v16, v16, v20
    v_mul_f32 v17, v17, v20
    v_mul_f32 v18, v18, v20
    v_mul_f32 v19, v19, v20
    v_mul_f32 v16, {f32(-LOG2E)}, v16
    v_mul_f32 v17, {f32(1.0/(2*math.pi))}, v17
    v_add_f32 v18, v18, v18
    v_mul_f32 v19, -2.0, v19
    """)
    regs = {"C": 18}
    nxt = [184]
    def R(name):
        if name not in regs:
            regs[name] = nxt[0]; nxt[0] += 2
            assert nxt[0] <= 250
        return regs[name]
    def pr(r): return f"v[{r}:{r+1}]"
    anch = [("W16", 16, 1), ("W64", 64, 1), ("W128", 128, 1), ("Z1", 1, 0), ("Z4", 4, 0), ("Z8", 8, 0), ("Z256", 256, 0), ("Z512", 512, 0), ("Z1024", 1024, 0)]
    for k, (nm, p, cj) in enumerate(anch):
        d = R(nm); t = 20 + 2*k
        a(f"v_mul_f32 v{t}, {f32(float(p))}, v16")
        a(f"v_mul_f32 v{t+1}, {f32(float(p))}, v17")
        a(f"v_exp_f32 v{t}, v{t}")
        a(f"v_cos_f32 v{d}, v{t+1}")
        a(f"v_sin_f32 v{d+1}, {'-' if cj else ''}v{t+1}")
    a("s_nop 0")
    for k, (nm, p, cj) in enumerate(anch):
        d = R(nm); t = 20 + 2*k
        a(f"v_mul_f32_e32 v{d}, v{d}, v{t}")
        a(f"v_mul_f32_e32 v{d+1}, v{d+1}, v{t}")
    tcnt = [0]
    def cmul(d, x, y):
        d, x, y = R(d), R(x), R(y)
        assert d != x and d != y
        a(f"v_mul_f32_e32 v{d}, v{x+1}, v{y+1}")
        a(f"v_mul_f32_e32 v{d+1}, v{x}, v{y+1}")
        a(f"v_fma_f32 v{d}, v{x}, v{y}, -v{d}")
        a(f"v_fmac_f32_e32 v{d+1}, v{x+1}, v{y}")
    scnt = [0]
    nds = [0]
    def put(nm, row):
        v = R(nm)
        h = 44 + 2*(scnt[0] % 2); u = 48 + 2*(scnt[0] % 2); scnt[0] += 1
        a(f"""
        v_cvt_pk_bf16_f32 v{h}, v{v}, v{v+1}
        v_lshlrev_b32 v{u}, 16, v{h}
        v_and_b32 v{u+1}, 0xffff0000, v{h}
        v_sub_f32_e32 v{u}, v{v}, v{u}
        v_sub_f32_e32 v{u+1}, v{v+1}, v{u+1}
        v_cvt_pk_bf16_f32 v{h+1}, v{u}, v{u+1}
        ds_write_b64 v2, {pr(h)} offset:{row*RS}
        """)
        nds[0] += 1
    A1, A2, BO, ACC = 64, 96, 128, 160
    cmul("w2", "W16", "W16"); cmul("w3", "w2", "W16"); cmul("W192", "W128", "W64")
    regs["w1"] = regs["W16"]
    for aa in range(4):
        if aa == 0: regs["CW"] = regs["C"]
        else:
            regs["CW"] = R("CWt"); cmul("CWt", "C", f"W{64*aa}")
        put("CW", 4*aa)
        for b in range(1, 4):
            nm = f"T{b%2}"
            cmul(nm, "CW", f"w{b}"); put(nm, 4*aa+b)
    for ks in range(8):
        a(f"ds_read_b128 v[{A1+4*ks}:{A1+4*ks+3}], v3 offset:{ks*64}")
        a(f"ds_read2_b32 v[{A2+4*ks}:{A2+4*ks+1}], v3 offset0:{ks*16+1} offset1:{ks*16}")
        a(f"ds_read2_b32 v[{A2+4*ks+2}:{A2+4*ks+3}], v3 offset0:{ks*16+3} offset1:{ks*16+2}")
        nds[0] += 3
    def breads():
        for ks in range(8):
            a(f"ds_read_b128 v[{BO+4*ks}:{BO+4*ks+3}], v3 offset:{ks*64}")
            nds[0] += 1
        return nds[0]
    def mfmas(tau, mark):
        n = nds[0] - mark
        assert n <= 15
        a(f"s_waitcnt lgkmcnt({n})")
        for ks in range(8):
            for h, A_ in enumerate((A1, A2)):
                c = ACC + tau*8 + h*4
                cin = "0" if ks == 0 else f"v[{c}:{c+3}]"
                a(f"v_mfma_f32_16x16x32_bf16 v[{c}:{c+3}], v[{A_+4*ks}:{A_+4*ks+3}], v[{BO+4*ks}:{BO+4*ks+3}], {cin}")
    a(f"v_mov_b32 v{R('Z0')}, 1.0")
    a(f"v_mov_b32 v{R('Z0')+1}, 0")
    cmul("Z2", "Z1", "Z1"); cmul("Z3", "Z2", "Z1"); cmul("Z12", "Z8", "Z4")
    for aa in range(4):
        put(f"Z{4*aa}", 4*aa)
        for b in range(1, 4):
            j = 4*aa+b
            if aa > 0:
                nm = f"Z{j}" if j % 2 == 0 else f"T{(j//2)%2}"
                cmul(nm, f"Z{4*aa}", f"Z{b}")
            else: nm = f"Z{j}"
            put(nm, j)
    mark = breads()
    cmul("Z768", "Z512", "Z256")
    vals = [("Z256", 2*j) for j in range(8)] + [("Z512", 4*r) for r in range(4)] + [("Z768", 4*r) for r in range(4)]
    for j, (bs, e) in enumerate(vals):
        if e == 0: nm = bs
        else:
            nm = f"T{j%2}"; cmul(nm, bs, f"Z{e}")
        put(nm, j)
        if j == 3: mfmas(0, mark)
    mark = breads()
    cmul("Z1280", "Z1024", "Z256"); cmul("Z1536", "Z1024", "Z512"); cmul("Z1792", "Z1024", "Z768"); cmul("Z2048", "Z1024", "Z1024")
    vals = [(f"Z{1024+256*c}", 8*e) for c in range(4) for e in range(2)] + [("Z2048", 0)]
    for j, (bs, e) in enumerate(vals):
        if e == 0: nm = bs
        else:
            nm = f"T{j%2}"; cmul(nm, bs, f"Z{e}")
        put(nm, j)
        if j == 3: mfmas(1, mark)
    mark = breads()
    LR = [dict(U=184, Um=188, D=190, Ue=192), dict(U=200, Um=204, D=206, Ue=208)]
    a(f"""
    v_lshlrev_b32 v1, 4, v15
    v_add_u32 v4, -8, v1
    s_lshl_b32 s12, s10, 1
    v_mov_b32 v8, s12
    s_mov_b32 s43, 0
    s_mov_b32 s44, 4096
    v_and_b32 v5, 31, v0
    v_lshrrev_b32 v6, 5, v0
    s_lshr_b32 s13, s3, 1
    s_lshl_b32 s13, s13, 11
    s_and_b32 s14, s3, 1
    s_lshl_b32 s14, s14, 5
    s_add_u32 s13, s13, s14
    v_lshlrev_b32 v13, 6, v5
    v_lshl_add_u32 v13, v6, 4, v13
    v_add_u32 v13, s13, v13
    """)
    for c in range(2):
        R_ = LR[c]
        a(f"""
        buffer_load_dwordx4 v[{R_['U']}:{R_['U']+3}], v1, s[20:23], s{43+c} offen
        buffer_load_dwordx2 v[{R_['Um']}:{R_['Um']+1}], v4, s[20:23], s{43+c} offen
        """)
    for c in range(2):
        R_ = LR[c]
        a(f"""
        buffer_load_ushort v{R_['D']}, v8, s[36:39], 0 offen offset:{2*c}
        buffer_load_dwordx4 v[{R_['Ue']}:{R_['Ue']+3}], v13, s[20:23], s{43+c} offen
        """)
    mfmas(2, mark)
    TS(a, 2)
    a(f"""
    v_mov_b32 v40, 0
    v_mov_b32 v41, 0
    v_mov_b32 v42, 0
    v_mov_b32 v43, 0
    v_cmp_gt_u32 vcc, 160, v15
    s_and_saveexec_b64 s[40:41], vcc
    ds_write_b128 v1, v[40:43] offset:{KH}
    ds_write_b128 v1, v[40:43] offset:{KL}
    ds_write_b128 v1, v[40:43] offset:{CB+KH}
    ds_write_b128 v1, v[40:43] offset:{CB+KL}
    s_mov_b64 exec, s[40:41]
    s_nop 3
    """)
    for tau in range(3):
        for r in range(4):
            c = ACC + tau*8 + r
            a(f"v_add_f32 v{c}, v{c}, v{c+4}")
            a(f"ds_write_b32 v60, v{c} offset:{r*TRS+tau*64}")
    a(f"""
    v_lshrrev_b32 v7, 2, v15
    v_mul_u32_u24 v7, 80, v7
    v_and_b32 v12, 3, v15
    v_lshl_add_u32 v7, v12, 4, v7
    v_lshrrev_b32 v9, 2, v15
    v_mul_u32_u24 v9, 4160, v9
    v_lshl_add_u32 v9, v12, 4, v9
    v_sub_u32 v12, 255, v15
    v_lshlrev_b32 v12, 4, v12
    s_mov_b32 s42, 0xffff
    ; A base
    v_sub_u32 v3, 3, v5
    v_and_b32 v3, 3, v3             ; r
    v_mul_u32_u24 v1, 4160, v3
    v_add_u32 v3, v3, v5            ; b+r
    v_lshlrev_b32 v3, 1, v3
    v_sub_u32 v1, v1, v3
    v_lshl_add_u32 v1, v6, 4, v1
    s_lshl_b32 s14, s3, 6
    s_sub_u32 s15, {UB+4094-3840}, s14
    v_add_u32 v1, s15, v1
    ; B base
    v_mul_u32_u24 v2, 80, v5
    v_lshl_add_u32 v2, v6, 4, v2
    s_sub_u32 s14, 3, s3
    s_mul_i32 s14, s14, 80
    v_add_u32 v2, s14, v2
    s_waitcnt lgkmcnt(0)
    s_barrier
    """)
    for c in range(2):
        for e in range(8):
            a(f"ds_read2st64_b32 v[{64+c*16+2*e}:{65+c*16+2*e}], v{52+e} offset0:{128*c+60} offset1:{128*c+93}")
    for c in range(2):
        a(f"s_waitcnt lgkmcnt({8*(1-c)})")
        for e in range(8):
            a(f"v_add_f32 v{64+c*16+2*e}, v{64+c*16+2*e}, v{65+c*16+2*e}")
        if c == 1:
            a("s_barrier")
        for i in range(4):
            k0_, k1_ = 64+c*16+4*i, 66+c*16+4*i
            a(f"""
            v_cvt_pk_bf16_f32 v{32+8*c+i}, v{k0_}, v{k1_}
            v_lshlrev_b32 v20, 16, v{32+8*c+i}
            v_and_b32 v21, 0xffff0000, v{32+8*c+i}
            v_sub_f32 v20, v{k0_}, v20
            v_sub_f32 v21, v{k1_}, v21
            v_cvt_pk_bf16_f32 v{36+8*c+i}, v20, v21
            """)
        a(f"ds_write_b128 v7, v[{32+8*c}:{35+8*c}] offset:{c*CB+KH+32*80}")
        a(f"ds_write_b128 v7, v[{36+8*c}:{39+8*c}] offset:{c*CB+KL+32*80}")
    a(f"""
    v_mov_b32 v16, 0
    v_mov_b32 v17, 0
    v_mov_b32 v18, 0
    v_mov_b32 v19, 0
    v_cmp_gt_u32 vcc, 16, v15
    s_and_saveexec_b64 s[40:41], vcc
    ds_write_b128 v9, v[16:19] offset:{UB+4096}
    ds_write_b128 v9, v[16:19] offset:{CB+UB+4096}
    s_mov_b64 exec, s[40:41]
    v_cmp_eq_u32 vcc, 0, v15
    """)
    for c in range(2):
        R_ = LR[c]
        a(f"s_waitcnt vmcnt({4+2*(1-c)})")
        if c == 1:
            a(f"v_cndmask_b32_e64 v{R_['Um']}, v{R_['Um']}, 0, vcc")
            a(f"v_cndmask_b32_e64 v{R_['Um']+1}, v{R_['Um']+1}, 0, vcc")
        S = {-2: R_['Um'], -1: R_['Um']+1, 0: R_['U'], 1: R_['U']+1, 2: R_['U']+2, 3: R_['U']+3}
        for r in range(4):
            d = 96 + 16*c + 4*r
            for j in range(4):
                if r % 2 == 0:
                    p = 3 - r//2 - j
                    a(f"v_alignbit_b32 v{d+j}, v{S[p]}, v{S[p]}, 16")
                else:
                    p = (7-r)//2 - j
                    a(f"v_bfi_b32 v{d+j}, s42, v{S[p]}, v{S[p-1]}")
            a(f"ds_write_b128 v12, v[{d}:{d+3}] offset:{c*CB+UB+r*4160}")
    a("s_waitcnt lgkmcnt(0)")
    a("s_barrier")
    TS(a, 3)
    steps = [(c, i, ks) for c in range(2) for i in range(16) for ks in range(2)]
    def loads(n):
        c, i, ks = steps[n]
        af = 16 + (n % 2)*4; bf_ = 24 + (n % 2)*16
        off = c*CB + 64*(60-4*i) + 32*ks
        a(f"ds_read_b64 v[{af}:{af+1}], v1 offset:{off}")
        a(f"ds_read_b64 v[{af+2}:{af+3}], v1 offset:{off+8}")
        cnt = 2
        for blk in range(2):
            if blk == 0 and i >= 8: continue
            for hl in range(2):
                img = KH if hl == 0 else KL
                o = c*CB + img + (32+32*blk-4*i)*80 + 32*ks - 240
                r_ = bf_ + (blk*2+hl)*4
                a(f"ds_read_b128 v[{r_}:{r_+3}], v2 offset:{o}")
                cnt += 1
        return cnt
    loads(0)
    NST = len(steps)
    for n in range(NST):
        c, i, ks = steps[n]
        if n+1 < NST:
            cn = loads(n+1)
            a(f"s_waitcnt lgkmcnt({cn})")
        else:
            a("s_waitcnt lgkmcnt(0)")
        af = 16 + (n % 2)*4; bf_ = 24 + (n % 2)*16
        for hl in range(2):
            for blk in range(2):
                if blk == 0 and i >= 8: continue
                r_ = bf_ + (blk*2+hl)*4
                ac = 64 + c*32 + blk*16
                cin = "0" if (i == 0 and ks == 0 and hl == 0) else f"v[{ac}:{ac+15}]"
                a(f"v_mfma_f32_32x32x16_bf16 v[{ac}:{ac+15}], v[{af}:{af+3}], v[{r_}:{r_+3}], {cin}")
    TS(a, 4)
    srd(a, 24, 16, 17, FLG, 65536)
    a("""
    s_nop 7
    s_barrier
    s_lshl_b32 s14, s3, 13
    v_lshlrev_b32 v1, 4, v0
    v_add_u32 v2, s14, v1
    """)
    for c in range(2):
        for qq in range(8):
            a(f"ds_write_b128 v2, v[{64+32*c+4*qq}:{67+32*c+4*qq}] offset:{c*CB+qq*1024}")
    a("""
    s_lshl_b32 s14, s3, 11
    v_lshlrev_b32 v1, 4, v5
    v_lshl_add_u32 v1, v6, 10, v1
    v_add_u32 v1, s14, v1
    s_lshr_b32 s45, s2, 5
    s_add_u32 s45, s45, 128
    s_lshl_b32 s45, s45, 8
    s_waitcnt lgkmcnt(0)
    s_barrier
    """)
    for c in range(2):
        for ww in range(4):
            for e in range(2):
                r_ = 64 + c*32 + (ww*2+e)*4
                a(f"ds_read_b128 v[{r_}:{r_+3}], v1 offset:{c*CB+ww*8192+e*512}")
    a("s_waitcnt lgkmcnt(0) vmcnt(0)")
    for c in range(2):
        R_ = LR[c]
        a(f"v_lshlrev_b32 v{R_['D']}, 16, v{R_['D']}")
        o = 56 + 4*c
        for e in range(2):
            for j in range(4):
                r_ = 64 + c*32 + e*4 + j
                a(f"v_add_f32 v{r_}, v{r_}, v{r_+8}")
                a(f"v_add_f32 v{r_+16}, v{r_+16}, v{r_+24}")
                a(f"v_add_f32 v{r_}, v{r_}, v{r_+16}")
            y = 64 + c*32 + e*4
            for p in range(2):
                uu = R_['Ue'] + 2*e + p
                a(f"""
                v_cvt_pk_bf16_f32 v48, v{y+2*p}, v{y+2*p+1}
                v_lshlrev_b32 v49, 16, v48
                v_and_b32 v50, 0xffff0000, v48
                v_lshlrev_b32 v51, 16, v{uu}
                v_and_b32 v52, 0xffff0000, v{uu}
                v_mul_f32 v51, v51, v{R_['D']}
                v_mul_f32 v52, v52, v{R_['D']}
                v_cvt_pk_bf16_f32 v48, v51, v52
                v_lshlrev_b32 v51, 16, v48
                v_and_b32 v52, 0xffff0000, v48
                v_add_f32 v49, v49, v51
                v_add_f32 v50, v50, v52
                v_cvt_pk_bf16_f32 v{o+2*e+p}, v49, v50
                """)
        a(f"buffer_store_dwordx4 v[{o}:{o+3}], v13, s[32:35], s{43+c} offen sc1")
    TS(a, 5)
    a("""
    v_mov_b32 v4, 0
    v_mov_b32 v8, 1
    s_waitcnt vmcnt(0)
    s_mov_b64 exec, 1
    buffer_atomic_add v8, v4, s[24:27], s45 offen
    s_mov_b64 exec, -1
    """)
    TS(a, 6)
    TR(a, 9)
    TSDUMP(a, 10, "c")
    a("s_endpgm")

NBR, NBL = 12, 8
def g2_setup(a):
    srd(a, 24, 16, 17, WF, 1792*1024)
    srd(a, 32, 16, 17, FLG, 65536)
    srd(a, 36, 16, 17, AT, SZ2M)
    srd(a, 48, 56, 57, 0, SZ2M)
    srd(a, 52, 58, 59, 0, SZ2M)
    a("""
    s_and_b32 s44, s2, 7
    s_lshl_b32 s44, s44, 2
    s_bfe_u32 s45, s2, 0x20003
    s_add_u32 s44, s44, s45         ; tt
    s_lshr_b32 s45, s2, 5           ; dt
    s_mul_i32 s14, s3, 28
    s_mul_i32 s40, s44, 224
    s_add_u32 s40, s40, s14
    s_lshl_b32 s40, s40, 10
    s_mul_i32 s42, s45, 224
    s_add_u32 s42, s42, s14
    s_lshl_b32 s42, s42, 10
    s_lshl_b32 s43, s44, 2
    s_add_u32 s43, s43, s3
    s_lshl_b32 s43, s43, 8
    s_lshl_b32 s61, s3, 14
    v_lshlrev_b32 v4, 4, v0         ; lane*16
    v_add_u32 v5, 112*1024, v4
    """)
def g2_bpre(a):
    for st in range(NBR):
        if st % 4 == 0: a(f"s_add_u32 s41, s42, {(st//4)*4096}")
        for cb in range(2):
            r = 160 + st*8 + cb*4
            a(f"buffer_load_dwordx4 v[{r}:{r+3}], v{4+cb}, s[24:27], s41 offen offset:{(st%4)*1024}")
def g2_bpre_lds(a):
    for j in range(NBL):
        st = NBR + j
        a(f"s_add_u32 s41, s42, {st*1024}")
        for cb in range(2):
            a(f"s_add_u32 m0, s61, {(j*2+cb)*1024}")
            a("s_nop 0")
            a(f"buffer_load_dwordx4 v{4+cb}, s[24:27], s41 offen lds")

def poll(a, tag, soff, target):
    a(f"""
    s_mov_b32 s9, 0
    v_mov_b32 v6, 0
    Lp_{tag}:
    buffer_load_dword v7, v6, s[32:35], s{soff} offen sc1
    s_waitcnt vmcnt(0)
    v_readfirstlane_b32 s14, v7
    s_add_u32 s9, s9, 1
    s_cmp_ge_u32 s14, {target}
    s_cbranch_scc1 Lpd_{tag}
    s_cmp_ge_u32 s9, {POLL_LIMIT}
    s_cbranch_scc1 Lpd_{tag}
    s_sleep 2
    s_branch Lp_{tag}
    Lpd_{tag}:
    """)

def gemm2(a):
    a("L1_g2:")
    poll(a, "h", 43, 7)
    TS(a, 21)
    NS = 28
    q = []
    def wait_for(tags):
        idx = max(i for i, t in enumerate(q) if t in tags)
        n = len(q) - 1 - idx
        assert n <= 63
        a(f"s_waitcnt vmcnt({n})")
    free = [96 + 8*i for i in range(8)]
    pend = []
    for st in range(NS):
        pend.append(("A", st))
        if st >= NBR + NBL: pend.append(("B", st))
    loc = {}
    for st in range(NBR): loc[("B", st)] = 160 + 8*st
    def issue():
        while pend and free:
            k, st = pend.pop(0)
            r = free.pop(0)
            loc[(k, st)] = r
            a(f"s_add_u32 s41, s{40 if k == 'A' else 42}, {st*1024}")
            for j in range(2):
                a(f"buffer_load_dwordx4 v[{r+4*j}:{r+4*j+3}], v{4+j}, s[{28 if k == 'A' else 24}:{31 if k == 'A' else 27}], s41 offen")
                q.append((k, st))
    issue()
    a(f"""
    v_and_b32 v8, 31, v0
    v_lshrrev_b32 v9, 5, v0         ; g
    s_lshr_b32 s14, s3, 1           ; rb
    s_and_b32 s15, s3, 1            ; cb
    s_lshl_b32 s62, s44, 6
    s_lshl_b32 s14, s14, 5
    s_add_u32 s62, s62, s14
    s_lshl_b32 s63, s45, 6
    s_lshl_b32 s15, s15, 5
    s_add_u32 s63, s63, s15
    v_add_u32 v10, s63, v8          ; d
    v_lshl_add_u32 v11, v9, 2, s62  ; t = tbase+4g
    v_lshlrev_b32 v12, 12, v10
    v_lshl_add_u32 v12, v11, 1, v12
    v_lshlrev_b32 v13, 10, v11
    v_lshl_add_u32 v13, v10, 1, v13
    s_add_u32 s45, s45, 128
    s_lshl_b32 s45, s45, 8
    v_add_u32 v14, s61, v4
    s_lshl_b32 s14, s3, 12
    v_add_u32 v15, s14, v4
    s_mov_b32 s20, 0
    s_mov_b32 s21, 8192
    s_mov_b32 s22, 16384
    s_mov_b32 s23, 24576
    """)
    ACC = 16
    AT_R, X_R = 232, 240
    def acc(rb, cb): return ACC + (rb*2+cb)*16
    def ldsb(st):
        j = st - NBR
        r = 80 + 8*(st % 2)
        loc[("B", st)] = r
        a(f"ds_read_b128 v[{r}:{r+3}], v14 offset:{(2*j)*1024}")
        a(f"ds_read_b128 v[{r+4}:{r+7}], v14 offset:{(2*j+1)*1024}")
    FPOLL, FCHK = 13, 20
    for st in range(NS):
        lds_next = NBR <= st+1 < NBR+NBL
        if lds_next: ldsb(st+1)
        tags = [("A", st)] + ([("B", st)] if st >= NBR+NBL else [])
        wait_for(tags)
        if NBR <= st < NBR+NBL: a(f"s_waitcnt lgkmcnt({2 if lds_next else 0})")
        for rb in range(2):
            for cb in range(2):
                c = acc(rb, cb); x = loc[("A", st)] + 4*rb; y = loc[("B", st)] + 4*cb
                cin = "0" if st == 0 else f"v[{c}:{c+15}]"
                a(f"v_mfma_f32_32x32x16_bf16 v[{c}:{c+15}], v[{x}:{x+3}], v[{y}:{y+3}], {cin}")
        free.append(loc[("A", st)])
        if (st < NBR and loc[("B", st)] < AT_R) or st >= NBR+NBL: free.append(loc[("B", st)])
        issue()
        if st == FPOLL:
            a("buffer_load_dword v7, v6, s[32:35], s45 offen sc1")
            q.append(("F", 0))
            for qq in range(4):
                for e in range(4):
                    a(f"buffer_load_ushort v{X_R+4*qq+e}, v13, s[48:51], s{20+qq} offen offset:{1024*e}")
                    q.append(("X", 0))
        if st == FCHK:
            wait_for([("F", 0)])
            ATG = 0 if os.environ.get("NOC") else 128
            a(f"""
            v_readfirstlane_b32 s14, v7
            s_cmp_ge_u32 s14, {ATG}
            s_cbranch_scc1 Lpd_a
            """)
            poll(a, "a", 45, ATG)
            for qq in range(4):
                a(f"buffer_load_dwordx2 v[{AT_R+2*qq}:{AT_R+2*qq+1}], v12, s[36:39], 0 offen offset:{16*qq}")
                q.append(("T", 0))
    assert not pend
    TS(a, 22)
    a("s_nop 15")
    for i in range(16):
        a(f"ds_write_b128 v14, v[{ACC+4*i}:{ACC+4*i+3}] offset:{i*1024}")
    a("""
    s_waitcnt lgkmcnt(0)
    s_barrier
    """)
    for ww in range(4):
        for qq in range(4):
            r = 16 + (ww*4+qq)*4
            a(f"ds_read_b128 v[{r}:{r+3}], v15 offset:{ww*16384 + qq*1024}")
    a("s_waitcnt vmcnt(0) lgkmcnt(0)")
    for qq in range(4):
        for e in range(4):
            r = 16 + qq*4 + e
            a(f"v_add_f32 v{r}, v{r}, v{r+16}")
            a(f"v_add_f32 v{r+32}, v{r+32}, v{r+48}")
            a(f"v_add_f32 v{r}, v{r}, v{r+32}")
        for p in range(2):
            r = 16 + qq*4 + 2*p
            at = AT_R + 2*qq + p
            x0 = X_R + 4*qq + 2*p
            o = 88 + (qq*2+p)
            a(f"""
            v_lshlrev_b32 v80, 16, v{at}
            v_and_b32 v81, 0xffff0000, v{at}
            v_lshlrev_b32 v82, 16, v{x0}
            v_lshlrev_b32 v83, 16, v{x0+1}
            v_add_f32 v80, v80, v82
            v_add_f32 v81, v81, v83
            v_cvt_pk_bf16_f32 v82, v{r}, v{r+1}
            v_cvt_pk_bf16_f32 v80, v80, v81
            v_lshlrev_b32 v84, 16, v82
            v_and_b32 v85, 0xffff0000, v82
            v_and_b32 v81, 0xffff0000, v80
            v_lshlrev_b32 v80, 16, v80
            v_add_f32 v80, v80, v84
            v_add_f32 v81, v81, v85
            v_cvt_pk_bf16_f32 v{o}, v80, v81
            buffer_store_short v{o}, v13, s[52:55], s{20+qq} offen offset:{1024*(2*p)}
            buffer_store_short_d16_hi v{o}, v13, s[52:55], s{20+qq} offen offset:{1024*(2*p+1)}
            """)
    if TSON: a("s_waitcnt vmcnt(0)")
    TS(a, 23)
    TSDUMP(a, 24, "g")
    a("s_endpgm")

def gemm1(a):
    TS(a, 0)
    if os.environ.get("PRIO"): a(f"s_setprio {os.environ['PRIO']}")
    srd(a, 20, 16, 17, XN, SZ2M)
    a(f"""
    s_cmp_ge_u32 s3, 2
    s_cselect_b32 s24, s6, s4
    s_cselect_b32 s25, s7, s5
    s_and_b32 s25, s25, 0xffff
    s_mov_b32 s26, 0x1c0000
    s_mov_b32 s27, 0x20000
    ; x=g&7, q=g>>3 ; ct=(x&3)*7+q%7 ; rt=(x>>2)*4+q/7
    s_lshr_b32 s12, s2, 3
    s_mul_i32 s13, s12, 37
    s_lshr_b32 s13, s13, 8          ; q/7
    s_mul_i32 s14, s13, 7
    s_sub_u32 s14, s12, s14         ; q%7
    s_and_b32 s15, s2, 3
    s_mul_i32 s15, s15, 7
    s_add_u32 s10, s15, s14         ; ct
    s_bfe_u32 s15, s2, 0x10002
    s_lshl_b32 s15, s15, 2
    s_add_u32 s11, s15, s13         ; rt
    s_lshl_b32 s12, s11, 4
    s_lshl_b32 s13, s3, 2
    s_add_u32 s12, s12, s13
    s_lshl_b32 s12, s12, 14
    v_lshlrev_b32 v1, 4, v0
    v_add_u32 v1, s12, v1
    v_lshrrev_b32 v5, 3, v0         ; row8
    v_and_b32 v6, 7, v0             ; c'
    v_and_b32 v7, 2, v5
    v_xor_b32 v6, v6, v7
    v_mul_u32_u24 v2, 3584, v5
    s_lshl_b32 s13, s10, 7
    v_add_u32 v2, s13, v2
    v_xor_b32 v7, 4, v6
    v_lshl_add_u32 v3, v7, 4, v2
    v_lshl_add_u32 v2, v6, 4, v2
    s_and_b32 s14, s3, 1
    s_mul_i32 s40, s14, {16*3584}
    s_lshr_b32 s15, s3, 1
    s_lshl_b32 s42, s15, 12
    s_lshl_b32 s14, s14, 11
    s_add_u32 s42, s42, s14
    v_lshrrev_b32 v6, 4, v0         ; gq
    v_bfe_u32 v7, v0, 2, 2          ; r
    v_lshl_add_u32 v5, v6, 3, v7    ; row
    v_lshlrev_b32 v5, 7, v5
    v_and_b32 v12, 3, v0
    v_lshl_add_u32 v5, v12, 3, v5
    v_lshrrev_b32 v7, 1, v7
    v_and_b32 v12, 1, v6
    v_lshl_add_u32 v7, v12, 1, v7   ; g
    v_lshl_add_u32 v8, v7, 5, v5
    v_xor_b32 v9, 32, v8
    v_xor_b32 v10, 64, v8
    v_xor_b32 v11, 96, v8
    """)
    SX = 32
    sx = [32,33,34,35,36,37,38,39,48,49,50,51,52,53,54,55]
    for rb in range(4):
        for h in range(4):
            a(f"s_mov_b32 s{sx[rb*4+h]}, {rb*16384+h*4096}")
    ACC = 32
    def acc(mat, nb, rb): return ACC + ((mat*4+nb)*4+rb)*4
    NS, NSL, XS = 16, 8, 6
    q = []
    def wait_for(tag):
        idx = max(i for i, t in enumerate(q) if t == tag)
        n = len(q) - 1 - idx
        assert n <= 63
        a(f"s_waitcnt vmcnt({n})")
    def xr(s, rb): return 160 + (s % XS)*16 + rb*4
    WFr = 16
    def trread(n):
        s, blk = n // 8, n % 8
        mat, nb = blk // 4, blk % 4
        b = WFr + (n % 4)*4
        base = (s % NSL)*8192 + mat*4096
        a(f"ds_read_b64_tr_b16 v[{b}:{b+1}], v{8+nb} offset:{base}")
        a(f"ds_read_b64_tr_b16 v[{b+2}:{b+3}], v{8+nb} offset:{base+512}")
    pend = []
    for s in range(NS):
        pend += [("w", s, 0), ("w", s, 1)] + [("x", s, rb) for rb in range(4)]
    def issue1(t):
        k, s, i = t
        if k == "w":
            a(f"s_add_u32 s41, s40, {(32*s+8*i)*3584}")
            a(f"s_add_u32 m0, s42, {(s%NSL)*8192+i*1024}")
            a("s_nop 0")
            a(f"buffer_load_dwordx4 v{2+i}, s[24:27], s41 offen lds")
        else:
            r = xr(s, i)
            a(f"buffer_load_dwordx4 v[{r}:{r+3}], v1, s[20:23], s{sx[i*4+(s>>2)]} offen offset:{(s&3)*1024}")
        q.append((k, s))
    barr = -1
    def allowed(t, n):
        k, s, i = t
        if k == "w": return s < NSL or barr >= s-6
        return s < XS or n//8 >= s-5
    PRO = int(os.environ.get("PRO", "3"))
    for _ in range(6*PRO): issue1(pend.pop(0))
    TS(a, 1)
    PD = 3
    def do_barrier(s):
        nonlocal barr
        wait_for(("w", s))
        a("s_barrier")
        barr = s
    do_barrier(0)
    for n in range(PD): trread(n)
    for n in range(NS*8):
        s, blk = n // 8, n % 8
        if blk == 0 and s in (0, 4, 8, 12): TS(a, 2+s)
        if n+PD < NS*8:
            if (n+PD) % 8 == 0: do_barrier((n+PD)//8)
            trread(n+PD)
        if blk == 0: wait_for(("x", s))
        a(f"s_waitcnt lgkmcnt({2*min(PD, NS*8-1-n)})")
        b = WFr + (n % 4)*4
        for rb in range(4):
            c = acc(blk//4, blk % 4, rb)
            cin = "0" if s == 0 else f"v[{c}:{c+3}]"
            a(f"v_mfma_f32_16x16x32_bf16 v[{c}:{c+3}], v[{b}:{b+3}], v[{xr(s,rb)}:{xr(s,rb)+3}], {cin}")
            if rb == 3:
                if pend and allowed(pend[0], n) and pend[0][1] - s <= PRO:
                    issue1(pend.pop(0))
    assert not pend
    TS(a, 18)
    a("v_mov_b32 v3, v6")
    g2_setup(a)
    g2_bpre(a)
    a("s_barrier")
    g2_bpre_lds(a)
    c0 = math.sqrt(2.0/math.pi)
    kA = -2.0*LOG2E*c0
    kB = kA*0.044715
    a(f"""
    v_and_b32 v2, 15, v0
    v_lshrrev_b32 v7, 1, v3
    v_lshl_add_u32 v2, v7, 5, v2
    v_lshlrev_b32 v1, 4, v2
    v_and_b32 v7, 1, v3
    v_lshl_add_u32 v1, v7, 3, v1
    s_lshl_b32 s12, s11, 3
    s_lshl_b32 s13, s3, 1
    s_add_u32 s12, s12, s13
    s_mul_i32 s12, s12, 112
    s_lshl_b32 s13, s10, 2
    s_add_u32 s12, s12, s13
    s_lshl_b32 s12, s12, 10
    s_add_u32 s13, s12, {112*1024}
    s_mov_b32 s46, {f32(kA)}
    s_mov_b32 s47, {f32(kB)}
    s_lshl_b32 s60, s11, 2
    s_add_u32 s60, s60, s3
    s_lshl_b32 s60, s60, 2
    s_and_b32 s14, s2, 3
    s_add_u32 s60, s60, s14
    s_lshl_b32 s60, s60, 8
    """)
    a("v_mov_b32 v31, s46")
    for nb in range(4):
        for rb in range(4):
            g = acc(0, nb, rb); u = acc(1, nb, rb)
            o = 8 + ((nb*4+rb) % 4)*2
            G, S, U = 16, 20, 24
            for j in range(4): a(f"v_cvt_pk_bf16_f32 v{G+j}, 0, v{g+j}")
            for j in range(4): a(f"v_mul_f32_e32 v{S+j}, v{G+j}, v{G+j}")
            for j in range(4): a(f"v_fma_f32 v{S+j}, v{S+j}, s47, v31")
            for j in range(4): a(f"v_mul_f32_e32 v{S+j}, v{S+j}, v{G+j}")
            for j in range(4):
                a(f"v_exp_f32_e32 v{S+j}, v{S+j}")
                a(f"v_cvt_pk_bf16_f32 v{U+j}, 0, v{u+j}")
            for j in range(4): a(f"v_add_f32_e32 v{S+j}, 1.0, v{S+j}")
            for j in range(4): a(f"v_rcp_f32_e32 v{S+j}, v{S+j}")
            for j in range(4): a(f"v_mul_f32_e32 v{S+j}, v{S+j}, v{G+j}")
            for j in range(4): a(f"v_cvt_pk_bf16_f32 v{S+j}, 0, v{S+j}")
            for j in range(4): a(f"v_mul_f32_e32 v{S+j}, v{S+j}, v{U+j}")
            a(f"v_cvt_pk_bf16_f32 v{o}, v{S}, v{S+1}")
            a(f"v_cvt_pk_bf16_f32 v{o+1}, v{S+2}, v{S+3}")
            a(f"buffer_store_dwordx2 v[{o}:{o+1}], v1, s[28:31], s{12+(rb>>1)} offen offset:{nb*1024+(rb&1)*256} sc1")
    TS(a, 19)
    a("""
    v_mov_b32 v6, 0
    v_mov_b32 v7, 1
    s_waitcnt vmcnt(0)
    s_mov_b64 exec, 1
    buffer_atomic_add v7, v6, s[32:35], s60 offen
    s_mov_b64 exec, -1
    """)
    TS(a, 20)

def k1(a):
    header(a, "main_kernel")
    a(f"""
    s_cmp_ge_u32 s2, 512
    s_cbranch_scc1 L1_exit
    s_load_dwordx4 s[4:7], s[0:1], 64
    s_load_dwordx2 s[8:9], s[0:1], 48
    s_load_dwordx2 s[16:17], s[0:1], 104
    s_load_dwordx2 s[56:57], s[0:1], 0
    s_load_dwordx2 s[58:59], s[0:1], 88
    v_lshrrev_b32 v5, 6, v0
    v_mov_b32 v15, v0
    v_readfirstlane_b32 s3, v5      ; wave
    v_and_b32 v0, 63, v0
    s_mov_b32 s96, s2
    s_waitcnt lgkmcnt(0)
    s_cmp_lt_u32 s2, 256
    s_cbranch_scc1 {"L1_exit" if os.environ.get("NOC") else "L1_conv"}
    {"s_endpgm" if os.environ.get("NOG") else ""}
    s_sub_u32 s2, s2, 256
    """)
    srd(a, 28, 16, 17, HB, HSZ)
    a("""
    s_cmp_ge_u32 s2, 224
    s_cbranch_scc1 L1_h
    """)
    gemm1(a)
    gemm2(a)
    a("L1_h:")
    TS(a, 0)
    g2_setup(a)
    g2_bpre(a)
    g2_bpre_lds(a)
    a("s_branch L1_g2")
    a("L1_conv:")
    cpath(a)
    a("""
    L1_exit:
    s_endpgm
    """)

def build():
    launches = [f"; @launch kernel=prep_kernel grid=({NK0},1,1) block=(256,1,1) lds=16384",
                "; @launch kernel=main_kernel grid=(512,1,1) block=(256,1,1) lds=65536"]
    descs = [desc("prep_kernel", 72), desc("main_kernel", 256, acc=256)]
    body = A()
    k0(body)
    k1(body)
    txt = "\n".join(launches) + "\n"
    txt += '.amdgcn_target "amdgcn-amd-amdhsa--gfx950"\n.text\n'
    txt += body.text()
    txt += '.section .rodata,"a"\n' + "".join(descs)
    return txt

if __name__ == "__main__":
    out = sys.argv[1] if len(sys.argv) > 1 else OUT
    open(out, "w").write(build())
    print("wrote", out)
```

```python
import sys, struct, math, os
OUT = "parallel_sum__ssm_conv_s4d__glu_gated_geglu__prompt.s"

class A:
    def __init__(self): self.l = []
    def __call__(self, s):
        for ln in s.strip("\n").split("\n"):
            self.l.append("    " + ln.strip() if not ln.strip().endswith(":") else ln.strip())
    def raw(self, s): self.l.append(s)
    def text(self): return "\n".join(self.l) + "\n"

def f32(x): return "0x%08x" % struct.unpack("<I", struct.pack("<f", x))[0]
LOG2E = 1.4426950408889634

XN, XNT, HB, AT, WF, FLG = 0, 2<<20, 8<<20, 16<<20, 18<<20, 20<<20
SZ2M = 2<<20
HSZ = 2048*1792*2
POLL_LIMIT = 60000

def srd(a, s, lo, hi, off, size):
    if off:
        a(f"s_add_u32 s{s}, s{lo}, 0x{off:x}")
        a(f"s_addc_u32 s{s+1}, s{hi}, 0")
        a(f"s_and_b32 s{s+1}, s{s+1}, 0xffff")
    else:
        a(f"s_mov_b32 s{s}, s{lo}")
        a(f"s_and_b32 s{s+1}, s{hi}, 0xffff")
    a(f"s_mov_b32 s{s+2}, 0x{size:x}")
    a(f"s_mov_b32 s{s+3}, 0x20000")

def srd_dyn(a, s, lo, hi, off, sx, size):
    a(f"s_add_u32 s{s}, s{lo}, 0x{off:x}")
    a(f"s_addc_u32 s{s+1}, s{hi}, 0")
    a(f"s_add_u32 s{s}, s{s}, s{sx}")
    a(f"s_addc_u32 s{s+1}, s{s+1}, 0")
    a(f"s_and_b32 s{s+1}, s{s+1}, 0xffff")
    a(f"s_mov_b32 s{s+2}, 0x{size:x}")
    a(f"s_mov_b32 s{s+3}, 0x20000")

def header(a, name):
    a.raw(f".globl {name}")
    a.raw(".p2align 8")
    a.raw(f".type {name},@function")
    a.raw(f"{name}:")

def desc(name, vgpr, sgpr=100, acc=None):
    if acc is None: acc = (vgpr + 3)//4*4
    return f""".p2align 6
.amdhsa_kernel {name}
  .amdhsa_next_free_vgpr {vgpr}
  .amdhsa_next_free_sgpr {sgpr}
  .amdhsa_accum_offset {acc}
  .amdhsa_group_segment_fixed_size 0
  .amdhsa_kernarg_size 112
  .amdhsa_user_sgpr_count 2
  .amdhsa_user_sgpr_kernarg_segment_ptr 1
  .amdhsa_system_sgpr_workgroup_id_x 1
.end_amdhsa_kernel
"""

TSON = os.environ.get("TS", "") != ""
TSWG = int(os.environ.get("TS", "0") or 0)
def TS(a, i):
    if not TSON: return
    a("s_memtime s[94:95]")
    a("s_waitcnt lgkmcnt(0)")
    a(f"s_mov_b32 s{64+i}, s94")
def TR(a, i):
    if not TSON: return
    a("s_memrealtime s[94:95]")
    a("s_waitcnt lgkmcnt(0)")
    a(f"s_mov_b32 s{64+i}, s94")
def TSDUMP(a, n, tag):
    if not TSON: return
    a(f"""
    s_cmp_lg_u32 s96, {TSWG}
    s_cbranch_scc1 Lts_{tag}
    s_cmp_lg_u32 s3, 0
    s_cbranch_scc1 Lts_{tag}
    s_load_dwordx2 s[92:93], s[0:1], 96
    s_waitcnt lgkmcnt(0)
    """)
    srd(a, 88, 92, 93, 0, 256)
    a("v_mov_b32 v1, 0")
    for i in range(n):
        a(f"v_mov_b32 v2, s{64+i}")
        a(f"buffer_store_dword v2, v1, s[88:91], 0 offen offset:{4*i}")
    a(f"Lts_{tag}:")

NK0 = 241
def k0(a):
    header(a, "prep_kernel")
    a(f"""
    s_cmp_ge_u32 s2, {NK0}
    s_cbranch_scc1 L0_exit
    s_load_dwordx2 s[4:5], s[0:1], 0
    s_load_dwordx2 s[18:19], s[0:1], 80
    s_load_dwordx2 s[16:17], s[0:1], 104
    s_waitcnt lgkmcnt(0)
    s_cmp_ge_u32 s2, 128
    s_cbranch_scc1 L0_swz
    """)
    srd(a, 20, 4, 5, 0, SZ2M)
    srd(a, 24, 16, 17, XN, SZ2M)
    srd(a, 28, 16, 17, XNT, SZ2M)
    a("""
    s_lshl_b32 s3, s2, 4            ; r0
    v_lshrrev_b32 v1, 4, v0
    v_and_b32 v2, 15, v0            ; j
    v_add_u32 v3, s3, v1            ; row
    v_lshlrev_b32 v3, 10, v3
    v_lshl_add_u32 v3, v2, 4, v3    ; voffset
    """)
    for c in range(4):
        a(f"buffer_load_dwordx4 v[{8+4*c}:{11+4*c}], v3, s[20:23], 0 offen offset:{c*256}")
    a("s_waitcnt vmcnt(0)")
    for i in range(16):
        a(f"v_lshlrev_b32 v{32+2*i}, 16, v{8+i}")
        a(f"v_and_b32 v{33+2*i}, 0xffff0000, v{8+i}")
    a("v_add_f32 v4, v32, v33")
    a("v_add_f32 v5, v34, v35")
    for i in range(36, 64, 2):
        a(f"v_add_f32 v4, v4, v{i}")
        a(f"v_add_f32 v5, v5, v{i+1}")
    a("v_add_f32 v4, v4, v5")
    def rowsum(r):
        for ror in (8, 4, 2, 1):
            a("s_nop 1")
            a(f"v_add_f32_dpp v{r}, v{r}, v{r} row_ror:{ror} row_mask:0xf bank_mask:0xf")
    rowsum(4)
    a(f"v_mul_f32 v4, {f32(1.0/512)}, v4")
    a("v_sub_f32 v6, v32, v4")
    a("v_mul_f32 v5, v6, v6")
    a("v_sub_f32 v6, v33, v4")
    a("v_mul_f32 v7, v6, v6")
    for i in range(34, 64, 2):
        a(f"v_sub_f32 v6, v{i}, v4")
        a(f"v_fma_f32 v5, v6, v6, v5")
        a(f"v_sub_f32 v64, v{i+1}, v4")
        a(f"v_fma_f32 v7, v64, v64, v7")
    a("v_add_f32 v5, v5, v7")
    rowsum(5)
    a(f"""
    v_mul_f32 v5, {f32(1.0/512)}, v5
    v_cvt_pk_bf16_f32 v4, v4, v5
    v_and_b32 v5, 0xffff0000, v4
    v_lshlrev_b32 v4, 16, v4
    v_add_f32 v5, {f32(1e-5)}, v5
    v_cvt_pk_bf16_f32 v5, v5, v5
    v_lshlrev_b32 v5, 16, v5
    v_sqrt_f32 v5, v5
    s_nop 0
    v_cvt_pk_bf16_f32 v5, v5, v5
    v_lshlrev_b32 v5, 16, v5         ; s (bf16)
    v_rcp_f32 v6, v5
    s_nop 0
    """)
    for i in range(16):
        x0, x1 = 32+2*i, 33+2*i
        a(f"""
        v_sub_f32 v{x0}, v{x0}, v4
        v_sub_f32 v{x1}, v{x1}, v4
        v_cvt_pk_bf16_f32 v7, v{x0}, v{x1}
        v_lshlrev_b32 v{x0}, 16, v7
        v_and_b32 v{x1}, 0xffff0000, v7
        v_mul_f32 v64, v{x0}, v6
        v_mul_f32 v65, v{x1}, v6
        v_fma_f32 v66, -v64, v5, v{x0}
        v_fma_f32 v67, -v65, v5, v{x1}
        v_fma_f32 v64, v66, v6, v64
        v_fma_f32 v65, v67, v6, v65
        v_cvt_pk_bf16_f32 v{8+i}, v64, v65
        """)
    a("""
    v_lshlrev_b32 v7, 10, v1
    v_lshl_add_u32 v7, v2, 4, v7
    v_lshrrev_b32 v64, 2, v2
    v_lshlrev_b32 v64, 10, v64
    v_and_b32 v65, 3, v2
    v_lshl_add_u32 v64, v65, 8, v64
    v_lshl_add_u32 v64, v1, 4, v64
    s_lshl_b32 s34, s3, 10          ; r0*1024 = rb*16384
    s_add_u32 s35, s34, 0x1000
    s_add_u32 s36, s34, 0x2000
    s_add_u32 s37, s34, 0x3000
    """)
    for c in range(4):
        a(f"buffer_store_dwordx4 v[{8+4*c}:{11+4*c}], v64, s[24:27], s{34+c} offen")
        a(f"ds_write_b128 v7, v[{8+4*c}:{11+4*c}] offset:{c*256}")
    a("""
    s_waitcnt lgkmcnt(0)
    s_barrier
    v_lshlrev_b32 v7, 2, v0
    """)
    for r in range(16):
        a(f"ds_read_b32 v{32+r}, v7 offset:{r*1024}")
    a("""
    s_mov_b32 s32, 0x05040100
    s_mov_b32 s33, 0x07060302
    v_lshlrev_b32 v3, 13, v0        ; d=2*tid -> d*4096
    s_lshl_b32 s3, s3, 1            ; r0*2 bytes
    v_add_u32 v3, s3, v3
    s_waitcnt lgkmcnt(0)
    """)
    for q in range(8):
        a(f"v_perm_b32 v{48+q}, v{33+2*q}, v{32+2*q}, s32")
        a(f"v_perm_b32 v{56+q}, v{33+2*q}, v{32+2*q}, s33")
    a("""
    buffer_store_dwordx4 v[48:51], v3, s[28:31], 0 offen
    buffer_store_dwordx4 v[52:55], v3, s[28:31], 0 offen offset:16
    v_add_u32 v3, 0x1000, v3
    buffer_store_dwordx4 v[56:59], v3, s[28:31], 0 offen
    buffer_store_dwordx4 v[60:63], v3, s[28:31], 0 offen offset:16
    s_endpgm
    """)
    a(f"""
    L0_swz:
    s_cmp_ge_u32 s2, 240
    s_cbranch_scc1 L0_zero
    """)
    srd(a, 24, 16, 17, WF, 1792*1024)
    srd(a, 20, 18, 19, 0, 1792*1024)
    a("""
    s_sub_u32 s3, s2, 128
    s_lshl_b32 s32, s3, 14
    v_lshlrev_b32 v1, 2, v0
    s_add_u32 s33, s32, 0x1000
    s_add_u32 s34, s32, 0x2000
    s_add_u32 s35, s32, 0x3000
    """)
    for e in range(16):
        a(f"buffer_load_dword v{8+e}, v1, s[20:23], s{32+e//4} offen offset:{(e%4)*1024}")
    a("""
    v_lshrrev_b32 v2, 4, v0
    v_mul_u32_u24 v2, 112*1024, v2
    v_and_b32 v3, 15, v0
    v_lshl_add_u32 v2, v3, 5, v2
    s_lshl_b32 s36, s3, 10
    s_mov_b32 s37, 0x05040100
    s_mov_b32 s38, 0x07060302
    """)
    for h in range(2):
        a(f"s_waitcnt vmcnt({8*(1-h)})")
        for p in range(4):
            a(f"v_perm_b32 v{32+8*h+p}, v{9+8*h+2*p}, v{8+8*h+2*p}, s37")
            a(f"v_perm_b32 v{36+8*h+p}, v{9+8*h+2*p}, v{8+8*h+2*p}, s38")
    for h in range(2):
        a(f"buffer_store_dwordx4 v[{32+8*h}:{35+8*h}], v2, s[24:27], s36 offen offset:{512*h}")
        a(f"buffer_store_dwordx4 v[{36+8*h}:{39+8*h}], v2, s[24:27], s36 offen offset:{512*h+16}")
    a("s_endpgm")
    a("L0_zero:")
    srd(a, 24, 16, 17, FLG, 65536)
    a("""
    v_lshlrev_b32 v1, 8, v0
    v_mov_b32 v2, 0
    buffer_store_dword v2, v1, s[24:27], 0 offen
    L0_exit:
    s_endpgm
    """)

def cpath(a):
    RS = 528
    WB = 16*RS
    TRS = 208
    KH, KL, UB = 0, 7680, 15360
    CB = 32768
    TS(a, 0)
    TR(a, 7)
    if os.environ.get("CPRIO"): a(f"s_setprio {os.environ['CPRIO']}")
    a("""
    s_load_dwordx8 s[72:79], s[0:1], 8
    s_load_dwordx2 s[80:81], s[0:1], 40
    s_lshl_b32 s10, s2, 1           ; channel c0
    s_lshl_b32 s11, s10, 12
    """)
    srd_dyn(a, 20, 16, 17, XNT, 11, 8192)
    srd_dyn(a, 32, 16, 17, AT, 11, 8192)
    srd(a, 36, 8, 9, 0, 1024)
    a("s_waitcnt lgkmcnt(0)")
    srd(a, 24, 72, 73, 0, 131072)
    srd(a, 28, 74, 75, 0, 131072)
    srd(a, 48, 76, 77, 0, 131072)
    srd(a, 52, 78, 79, 0, 131072)
    srd(a, 56, 80, 81, 0, 1024)
    a(f"""
    s_lshl_b32 s12, s2, 9           ; c0*256 bytes
    v_lshl_add_u32 v2, v15, 1, s12
    s_lshl_b32 s12, s2, 2
    v_lshrrev_b32 v3, 7, v15
    v_lshl_add_u32 v3, v3, 1, s12
    buffer_load_ushort v16, v2, s[24:27], 0 offen
    buffer_load_ushort v17, v2, s[28:31], 0 offen
    buffer_load_ushort v18, v2, s[48:51], 0 offen
    buffer_load_ushort v19, v2, s[52:55], 0 offen
    buffer_load_ushort v20, v3, s[56:59], 0 offen
    s_lshr_b32 s14, s3, 1
    s_lshl_b32 s14, s14, 15
    s_and_b32 s15, s3, 1
    s_mul_i32 s15, s15, {WB}
    s_add_u32 s14, s14, s15
    s_add_u32 s14, s14, {UB}
    v_lshl_add_u32 v2, v0, 3, s14
    v_and_b32 v4, 15, v0            ; r / j
    v_lshrrev_b32 v5, 4, v0         ; q
    v_mul_u32_u24 v3, {RS}, v4
    v_lshl_add_u32 v3, v5, 4, v3
    v_add_u32 v3, s14, v3
    v_mul_u32_u24 v60, {4*TRS}, v5
    v_lshl_add_u32 v60, v4, 2, v60
    v_add_u32 v60, s14, v60
    v_mov_b32 v6, 0
    v_cmp_le_u32 vcc, 32, v15
    s_nop 1
    v_addc_co_u32 v6, vcc, 0, v6, vcc
    v_cmp_le_u32 vcc, 64, v15
    s_nop 1
    v_addc_co_u32 v6, vcc, 0, v6, vcc
    v_cmp_le_u32 vcc, 128, v15
    s_nop 1
    v_addc_co_u32 v6, vcc, 0, v6, vcc     ; s
    v_lshlrev_b32 v7, v6, 1
    v_lshrrev_b32 v7, 1, v7
    v_add_u32 v7, -1, v7                  ; half-1
    v_lshlrev_b32 v8, 3, v15              ; l0
    v_lshlrev_b32 v9, 3, v6               ; 8s
    v_lshrrev_b32 v12, v6, 16             ; 16>>s
    v_cmp_eq_u32 vcc, 0, v6
    """)
    for e in range(8):
        a(f"""
        v_add_u32 v10, {e}, v8
        v_lshrrev_b32 v11, v6, v10
        v_and_b32 v11, 1, v11
        v_add3_u32 v11, v10, v7, v11
        v_lshrrev_b32 v11, v6, v11
        v_cndmask_b32 v11, v11, v10, vcc      ; m
        v_lshlrev_b32 v11, v6, v11            ; p
        v_lshrrev_b32 v10, 8, v11
        v_mad_u32_u24 v10, v10, v12, v9       ; 8s + (p>>8)*(16>>s)
        v_and_b32 v13, 15, v11
        v_lshrrev_b32 v13, v6, v13
        v_add_u32 v10, v10, v13               ; col
        v_bfe_u32 v11, v11, 4, 4              ; row
        v_mul_u32_u24 v11, {TRS}, v11
        v_lshl_add_u32 v{52+e}, v10, 2, v11
        """)
    a("s_waitcnt vmcnt(0)")
    TS(a, 1)
    a(f"""
    v_lshlrev_b32 v16, 16, v16
    v_lshlrev_b32 v17, 16, v17
    v_lshlrev_b32 v18, 16, v18
    v_lshlrev_b32 v19, 16, v19
    v_lshlrev_b32 v20, 16, v20
    v_mul_f32 v16, {f32(LOG2E)}, v16
    v_mul_f32 v20, {f32(LOG2E)}, v20
    v_exp_f32 v16, v16
    v_exp_f32 v20, v20
    s_nop 0
    v_cvt_pk_bf16_f32 v16, v16, v20
    v_and_b32 v20, 0xffff0000, v16    ; dt
    v_lshlrev_b32 v16, 16, v16
    v_mul_f32 v16, v16, v20
    v_mul_f32 v17, v17, v20
    v_mul_f32 v18, v18, v20
    v_mul_f32 v19, v19, v20
    v_mul_f32 v16, {f32(-LOG2E)}, v16
    v_mul_f32 v17, {f32(1.0/(2*math.pi))}, v17
    v_add_f32 v18, v18, v18
    v_mul_f32 v19, -2.0, v19
    """)
    regs = {"C": 18}
    nxt = [184]
    def R(name):
        if name not in regs:
            regs[name] = nxt[0]; nxt[0] += 2
            assert nxt[0] <= 250
        return regs[name]
    def pr(r): return f"v[{r}:{r+1}]"
    anch = [("W16", 16, 1), ("W64", 64, 1), ("W128", 128, 1), ("Z1", 1, 0), ("Z4", 4, 0), ("Z8", 8, 0), ("Z256", 256, 0), ("Z512", 512, 0), ("Z1024", 1024, 0)]
    for k, (nm, p, cj) in enumerate(anch):
        d = R(nm); t = 20 + 2*k
        a(f"v_mul_f32 v{t}, {f32(float(p))}, v16")
        a(f"v_mul_f32 v{t+1}, {f32(float(p))}, v17")
        a(f"v_exp_f32 v{t}, v{t}")
        a(f"v_cos_f32 v{d}, v{t+1}")
        a(f"v_sin_f32 v{d+1}, {'-' if cj else ''}v{t+1}")
    a("s_nop 0")
    for k, (nm, p, cj) in enumerate(anch):
        d = R(nm); t = 20 + 2*k
        a(f"v_pk_mul_f32 {pr(d)}, {pr(d)}, {pr(t)} op_sel:[0,0] op_sel_hi:[1,0]")
    tcnt = [0]
    def cmul(d, x, y):
        d, x, y = R(d), R(x), R(y)
        tmp = 40 + 2*(tcnt[0] % 2); tcnt[0] += 1
        a(f"v_pk_mul_f32 {pr(tmp)}, {pr(x)}, {pr(y)} op_sel:[1,1] op_sel_hi:[0,1]")
        a(f"v_pk_fma_f32 {pr(d)}, {pr(x)}, {pr(y)}, {pr(tmp)} op_sel:[0,0,0] op_sel_hi:[1,0,1] neg_lo:[0,0,1]")
    scnt = [0]
    nds = [0]
    def put(nm, row):
        v = R(nm)
        h = 44 + 2*(scnt[0] % 2); u = 48 + 2*(scnt[0] % 2); scnt[0] += 1
        a(f"""
        v_cvt_pk_bf16_f32 v{h}, v{v}, v{v+1}
        v_lshlrev_b32 v{u}, 16, v{h}
        v_and_b32 v{u+1}, 0xffff0000, v{h}
        v_pk_add_f32 {pr(u)}, {pr(v)}, {pr(u)} neg_lo:[0,1] neg_hi:[0,1]
        v_cvt_pk_bf16_f32 v{h+1}, v{u}, v{u+1}
        ds_write_b64 v2, {pr(h)} offset:{row*RS}
        """)
        nds[0] += 1
    A1, A2, BO, ACC = 64, 96, 128, 160
    cmul("w2", "W16", "W16"); cmul("w3", "w2", "W16"); cmul("W192", "W128", "W64")
    regs["w1"] = regs["W16"]
    for aa in range(4):
        if aa == 0: regs["CW"] = regs["C"]
        else:
            regs["CW"] = R("CWt"); cmul("CWt", "C", f"W{64*aa}")
        put("CW", 4*aa)
        for b in range(1, 4):
            nm = f"T{b%2}"
            cmul(nm, "CW", f"w{b}"); put(nm, 4*aa+b)
    for ks in range(8):
        a(f"ds_read_b128 v[{A1+4*ks}:{A1+4*ks+3}], v3 offset:{ks*64}")
        a(f"ds_read2_b32 v[{A2+4*ks}:{A2+4*ks+1}], v3 offset0:{ks*16+1} offset1:{ks*16}")
        a(f"ds_read2_b32 v[{A2+4*ks+2}:{A2+4*ks+3}], v3 offset0:{ks*16+3} offset1:{ks*16+2}")
        nds[0] += 3
    def breads():
        for ks in range(8):
            a(f"ds_read_b128 v[{BO+4*ks}:{BO+4*ks+3}], v3 offset:{ks*64}")
            nds[0] += 1
        return nds[0]
    def mfmas(tau, mark):
        n = nds[0] - mark
        assert n <= 15
        a(f"s_waitcnt lgkmcnt({n})")
        for ks in range(8):
            for h, A_ in enumerate((A1, A2)):
                c = ACC + tau*8 + h*4
                cin = "0" if ks == 0 else f"v[{c}:{c+3}]"
                a(f"v_mfma_f32_16x16x32_bf16 v[{c}:{c+3}], v[{A_+4*ks}:{A_+4*ks+3}], v[{BO+4*ks}:{BO+4*ks+3}], {cin}")
    a(f"v_mov_b32 v{R('Z0')}, 1.0")
    a(f"v_mov_b32 v{R('Z0')+1}, 0")
    cmul("Z2", "Z1", "Z1"); cmul("Z3", "Z2", "Z1"); cmul("Z12", "Z8", "Z4")
    for aa in range(4):
        put(f"Z{4*aa}", 4*aa)
        for b in range(1, 4):
            j = 4*aa+b
            if aa > 0:
                nm = f"Z{j}" if j % 2 == 0 else f"T{(j//2)%2}"
                cmul(nm, f"Z{4*aa}", f"Z{b}")
            else: nm = f"Z{j}"
            put(nm, j)
    mark = breads()
    cmul("Z768", "Z512", "Z256")
    vals = [("Z256", 2*j) for j in range(8)] + [("Z512", 4*r) for r in range(4)] + [("Z768", 4*r) for r in range(4)]
    for j, (bs, e) in enumerate(vals):
        if e == 0: nm = bs
        else:
            nm = f"T{j%2}"; cmul(nm, bs, f"Z{e}")
        put(nm, j)
        if j == 3: mfmas(0, mark)
    mark = breads()
    cmul("Z1280", "Z1024", "Z256"); cmul("Z1536", "Z1024", "Z512"); cmul("Z1792", "Z1024", "Z768"); cmul("Z2048", "Z1024", "Z1024")
    vals = [(f"Z{1024+256*c}", 8*e) for c in range(4) for e in range(2)] + [("Z2048", 0)]
    for j, (bs, e) in enumerate(vals):
        if e == 0: nm = bs
        else:
            nm = f"T{j%2}"; cmul(nm, bs, f"Z{e}")
        put(nm, j)
        if j == 3: mfmas(1, mark)
    mark = breads()
    LR = [dict(U=184, Um=188, D=190, Ue=192), dict(U=200, Um=204, D=206, Ue=208)]
    a(f"""
    v_lshlrev_b32 v1, 4, v15
    v_add_u32 v4, -8, v1
    s_lshl_b32 s12, s10, 1
    v_mov_b32 v8, s12
    s_mov_b32 s43, 0
    s_mov_b32 s44, 4096
    v_and_b32 v5, 31, v0
    v_lshrrev_b32 v6, 5, v0
    s_lshr_b32 s13, s3, 1
    s_lshl_b32 s13, s13, 11
    s_and_b32 s14, s3, 1
    s_lshl_b32 s14, s14, 5
    s_add_u32 s13, s13, s14
    v_lshlrev_b32 v13, 6, v5
    v_lshl_add_u32 v13, v6, 4, v13
    v_add_u32 v13, s13, v13
    """)
    for c in range(2):
        R_ = LR[c]
        a(f"""
        buffer_load_dwordx4 v[{R_['U']}:{R_['U']+3}], v1, s[20:23], s{43+c} offen
        buffer_load_dwordx2 v[{R_['Um']}:{R_['Um']+1}], v4, s[20:23], s{43+c} offen
        """)
    for c in range(2):
        R_ = LR[c]
        a(f"""
        buffer_load_ushort v{R_['D']}, v8, s[36:39], 0 offen offset:{2*c}
        buffer_load_dwordx4 v[{R_['Ue']}:{R_['Ue']+3}], v13, s[20:23], s{43+c} offen
        """)
    mfmas(2, mark)
    TS(a, 2)
    a(f"""
    v_mov_b32 v40, 0
    v_mov_b32 v41, 0
    v_mov_b32 v42, 0
    v_mov_b32 v43, 0
    v_cmp_gt_u32 vcc, 160, v15
    s_and_saveexec_b64 s[40:41], vcc
    ds_write_b128 v1, v[40:43] offset:{KH}
    ds_write_b128 v1, v[40:43] offset:{KL}
    ds_write_b128 v1, v[40:43] offset:{CB+KH}
    ds_write_b128 v1, v[40:43] offset:{CB+KL}
    s_mov_b64 exec, s[40:41]
    s_nop 3
    """)
    for tau in range(3):
        for r in range(4):
            c = ACC + tau*8 + r
            a(f"v_add_f32 v{c}, v{c}, v{c+4}")
            a(f"ds_write_b32 v60, v{c} offset:{r*TRS+tau*64}")
    a(f"""
    v_lshrrev_b32 v7, 2, v15
    v_mul_u32_u24 v7, 80, v7
    v_and_b32 v12, 3, v15
    v_lshl_add_u32 v7, v12, 4, v7
    v_lshrrev_b32 v9, 2, v15
    v_mul_u32_u24 v9, 4160, v9
    v_lshl_add_u32 v9, v12, 4, v9
    v_sub_u32 v12, 255, v15
    v_lshlrev_b32 v12, 4, v12
    s_mov_b32 s42, 0xffff
    ; A base
    v_sub_u32 v3, 3, v5
    v_and_b32 v3, 3, v3             ; r
    v_mul_u32_u24 v1, 4160, v3
    v_add_u32 v3, v3, v5            ; b+r
    v_lshlrev_b32 v3, 1, v3
    v_sub_u32 v1, v1, v3
    v_lshl_add_u32 v1, v6, 4, v1
    s_lshl_b32 s14, s3, 6
    s_sub_u32 s15, {UB+4094-3840}, s14
    v_add_u32 v1, s15, v1
    ; B base
    v_mul_u32_u24 v2, 80, v5
    v_lshl_add_u32 v2, v6, 4, v2
    s_sub_u32 s14, 3, s3
    s_mul_i32 s14, s14, 80
    v_add_u32 v2, s14, v2
    s_waitcnt lgkmcnt(0)
    s_barrier
    """)
    for c in range(2):
        for e in range(8):
            a(f"ds_read2st64_b32 v[{64+c*16+2*e}:{65+c*16+2*e}], v{52+e} offset0:{128*c+60} offset1:{128*c+93}")
    for c in range(2):
        a(f"s_waitcnt lgkmcnt({8*(1-c)})")
        for e in range(8):
            a(f"v_add_f32 v{64+c*16+2*e}, v{64+c*16+2*e}, v{65+c*16+2*e}")
        if c == 1:
            a("s_barrier")
        for i in range(4):
            k0_, k1_ = 64+c*16+4*i, 66+c*16+4*i
            a(f"""
            v_cvt_pk_bf16_f32 v{32+8*c+i}, v{k0_}, v{k1_}
            v_lshlrev_b32 v20, 16, v{32+8*c+i}
            v_and_b32 v21, 0xffff0000, v{32+8*c+i}
            v_sub_f32 v20, v{k0_}, v20
            v_sub_f32 v21, v{k1_}, v21
            v_cvt_pk_bf16_f32 v{36+8*c+i}, v20, v21
            """)
        a(f"ds_write_b128 v7, v[{32+8*c}:{35+8*c}] offset:{c*CB+KH+32*80}")
        a(f"ds_write_b128 v7, v[{36+8*c}:{39+8*c}] offset:{c*CB+KL+32*80}")
    a(f"""
    v_mov_b32 v16, 0
    v_mov_b32 v17, 0
    v_mov_b32 v18, 0
    v_mov_b32 v19, 0
    v_cmp_gt_u32 vcc, 16, v15
    s_and_saveexec_b64 s[40:41], vcc
    ds_write_b128 v9, v[16:19] offset:{UB+4096}
    ds_write_b128 v9, v[16:19] offset:{CB+UB+4096}
    s_mov_b64 exec, s[40:41]
    v_cmp_eq_u32 vcc, 0, v15
    """)
    for c in range(2):
        R_ = LR[c]
        a(f"s_waitcnt vmcnt({4+2*(1-c)})")
        if c == 1:
            a(f"v_cndmask_b32_e64 v{R_['Um']}, v{R_['Um']}, 0, vcc")
            a(f"v_cndmask_b32_e64 v{R_['Um']+1}, v{R_['Um']+1}, 0, vcc")
        S = {-2: R_['Um'], -1: R_['Um']+1, 0: R_['U'], 1: R_['U']+1, 2: R_['U']+2, 3: R_['U']+3}
        for r in range(4):
            d = 96 + 16*c + 4*r
            for j in range(4):
                if r % 2 == 0:
                    p = 3 - r//2 - j
                    a(f"v_alignbit_b32 v{d+j}, v{S[p]}, v{S[p]}, 16")
                else:
                    p = (7-r)//2 - j
                    a(f"v_bfi_b32 v{d+j}, s42, v{S[p]}, v{S[p-1]}")
            a(f"ds_write_b128 v12, v[{d}:{d+3}] offset:{c*CB+UB+r*4160}")
    a("s_waitcnt lgkmcnt(0)")
    a("s_barrier")
    TS(a, 3)
    steps = [(c, i, ks) for c in range(2) for i in range(16) for ks in range(2)]
    def loads(n):
        c, i, ks = steps[n]
        af = 16 + (n % 2)*4; bf_ = 24 + (n % 2)*16
        off = c*CB + 64*(60-4*i) + 32*ks
        a(f"ds_read_b64 v[{af}:{af+1}], v1 offset:{off}")
        a(f"ds_read_b64 v[{af+2}:{af+3}], v1 offset:{off+8}")
        cnt = 2
        for blk in range(2):
            if blk == 0 and i >= 8: continue
            for hl in range(2):
                img = KH if hl == 0 else KL
                o = c*CB + img + (32+32*blk-4*i)*80 + 32*ks - 240
                r_ = bf_ + (blk*2+hl)*4
                a(f"ds_read_b128 v[{r_}:{r_+3}], v2 offset:{o}")
                cnt += 1
        return cnt
    loads(0)
    NST = len(steps)
    for n in range(NST):
        c, i, ks = steps[n]
        if n+1 < NST:
            cn = loads(n+1)
            a(f"s_waitcnt lgkmcnt({cn})")
        else:
            a("s_waitcnt lgkmcnt(0)")
        af = 16 + (n % 2)*4; bf_ = 24 + (n % 2)*16
        for hl in range(2):
            for blk in range(2):
                if blk == 0 and i >= 8: continue
                r_ = bf_ + (blk*2+hl)*4
                ac = 64 + c*32 + blk*16
                cin = "0" if (i == 0 and ks == 0 and hl == 0) else f"v[{ac}:{ac+15}]"
                a(f"v_mfma_f32_32x32x16_bf16 v[{ac}:{ac+15}], v[{af}:{af+3}], v[{r_}:{r_+3}], {cin}")
    TS(a, 4)
    srd(a, 24, 16, 17, FLG, 65536)
    a("""
    s_nop 7
    s_barrier
    s_lshl_b32 s14, s3, 13
    v_lshlrev_b32 v1, 4, v0
    v_add_u32 v2, s14, v1
    """)
    for c in range(2):
        for qq in range(8):
            a(f"ds_write_b128 v2, v[{64+32*c+4*qq}:{67+32*c+4*qq}] offset:{c*CB+qq*1024}")
    a("""
    s_lshl_b32 s14, s3, 11
    v_lshlrev_b32 v1, 4, v5
    v_lshl_add_u32 v1, v6, 10, v1
    v_add_u32 v1, s14, v1
    s_lshr_b32 s45, s2, 5
    s_add_u32 s45, s45, 128
    s_lshl_b32 s45, s45, 8
    s_waitcnt lgkmcnt(0)
    s_barrier
    """)
    for c in range(2):
        for ww in range(4):
            for e in range(2):
                r_ = 64 + c*32 + (ww*2+e)*4
                a(f"ds_read_b128 v[{r_}:{r_+3}], v1 offset:{c*CB+ww*8192+e*512}")
    a("s_waitcnt lgkmcnt(0) vmcnt(0)")
    for c in range(2):
        R_ = LR[c]
        a(f"v_lshlrev_b32 v{R_['D']}, 16, v{R_['D']}")
        o = 56 + 4*c
        for e in range(2):
            for j in range(4):
                r_ = 64 + c*32 + e*4 + j
                a(f"v_add_f32 v{r_}, v{r_}, v{r_+8}")
                a(f"v_add_f32 v{r_+16}, v{r_+16}, v{r_+24}")
                a(f"v_add_f32 v{r_}, v{r_}, v{r_+16}")
            y = 64 + c*32 + e*4
            for p in range(2):
                uu = R_['Ue'] + 2*e + p
                a(f"""
                v_cvt_pk_bf16_f32 v48, v{y+2*p}, v{y+2*p+1}
                v_lshlrev_b32 v49, 16, v48
                v_and_b32 v50, 0xffff0000, v48
                v_lshlrev_b32 v51, 16, v{uu}
                v_and_b32 v52, 0xffff0000, v{uu}
                v_mul_f32 v51, v51, v{R_['D']}
                v_mul_f32 v52, v52, v{R_['D']}
                v_cvt_pk_bf16_f32 v48, v51, v52
                v_lshlrev_b32 v51, 16, v48
                v_and_b32 v52, 0xffff0000, v48
                v_add_f32 v49, v49, v51
                v_add_f32 v50, v50, v52
                v_cvt_pk_bf16_f32 v{o+2*e+p}, v49, v50
                """)
        a(f"buffer_store_dwordx4 v[{o}:{o+3}], v13, s[32:35], s{43+c} offen sc1")
    TS(a, 5)
    a("""
    v_mov_b32 v4, 0
    v_mov_b32 v8, 1
    s_waitcnt vmcnt(0)
    s_mov_b64 exec, 1
    buffer_atomic_add v8, v4, s[24:27], s45 offen
    s_mov_b64 exec, -1
    """)
    TS(a, 6)
    TR(a, 9)
    TSDUMP(a, 10, "c")
    a("s_endpgm")

NBR, NBL = 12, 8
def g2_setup(a):
    srd(a, 24, 16, 17, WF, 1792*1024)
    srd(a, 32, 16, 17, FLG, 65536)
    srd(a, 36, 16, 17, AT, SZ2M)
    srd(a, 48, 56, 57, 0, SZ2M)
    srd(a, 52, 58, 59, 0, SZ2M)
    a("""
    s_and_b32 s44, s2, 7
    s_lshl_b32 s44, s44, 2
    s_bfe_u32 s45, s2, 0x20003
    s_add_u32 s44, s44, s45         ; tt
    s_lshr_b32 s45, s2, 5           ; dt
    s_mul_i32 s14, s3, 28
    s_mul_i32 s40, s44, 224
    s_add_u32 s40, s40, s14
    s_lshl_b32 s40, s40, 10
    s_mul_i32 s42, s45, 224
    s_add_u32 s42, s42, s14
    s_lshl_b32 s42, s42, 10
    s_lshl_b32 s43, s44, 2
    s_add_u32 s43, s43, s3
    s_lshl_b32 s43, s43, 8
    s_lshl_b32 s61, s3, 14
    v_lshlrev_b32 v4, 4, v0         ; lane*16
    v_add_u32 v5, 112*1024, v4
    """)
def g2_bpre(a):
    for st in range(NBR):
        if st % 4 == 0: a(f"s_add_u32 s41, s42, {(st//4)*4096}")
        for cb in range(2):
            r = 160 + st*8 + cb*4
            a(f"buffer_load_dwordx4 v[{r}:{r+3}], v{4+cb}, s[24:27], s41 offen offset:{(st%4)*1024}")
def g2_bpre_lds(a):
    for j in range(NBL):
        st = NBR + j
        a(f"s_add_u32 s41, s42, {st*1024}")
        for cb in range(2):
            a(f"s_add_u32 m0, s61, {(j*2+cb)*1024}")
            a("s_nop 0")
            a(f"buffer_load_dwordx4 v{4+cb}, s[24:27], s41 offen lds")

def poll(a, tag, soff, target):
    a(f"""
    s_mov_b32 s9, 0
    v_mov_b32 v6, 0
    Lp_{tag}:
    buffer_load_dword v7, v6, s[32:35], s{soff} offen sc1
    s_waitcnt vmcnt(0)
    v_readfirstlane_b32 s14, v7
    s_add_u32 s9, s9, 1
    s_cmp_ge_u32 s14, {target}
    s_cbranch_scc1 Lpd_{tag}
    s_cmp_ge_u32 s9, {POLL_LIMIT}
    s_cbranch_scc1 Lpd_{tag}
    s_sleep 2
    s_branch Lp_{tag}
    Lpd_{tag}:
    """)

def gemm2(a):
    a("L1_g2:")
    poll(a, "h", 43, 7)
    TS(a, 21)
    NS = 28
    q = []
    def wait_for(tags):
        idx = max(i for i, t in enumerate(q) if t in tags)
        n = len(q) - 1 - idx
        assert n <= 63
        a(f"s_waitcnt vmcnt({n})")
    free = [96 + 8*i for i in range(8)]
    pend = []
    for st in range(NS):
        pend.append(("A", st))
        if st >= NBR + NBL: pend.append(("B", st))
    loc = {}
    for st in range(NBR): loc[("B", st)] = 160 + 8*st
    def issue():
        while pend and free:
            k, st = pend.pop(0)
            r = free.pop(0)
            loc[(k, st)] = r
            a(f"s_add_u32 s41, s{40 if k == 'A' else 42}, {st*1024}")
            for j in range(2):
                a(f"buffer_load_dwordx4 v[{r+4*j}:{r+4*j+3}], v{4+j}, s[{28 if k == 'A' else 24}:{31 if k == 'A' else 27}], s41 offen")
                q.append((k, st))
    issue()
    a(f"""
    v_and_b32 v8, 31, v0
    v_lshrrev_b32 v9, 5, v0         ; g
    s_lshr_b32 s14, s3, 1           ; rb
    s_and_b32 s15, s3, 1            ; cb
    s_lshl_b32 s62, s44, 6
    s_lshl_b32 s14, s14, 5
    s_add_u32 s62, s62, s14
    s_lshl_b32 s63, s45, 6
    s_lshl_b32 s15, s15, 5
    s_add_u32 s63, s63, s15
    v_add_u32 v10, s63, v8          ; d
    v_lshl_add_u32 v11, v9, 2, s62  ; t = tbase+4g
    v_lshlrev_b32 v12, 12, v10
    v_lshl_add_u32 v12, v11, 1, v12
    v_lshlrev_b32 v13, 10, v11
    v_lshl_add_u32 v13, v10, 1, v13
    s_add_u32 s45, s45, 128
    s_lshl_b32 s45, s45, 8
    v_add_u32 v14, s61, v4
    s_lshl_b32 s14, s3, 12
    v_add_u32 v15, s14, v4
    s_mov_b32 s20, 0
    s_mov_b32 s21, 8192
    s_mov_b32 s22, 16384
    s_mov_b32 s23, 24576
    """)
    ACC = 16
    AT_R, X_R = 232, 240
    def acc(rb, cb): return ACC + (rb*2+cb)*16
    def ldsb(st):
        j = st - NBR
        r = 80 + 8*(st % 2)
        loc[("B", st)] = r
        a(f"ds_read_b128 v[{r}:{r+3}], v14 offset:{(2*j)*1024}")
        a(f"ds_read_b128 v[{r+4}:{r+7}], v14 offset:{(2*j+1)*1024}")
    FPOLL, FCHK = 13, 20
    for st in range(NS):
        lds_next = NBR <= st+1 < NBR+NBL
        if lds_next: ldsb(st+1)
        tags = [("A", st)] + ([("B", st)] if st >= NBR+NBL else [])
        wait_for(tags)
        if NBR <= st < NBR+NBL: a(f"s_waitcnt lgkmcnt({2 if lds_next else 0})")
        for rb in range(2):
            for cb in range(2):
                c = acc(rb, cb); x = loc[("A", st)] + 4*rb; y = loc[("B", st)] + 4*cb
                cin = "0" if st == 0 else f"v[{c}:{c+15}]"
                a(f"v_mfma_f32_32x32x16_bf16 v[{c}:{c+15}], v[{x}:{x+3}], v[{y}:{y+3}], {cin}")
        free.append(loc[("A", st)])
        if (st < NBR and loc[("B", st)] < AT_R) or st >= NBR+NBL: free.append(loc[("B", st)])
        issue()
        if st == FPOLL:
            a("buffer_load_dword v7, v6, s[32:35], s45 offen sc1")
            q.append(("F", 0))
            for qq in range(4):
                for e in range(4):
                    a(f"buffer_load_ushort v{X_R+4*qq+e}, v13, s[48:51], s{20+qq} offen offset:{1024*e}")
                    q.append(("X", 0))
        if st == FCHK:
            wait_for([("F", 0)])
            ATG = 0 if os.environ.get("NOC") else 128
            a(f"""
            v_readfirstlane_b32 s14, v7
            s_cmp_ge_u32 s14, {ATG}
            s_cbranch_scc1 Lpd_a
            """)
            poll(a, "a", 45, ATG)
            for qq in range(4):
                a(f"buffer_load_dwordx2 v[{AT_R+2*qq}:{AT_R+2*qq+1}], v12, s[36:39], 0 offen offset:{16*qq}")
                q.append(("T", 0))
    assert not pend
    TS(a, 22)
    a("s_nop 15")
    for i in range(16):
        a(f"ds_write_b128 v14, v[{ACC+4*i}:{ACC+4*i+3}] offset:{i*1024}")
    a("""
    s_waitcnt lgkmcnt(0)
    s_barrier
    """)
    for ww in range(4):
        for qq in range(4):
            r = 16 + (ww*4+qq)*4
            a(f"ds_read_b128 v[{r}:{r+3}], v15 offset:{ww*16384 + qq*1024}")
    a("s_waitcnt vmcnt(0) lgkmcnt(0)")
    for qq in range(4):
        for e in range(4):
            r = 16 + qq*4 + e
            a(f"v_add_f32 v{r}, v{r}, v{r+16}")
            a(f"v_add_f32 v{r+32}, v{r+32}, v{r+48}")
            a(f"v_add_f32 v{r}, v{r}, v{r+32}")
        for p in range(2):
            r = 16 + qq*4 + 2*p
            at = AT_R + 2*qq + p
            x0 = X_R + 4*qq + 2*p
            o = 88 + (qq*2+p)
            a(f"""
            v_lshlrev_b32 v80, 16, v{at}
            v_and_b32 v81, 0xffff0000, v{at}
            v_lshlrev_b32 v82, 16, v{x0}
            v_lshlrev_b32 v83, 16, v{x0+1}
            v_add_f32 v80, v80, v82
            v_add_f32 v81, v81, v83
            v_cvt_pk_bf16_f32 v82, v{r}, v{r+1}
            v_cvt_pk_bf16_f32 v80, v80, v81
            v_lshlrev_b32 v84, 16, v82
            v_and_b32 v85, 0xffff0000, v82
            v_and_b32 v81, 0xffff0000, v80
            v_lshlrev_b32 v80, 16, v80
            v_add_f32 v80, v80, v84
            v_add_f32 v81, v81, v85
            v_cvt_pk_bf16_f32 v{o}, v80, v81
            buffer_store_short v{o}, v13, s[52:55], s{20+qq} offen offset:{1024*(2*p)}
            buffer_store_short_d16_hi v{o}, v13, s[52:55], s{20+qq} offen offset:{1024*(2*p+1)}
            """)
    if TSON: a("s_waitcnt vmcnt(0)")
    TS(a, 23)
    TSDUMP(a, 24, "g")
    a("s_endpgm")

def gemm1(a):
    TS(a, 0)
    if os.environ.get("PRIO"): a(f"s_setprio {os.environ['PRIO']}")
    srd(a, 20, 16, 17, XN, SZ2M)
    a(f"""
    s_cmp_ge_u32 s3, 2
    s_cselect_b32 s24, s6, s4
    s_cselect_b32 s25, s7, s5
    s_and_b32 s25, s25, 0xffff
    s_mov_b32 s26, 0x1c0000
    s_mov_b32 s27, 0x20000
    ; x=g&7, q=g>>3 ; ct=(x&3)*7+q%7 ; rt=(x>>2)*4+q/7
    s_lshr_b32 s12, s2, 3
    s_mul_i32 s13, s12, 37
    s_lshr_b32 s13, s13, 8          ; q/7
    s_mul_i32 s14, s13, 7
    s_sub_u32 s14, s12, s14         ; q%7
    s_and_b32 s15, s2, 3
    s_mul_i32 s15, s15, 7
    s_add_u32 s10, s15, s14         ; ct
    s_bfe_u32 s15, s2, 0x10002
    s_lshl_b32 s15, s15, 2
    s_add_u32 s11, s15, s13         ; rt
    s_lshl_b32 s12, s11, 4
    s_lshl_b32 s13, s3, 2
    s_add_u32 s12, s12, s13
    s_lshl_b32 s12, s12, 14
    v_lshlrev_b32 v1, 4, v0
    v_add_u32 v1, s12, v1
    v_lshrrev_b32 v5, 3, v0         ; row8
    v_and_b32 v6, 7, v0             ; c'
    v_and_b32 v7, 2, v5
    v_xor_b32 v6, v6, v7
    v_mul_u32_u24 v2, 3584, v5
    s_lshl_b32 s13, s10, 7
    v_add_u32 v2, s13, v2
    v_xor_b32 v7, 4, v6
    v_lshl_add_u32 v3, v7, 4, v2
    v_lshl_add_u32 v2, v6, 4, v2
    s_and_b32 s14, s3, 1
    s_mul_i32 s40, s14, {16*3584}
    s_lshr_b32 s15, s3, 1
    s_lshl_b32 s42, s15, 12
    s_lshl_b32 s14, s14, 11
    s_add_u32 s42, s42, s14
    v_lshrrev_b32 v6, 4, v0         ; gq
    v_bfe_u32 v7, v0, 2, 2          ; r
    v_lshl_add_u32 v5, v6, 3, v7    ; row
    v_lshlrev_b32 v5, 7, v5
    v_and_b32 v12, 3, v0
    v_lshl_add_u32 v5, v12, 3, v5
    v_lshrrev_b32 v7, 1, v7
    v_and_b32 v12, 1, v6
    v_lshl_add_u32 v7, v12, 1, v7   ; g
    v_lshl_add_u32 v8, v7, 5, v5
    v_xor_b32 v9, 32, v8
    v_xor_b32 v10, 64, v8
    v_xor_b32 v11, 96, v8
    """)
    SX = 32
    sx = [32,33,34,35,36,37,38,39,48,49,50,51,52,53,54,55]
    for rb in range(4):
        for h in range(4):
            a(f"s_mov_b32 s{sx[rb*4+h]}, {rb*16384+h*4096}")
    ACC = 32
    def acc(mat, nb, rb): return ACC + ((mat*4+nb)*4+rb)*4
    NS, NSL, XS = 16, 8, 6
    q = []
    def wait_for(tag):
        idx = max(i for i, t in enumerate(q) if t == tag)
        n = len(q) - 1 - idx
        assert n <= 63
        a(f"s_waitcnt vmcnt({n})")
    def xr(s, rb): return 160 + (s % XS)*16 + rb*4
    WFr = 16
    def trread(n):
        s, blk = n // 8, n % 8
        mat, nb = blk // 4, blk % 4
        b = WFr + (n % 4)*4
        base = (s % NSL)*8192 + mat*4096
        a(f"ds_read_b64_tr_b16 v[{b}:{b+1}], v{8+nb} offset:{base}")
        a(f"ds_read_b64_tr_b16 v[{b+2}:{b+3}], v{8+nb} offset:{base+512}")
    pend = []
    for s in range(NS):
        pend += [("w", s, 0), ("w", s, 1)] + [("x", s, rb) for rb in range(4)]
    def issue1(t):
        k, s, i = t
        if k == "w":
            a(f"s_add_u32 s41, s40, {(32*s+8*i)*3584}")
            a(f"s_add_u32 m0, s42, {(s%NSL)*8192+i*1024}")
            a("s_nop 0")
            a(f"buffer_load_dwordx4 v{2+i}, s[24:27], s41 offen lds")
        else:
            r = xr(s, i)
            a(f"buffer_load_dwordx4 v[{r}:{r+3}], v1, s[20:23], s{sx[i*4+(s>>2)]} offen offset:{(s&3)*1024}")
        q.append((k, s))
    barr = -1
    def allowed(t, n):
        k, s, i = t
        if k == "w": return s < NSL or barr >= s-6
        return s < XS or n//8 >= s-5
    PRO = int(os.environ.get("PRO", "3"))
    for _ in range(6*PRO): issue1(pend.pop(0))
    TS(a, 1)
    PD = 3
    def do_barrier(s):
        nonlocal barr
        wait_for(("w", s))
        a("s_barrier")
        barr = s
    do_barrier(0)
    for n in range(PD): trread(n)
    for n in range(NS*8):
        s, blk = n // 8, n % 8
        if blk == 0 and s in (0, 4, 8, 12): TS(a, 2+s)
        if n+PD < NS*8:
            if (n+PD) % 8 == 0: do_barrier((n+PD)//8)
            trread(n+PD)
        if blk == 0: wait_for(("x", s))
        a(f"s_waitcnt lgkmcnt({2*min(PD, NS*8-1-n)})")
        b = WFr + (n % 4)*4
        for rb in range(4):
            c = acc(blk//4, blk % 4, rb)
            cin = "0" if s == 0 else f"v[{c}:{c+3}]"
            a(f"v_mfma_f32_16x16x32_bf16 v[{c}:{c+3}], v[{b}:{b+3}], v[{xr(s,rb)}:{xr(s,rb)+3}], {cin}")
            if rb == 3:
                if pend and allowed(pend[0], n) and pend[0][1] - s <= PRO:
                    issue1(pend.pop(0))
    assert not pend
    TS(a, 18)
    a("v_mov_b32 v3, v6")
    g2_setup(a)
    g2_bpre(a)
    a("s_barrier")
    g2_bpre_lds(a)
    c0 = math.sqrt(2.0/math.pi)
    kA = -2.0*LOG2E*c0
    kB = kA*0.044715
    a(f"""
    v_and_b32 v2, 15, v0
    v_lshrrev_b32 v7, 1, v3
    v_lshl_add_u32 v2, v7, 5, v2
    v_lshlrev_b32 v1, 4, v2
    v_and_b32 v7, 1, v3
    v_lshl_add_u32 v1, v7, 3, v1
    s_lshl_b32 s12, s11, 3
    s_lshl_b32 s13, s3, 1
    s_add_u32 s12, s12, s13
    s_mul_i32 s12, s12, 112
    s_lshl_b32 s13, s10, 2
    s_add_u32 s12, s12, s13
    s_lshl_b32 s12, s12, 10
    s_add_u32 s13, s12, {112*1024}
    s_mov_b32 s46, {f32(kA)}
    s_mov_b32 s47, {f32(kB)}
    s_lshl_b32 s60, s11, 2
    s_add_u32 s60, s60, s3
    s_lshl_b32 s60, s60, 2
    s_and_b32 s14, s2, 3
    s_add_u32 s60, s60, s14
    s_lshl_b32 s60, s60, 8
    """)
    for nb in range(4):
        for rb in range(4):
            g = acc(0, nb, rb); u = acc(1, nb, rb)
            o = 8 + ((nb*4+rb) % 4)*2
            for p in range(2):
                g0, g1, u0, u1 = g+2*p, g+2*p+1, u+2*p, u+2*p+1
                a(f"""
                v_cvt_pk_bf16_f32 v16, v{g0}, v{g1}
                v_cvt_pk_bf16_f32 v17, v{u0}, v{u1}
                v_lshlrev_b32 v18, 16, v16
                v_and_b32 v19, 0xffff0000, v16
                v_mul_f32 v20, v18, v18
                v_mul_f32 v21, v19, v19
                v_mov_b32 v22, s46
                v_mov_b32 v23, s46
                v_fma_f32 v22, v20, s47, v22
                v_fma_f32 v23, v21, s47, v23
                v_mul_f32 v22, v22, v18
                v_mul_f32 v23, v23, v19
                v_exp_f32 v22, v22
                v_exp_f32 v23, v23
                v_lshlrev_b32 v24, 16, v17
                v_and_b32 v25, 0xffff0000, v17
                v_add_f32 v22, 1.0, v22
                v_add_f32 v23, 1.0, v23
                v_rcp_f32 v22, v22
                v_rcp_f32 v23, v23
                s_nop 0
                v_mul_f32 v22, v22, v18
                v_mul_f32 v23, v23, v19
                v_cvt_pk_bf16_f32 v16, v22, v23
                v_lshlrev_b32 v18, 16, v16
                v_and_b32 v19, 0xffff0000, v16
                v_mul_f32 v18, v18, v24
                v_mul_f32 v19, v19, v25
                v_cvt_pk_bf16_f32 v{o+p}, v18, v19
                """)
            a(f"buffer_store_dwordx2 v[{o}:{o+1}], v1, s[28:31], s{12+(rb>>1)} offen offset:{nb*1024+(rb&1)*256} sc1")
    TS(a, 19)
    a("""
    v_mov_b32 v6, 0
    v_mov_b32 v7, 1
    s_waitcnt vmcnt(0)
    s_mov_b64 exec, 1
    buffer_atomic_add v7, v6, s[32:35], s60 offen
    s_mov_b64 exec, -1
    """)
    TS(a, 20)

def k1(a):
    header(a, "main_kernel")
    a(f"""
    s_cmp_ge_u32 s2, 512
    s_cbranch_scc1 L1_exit
    s_load_dwordx4 s[4:7], s[0:1], 64
    s_load_dwordx2 s[8:9], s[0:1], 48
    s_load_dwordx2 s[16:17], s[0:1], 104
    s_load_dwordx2 s[56:57], s[0:1], 0
    s_load_dwordx2 s[58:59], s[0:1], 88
    v_lshrrev_b32 v5, 6, v0
    v_mov_b32 v15, v0
    v_readfirstlane_b32 s3, v5      ; wave
    v_and_b32 v0, 63, v0
    s_mov_b32 s96, s2
    s_waitcnt lgkmcnt(0)
    s_cmp_lt_u32 s2, 256
    s_cbranch_scc1 {"L1_exit" if os.environ.get("NOC") else "L1_conv"}
    {"s_endpgm" if os.environ.get("NOG") else ""}
    s_sub_u32 s2, s2, 256
    """)
    srd(a, 28, 16, 17, HB, HSZ)
    a("""
    s_cmp_ge_u32 s2, 224
    s_cbranch_scc1 L1_h
    """)
    gemm1(a)
    gemm2(a)
    a("L1_h:")
    TS(a, 0)
    g2_setup(a)
    g2_bpre(a)
    g2_bpre_lds(a)
    a("s_branch L1_g2")
    a("L1_conv:")
    cpath(a)
    a("""
    L1_exit:
    s_endpgm
    """)

def build():
    launches = [f"; @launch kernel=prep_kernel grid=({NK0},1,1) block=(256,1,1) lds=16384",
                "; @launch kernel=main_kernel grid=(512,1,1) block=(256,1,1) lds=65536"]
    descs = [desc("prep_kernel", 72), desc("main_kernel", 256, acc=256)]
    body = A()
    k0(body)
    k1(body)
    txt = "\n".join(launches) + "\n"
    txt += '.amdgcn_target "amdgcn-amd-amdhsa--gfx950"\n.text\n'
    txt += body.text()
    txt += '.section .rodata,"a"\n' + "".join(descs)
    return txt

if __name__ == "__main__":
    out = sys.argv[1] if len(sys.argv) > 1 else OUT
    open(out, "w").write(build())
    print("wrote", out)
```

```python
import sys
sys.path.insert(0, "work")
from g2 import A, srd, header, desc
def job(a, kind, tag):
    a(f"s_mov_b32 s20, 16")
    a(f"Lj_{tag}:")
    if kind == "none": pass
    elif kind == "m16":
        for i in range(32):
            c = 32 + (i % 8)*4
            a(f"v_mfma_f32_16x16x32_bf16 v[{c}:{c+3}], v[8:11], v[12:15], v[{c}:{c+3}]")
    elif kind == "m32":
        for i in range(16):
            c = 32 + (i % 4)*16
            a(f"v_mfma_f32_32x32x16_bf16 v[{c}:{c+15}], v[8:11], v[12:15], v[{c}:{c+15}]")
    elif kind == "fma":
        for i in range(128):
            c = 32 + (i % 16)
            a(f"v_fma_f32 v{c}, v8, v9, v{c}")
    elif kind == "fmadep":
        for i in range(128):
            a(f"v_fma_f32 v32, v8, v9, v32")
    elif kind == "pk":
        for i in range(128):
            c = 32 + (i % 16)*2
            a(f"v_pk_fma_f32 v[{c}:{c+1}], v[8:9], v[10:11], v[{c}:{c+1}]")
    elif kind == "exp":
        for i in range(128):
            c = 32 + (i % 16)
            a(f"v_exp_f32 v{c}, v8")
    elif kind == "expfma":
        for i in range(32):
            c = 32 + (i % 16)
            a(f"v_exp_f32 v{c}, v8")
            for j in range(3): a(f"v_fma_f32 v{64+(3*i+j)%16}, v8, v9, v{64+(3*i+j)%16}")
    elif kind == "cvt":
        for i in range(128):
            c = 32 + (i % 16)
            a(f"v_cvt_pk_bf16_f32 v{c}, v8, v9")
    elif kind == "mul32":
        for i in range(128):
            c = 32 + (i % 16)
            a(f"v_mul_f32_e32 v{c}, v8, v9")
    elif kind == "fmac32":
        for i in range(128):
            c = 32 + (i % 16)
            a(f"v_fmac_f32_e32 v{c}, v8, v9")
    elif kind == "andlit":
        for i in range(128):
            c = 32 + (i % 16)
            a(f"v_and_b32_e32 v{c}, 0xffff0000, v8")
    elif kind == "lshl":
        for i in range(128):
            c = 32 + (i % 16)
            a(f"v_lshlrev_b32_e32 v{c}, 16, v8")
    elif kind == "pkmul":
        for i in range(128):
            c = 32 + (i % 16)*2
            a(f"v_pk_mul_f32 v[{c}:{c+1}], v[8:9], v[10:11]")
    elif kind.startswith("x16_"):
        _, n, op = kind.split("_"); n = int(n)
        for i in range(32):
            c = 32 + (i % 8)*4
            a(f"v_mfma_f32_16x16x32_bf16 v[{c}:{c+3}], v[8:11], v[12:15], v[{c}:{c+3}]")
            for j in range(n):
                d = 96 + (n*i+j) % 16
                if op == "mul": a(f"v_mul_f32_e32 v{d}, v8, v9")
                elif op == "fma": a(f"v_fma_f32 v{d}, v8, v9, v{d}")
                elif op == "exp": a(f"v_exp_f32 v{d}, v8")
    elif kind.startswith("x32_"):
        _, n, op = kind.split("_"); n = int(n)
        for i in range(16):
            c = 32 + (i % 4)*16
            a(f"v_mfma_f32_32x32x16_bf16 v[{c}:{c+15}], v[8:11], v[12:15], v[{c}:{c+15}]")
            for j in range(n):
                d = 96 + (n*i+j) % 16
                if op == "mul": a(f"v_mul_f32_e32 v{d}, v8, v9")
                elif op == "fma": a(f"v_fma_f32 v{d}, v8, v9, v{d}")
                elif op == "exp": a(f"v_exp_f32 v{d}, v8")
    elif kind == "dot2":
        for i in range(128):
            c = 32 + (i % 16)
            a(f"v_dot2_f32_bf16 v{c}, v8, v9, v{c}")
    elif kind == "dot2c":
        for i in range(128):
            c = 32 + (i % 16)
            a(f"v_dot2c_f32_bf16 v{c}, v8, v9")
    elif kind == "perm":
        for i in range(128):
            c = 32 + (i % 16)
            a(f"v_perm_b32 v{c}, v8, v9, v10")
    elif kind == "dsw64":
        for i in range(128):
            a(f"ds_write_b64 v17, v[8:9] offset:{(i%16)*1024}")
            if i % 8 == 7: a("s_waitcnt lgkmcnt(4)")
        a("s_waitcnt lgkmcnt(0)")
    elif kind == "lds128":
        for i in range(64):
            c = 32 + (i % 8)*4
            a(f"ds_read_b128 v[{c}:{c+3}], v16 offset:{(i%16)*1024}")
            if i % 8 == 7: a("s_waitcnt lgkmcnt(4)")
        a("s_waitcnt lgkmcnt(0)")
    elif kind == "lds64":
        for i in range(128):
            c = 32 + (i % 8)*2
            a(f"ds_read_b64 v[{c}:{c+1}], v17 offset:{(i%16)*1024}")
            if i % 8 == 7: a("s_waitcnt lgkmcnt(4)")
        a("s_waitcnt lgkmcnt(0)")
    elif kind == "m32lds":
        for i in range(16):
            c = 32 + (i % 4)*16
            a(f"ds_read_b128 v[{96+(i%4)*4}:{99+(i%4)*4}], v16 offset:{(i%16)*1024}")
            a("s_waitcnt lgkmcnt(2)")
            a(f"v_mfma_f32_32x32x16_bf16 v[{c}:{c+15}], v[8:11], v[{96+((i+2)%4)*4}:{99+((i+2)%4)*4}], v[{c}:{c+15}]")
    elif kind == "m16lds":
        for i in range(32):
            c = 32 + (i % 8)*4
            if i % 4 == 0:
                r = 96 + ((i//4) % 4)*4
                a(f"ds_read_b64 v[{r}:{r+1}], v17 offset:{(i%16)*1024}")
                a(f"ds_read_b64 v[{r+2}:{r+3}], v17 offset:{(i%16)*1024+512}")
                a("s_waitcnt lgkmcnt(4)")
            r = 96 + ((i//4+2) % 4)*4
            a(f"v_mfma_f32_16x16x32_bf16 v[{c}:{c+3}], v[{r}:{r+3}], v[12:15], v[{c}:{c+3}]")
    a(f"""
    s_sub_u32 s20, s20, 1
    s_cmp_lg_u32 s20, 0
    s_cbranch_scc1 Lj_{tag}
    """)
def build(ka, kb, pa=0, pb=0):
    a = A()
    header(a, "test_kernel")
    a(f"""
    s_cmp_ge_u32 s2, 1
    s_cbranch_scc1 Lt_exit
    s_load_dwordx2 s[10:11], s[0:1], 88
    v_lshrrev_b32 v5, 6, v0
    v_and_b32 v6, 63, v0
    v_readfirstlane_b32 s3, v5
    v_lshlrev_b32 v16, 4, v6
    v_lshlrev_b32 v17, 3, v6
    s_waitcnt lgkmcnt(0)
    """)
    srd(a, 28, 10, 11, 0, 1 << 20)
    for i in range(8, 16): a(f"v_mov_b32 v{i}, 0")
    for i in range(32, 128): a(f"v_mov_b32 v{i}, 0")
    a("""
    s_barrier
    s_memtime s[60:61]
    s_waitcnt lgkmcnt(0)
    s_cmp_ge_u32 s3, 4
    s_cbranch_scc1 Lb
    """)
    a(f"s_setprio {pa}")
    job(a, ka, "a")
    a("s_branch Ld")
    a("Lb:")
    a(f"s_setprio {pb}")
    job(a, kb, "b")
    a("""
    Ld:
    s_nop 15
    s_memtime s[62:63]
    s_waitcnt lgkmcnt(0)
    s_sub_u32 s62, s62, s60
    v_mov_b32 v2, s62
    s_lshl_b32 s4, s3, 2
    v_mov_b32 v1, s4
    buffer_store_dword v2, v1, s[28:31], 0 offen
    Lt_exit:
    s_endpgm
    """)
    txt = "; @launch kernel=test_kernel grid=(1,1,1) block=(512,1,1) lds=65536\n"
    txt += '.amdgcn_target "amdgcn-amd-amdhsa--gfx950"\n.text\n' + a.text()
    txt += '.section .rodata,"a"\n' + desc("test_kernel", 128)
    return txt
cases = []
for k in ["dot2","dot2c","perm","dsw64"]: cases.append((k,"none",0,0))
cases += [("m16","dot2",0,0),("m16","dot2c",0,0),("m16","perm",0,0),("dot2","dot2",0,0),("m16","dsw64",0,0),("mul32","exp",0,3),("m32","cvt",0,0),("perm","perm",0,0),("lshl","lshl",0,0),("andlit","andlit",0,0)]
import json
names = []
for i, c in enumerate(cases):
    open(f"mc{i}.s", "w").write(build(*c)); names.append(list(c))
json.dump(names, open("mc.json", "w"))
print(len(cases))
```

```python
import sys, struct, math, os
OUT = "parallel_sum__ssm_conv_s4d__glu_gated_geglu__prompt.s"

class A:
    def __init__(self): self.l = []
    def __call__(self, s):
        for ln in s.strip("\n").split("\n"):
            self.l.append("    " + ln.strip() if not ln.strip().endswith(":") else ln.strip())
    def raw(self, s): self.l.append(s)
    def text(self): return "\n".join(self.l) + "\n"

def f32(x): return "0x%08x" % struct.unpack("<I", struct.pack("<f", x))[0]
LOG2E = 1.4426950408889634

XN, XNT, HB, AT, WF, FLG, TB = 0, 4<<20, 8<<20, 16<<20, 18<<20, 20<<20, 22<<20
SKEW = int(os.environ.get("SKEW", "1"))
WS_ = 29 if SKEW else 28
RSH = 4*WS_*1024 + (768 if SKEW else 0)
XRS = 32768 + (256 if SKEW else 0)
TLO = 0x3100
C0 = math.sqrt(2.0/math.pi)
KA = -2.0*LOG2E*C0
KB = KA*0.044715
SZ2M = 2<<20
HSZ = 64*RSH
WSZ = 16*RSH
POLL_LIMIT = 60000

def srd(a, s, lo, hi, off, size):
    if off:
        a(f"s_add_u32 s{s}, s{lo}, 0x{off:x}")
        a(f"s_addc_u32 s{s+1}, s{hi}, 0")
        a(f"s_and_b32 s{s+1}, s{s+1}, 0xffff")
    else:
        a(f"s_mov_b32 s{s}, s{lo}")
        a(f"s_and_b32 s{s+1}, s{hi}, 0xffff")
    a(f"s_mov_b32 s{s+2}, 0x{size:x}")
    a(f"s_mov_b32 s{s+3}, 0x20000")

def srd_dyn(a, s, lo, hi, off, sx, size):
    a(f"s_add_u32 s{s}, s{lo}, 0x{off:x}")
    a(f"s_addc_u32 s{s+1}, s{hi}, 0")
    a(f"s_add_u32 s{s}, s{s}, s{sx}")
    a(f"s_addc_u32 s{s+1}, s{s+1}, 0")
    a(f"s_and_b32 s{s+1}, s{s+1}, 0xffff")
    a(f"s_mov_b32 s{s+2}, 0x{size:x}")
    a(f"s_mov_b32 s{s+3}, 0x20000")

def header(a, name):
    a.raw(f".globl {name}")
    a.raw(".p2align 8")
    a.raw(f".type {name},@function")
    a.raw(f"{name}:")

def desc(name, vgpr, sgpr=100, acc=None):
    if acc is None: acc = (vgpr + 3)//4*4
    return f""".p2align 6
.amdhsa_kernel {name}
  .amdhsa_next_free_vgpr {vgpr}
  .amdhsa_next_free_sgpr {sgpr}
  .amdhsa_accum_offset {acc}
  .amdhsa_group_segment_fixed_size 0
  .amdhsa_kernarg_size 112
  .amdhsa_user_sgpr_count 2
  .amdhsa_user_sgpr_kernarg_segment_ptr 1
  .amdhsa_system_sgpr_workgroup_id_x 1
.end_amdhsa_kernel
"""

TSON = os.environ.get("TS", "") != ""
TSALL = os.environ.get("TS", "") == "all"
TSWG = 0 if TSALL else int(os.environ.get("TS", "0") or 0)
def TS(a, i):
    if not TSON: return
    a("s_memtime s[94:95]")
    a("s_waitcnt lgkmcnt(0)")
    a(f"s_mov_b32 s{64+i}, s94")
def TR(a, i):
    if not TSON: return
    a("s_memrealtime s[94:95]")
    a("s_waitcnt lgkmcnt(0)")
    a(f"s_mov_b32 s{64+i}, s94")
def TSDUMP(a, n, tag):
    if not TSON: return
    if TSALL:
        a(f"""
        s_cmp_lg_u32 s3, 0
        s_cbranch_scc1 Lts_{tag}
        s_memrealtime s[94:95]
        s_getreg_b32 s76, hwreg(HW_REG_HW_ID)
        s_getreg_b32 s77, hwreg(HW_REG_XCC_ID)
        s_lshl_b32 s92, s96, 7
        v_mov_b32 v1, s92
        s_waitcnt lgkmcnt(0)
        s_mov_b32 s78, s99
        s_mov_b32 s79, s94
        """)
        srd(a, 88, 16, 17, 24 << 20, 65536)
        for i in range(16):
            a(f"v_mov_b32 v2, s{64+i}")
            a(f"buffer_store_dword v2, v1, s[88:91], 0 offen offset:{4*i}")
        a(f"Lts_{tag}:")
        return
    a(f"""
    s_cmp_lg_u32 s96, {TSWG}
    s_cbranch_scc1 Lts_{tag}
    s_cmp_lg_u32 s3, 0
    s_cbranch_scc1 Lts_{tag}
    s_load_dwordx2 s[92:93], s[0:1], 96
    s_waitcnt lgkmcnt(0)
    """)
    srd(a, 88, 92, 93, 0, 256)
    a("v_mov_b32 v1, 0")
    for i in range(n):
        a(f"v_mov_b32 v2, s{64+i}")
        a(f"buffer_store_dword v2, v1, s[88:91], 0 offen offset:{4*i}")
    a(f"Lts_{tag}:")

NK0 = 245
def k0(a):
    header(a, "prep_kernel")
    a(f"""
    s_cmp_ge_u32 s2, {NK0}
    s_cbranch_scc1 L0_exit
    s_load_dwordx2 s[4:5], s[0:1], 0
    s_load_dwordx2 s[18:19], s[0:1], 80
    s_load_dwordx2 s[16:17], s[0:1], 104
    s_waitcnt lgkmcnt(0)
    s_cmp_ge_u32 s2, 128
    s_cbranch_scc1 L0_swz
    """)
    srd(a, 20, 4, 5, 0, SZ2M)
    srd(a, 24, 16, 17, XN, 64*XRS)
    srd(a, 28, 16, 17, XNT, SZ2M)
    a("""
    s_lshl_b32 s3, s2, 4            ; r0
    v_lshrrev_b32 v1, 4, v0
    v_and_b32 v2, 15, v0            ; j
    v_add_u32 v3, s3, v1            ; row
    v_lshlrev_b32 v3, 10, v3
    v_lshl_add_u32 v3, v2, 4, v3    ; voffset
    """)
    for c in range(4):
        a(f"buffer_load_dwordx4 v[{8+4*c}:{11+4*c}], v3, s[20:23], 0 offen offset:{c*256}")
    srd(a, 40, 16, 17, AT, SZ2M)
    a("""
    v_mov_b32 v32, -1
    v_mov_b32 v33, -1
    v_mov_b32 v34, -1
    v_mov_b32 v35, -1
    v_lshlrev_b32 v36, 4, v0
    s_lshl_b32 s32, s2, 14
    """)
    for c in range(4):
        a(f"s_add_u32 s33, s32, {c*4096}")
        a(f"buffer_store_dwordx4 v[32:35], v36, s[40:43], s33 offen")
    a("s_waitcnt vmcnt(4)")
    for i in range(16):
        a(f"v_lshlrev_b32 v{32+2*i}, 16, v{8+i}")
        a(f"v_and_b32 v{33+2*i}, 0xffff0000, v{8+i}")
    a("v_add_f32 v4, v32, v33")
    a("v_add_f32 v5, v34, v35")
    for i in range(36, 64, 2):
        a(f"v_add_f32 v4, v4, v{i}")
        a(f"v_add_f32 v5, v5, v{i+1}")
    a("v_add_f32 v4, v4, v5")
    def rowsum(r):
        for ror in (8, 4, 2, 1):
            a("s_nop 1")
            a(f"v_add_f32_dpp v{r}, v{r}, v{r} row_ror:{ror} row_mask:0xf bank_mask:0xf")
    rowsum(4)
    a(f"v_mul_f32 v4, {f32(1.0/512)}, v4")
    a("v_sub_f32 v6, v32, v4")
    a("v_mul_f32 v5, v6, v6")
    a("v_sub_f32 v6, v33, v4")
    a("v_mul_f32 v7, v6, v6")
    for i in range(34, 64, 2):
        a(f"v_sub_f32 v6, v{i}, v4")
        a(f"v_fma_f32 v5, v6, v6, v5")
        a(f"v_sub_f32 v64, v{i+1}, v4")
        a(f"v_fma_f32 v7, v64, v64, v7")
    a("v_add_f32 v5, v5, v7")
    rowsum(5)
    a(f"""
    v_mul_f32 v5, {f32(1.0/512)}, v5
    v_cvt_pk_bf16_f32 v4, v4, v5
    v_and_b32 v5, 0xffff0000, v4
    v_lshlrev_b32 v4, 16, v4
    v_add_f32 v5, {f32(1e-5)}, v5
    v_cvt_pk_bf16_f32 v5, v5, v5
    v_lshlrev_b32 v5, 16, v5
    v_sqrt_f32 v5, v5
    s_nop 0
    v_cvt_pk_bf16_f32 v5, v5, v5
    v_lshlrev_b32 v5, 16, v5         ; s (bf16)
    v_rcp_f32 v6, v5
    s_nop 0
    """)
    for i in range(16):
        x0, x1 = 32+2*i, 33+2*i
        a(f"""
        v_sub_f32 v{x0}, v{x0}, v4
        v_sub_f32 v{x1}, v{x1}, v4
        v_cvt_pk_bf16_f32 v7, v{x0}, v{x1}
        v_lshlrev_b32 v{x0}, 16, v7
        v_and_b32 v{x1}, 0xffff0000, v7
        v_mul_f32 v64, v{x0}, v6
        v_mul_f32 v65, v{x1}, v6
        v_fma_f32 v66, -v64, v5, v{x0}
        v_fma_f32 v67, -v65, v5, v{x1}
        v_fma_f32 v64, v66, v6, v64
        v_fma_f32 v65, v67, v6, v65
        v_cvt_pk_bf16_f32 v{8+i}, v64, v65
        """)
    a(f"""
    v_lshlrev_b32 v7, 10, v1
    v_lshl_add_u32 v7, v2, 4, v7
    v_lshrrev_b32 v64, 1, v2
    v_lshlrev_b32 v64, 10, v64
    v_and_b32 v65, 1, v2
    v_lshl_add_u32 v64, v65, 9, v64
    v_lshl_add_u32 v64, v1, 4, v64
    s_lshr_b32 s34, s2, 1
    s_mul_i32 s34, s34, {XRS}
    s_and_b32 s35, s2, 1
    s_lshl_b32 s35, s35, 8
    s_add_u32 s34, s34, s35
    s_add_u32 s35, s34, 0x2000
    s_add_u32 s36, s34, 0x4000
    s_add_u32 s37, s34, 0x6000
    """)
    for c in range(4):
        a(f"buffer_store_dwordx4 v[{8+4*c}:{11+4*c}], v64, s[24:27], s{34+c} offen")
        a(f"ds_write_b128 v7, v[{8+4*c}:{11+4*c}] offset:{c*256}")
    a("""
    s_waitcnt lgkmcnt(0)
    s_barrier
    v_lshlrev_b32 v7, 2, v0
    """)
    for r in range(16):
        a(f"ds_read_b32 v{32+r}, v7 offset:{r*1024}")
    a("""
    s_mov_b32 s32, 0x05040100
    s_mov_b32 s33, 0x07060302
    v_lshlrev_b32 v3, 13, v0        ; d=2*tid -> d*4096
    s_lshl_b32 s3, s3, 1            ; r0*2 bytes
    v_add_u32 v3, s3, v3
    s_waitcnt lgkmcnt(0)
    """)
    for q in range(8):
        a(f"v_perm_b32 v{48+q}, v{33+2*q}, v{32+2*q}, s32")
        a(f"v_perm_b32 v{56+q}, v{33+2*q}, v{32+2*q}, s33")
    a("""
    buffer_store_dwordx4 v[48:51], v3, s[28:31], 0 offen
    buffer_store_dwordx4 v[52:55], v3, s[28:31], 0 offen offset:16
    v_add_u32 v3, 0x1000, v3
    buffer_store_dwordx4 v[56:59], v3, s[28:31], 0 offen
    buffer_store_dwordx4 v[60:63], v3, s[28:31], 0 offen offset:16
    s_endpgm
    """)
    a(f"""
    L0_swz:
    s_cmp_ge_u32 s2, 240
    s_cbranch_scc1 L0_zero
    """)
    srd(a, 24, 16, 17, WF, WSZ)
    srd(a, 20, 18, 19, 0, 1792*1024)
    a("""
    s_sub_u32 s3, s2, 128
    s_lshl_b32 s32, s3, 14
    v_lshlrev_b32 v1, 2, v0
    s_add_u32 s33, s32, 0x1000
    s_add_u32 s34, s32, 0x2000
    s_add_u32 s35, s32, 0x3000
    """)
    for e in range(16):
        a(f"buffer_load_dword v{8+e}, v1, s[20:23], s{32+e//4} offen offset:{(e%4)*1024}")
    a(f"""
    v_lshrrev_b32 v2, 4, v0
    v_mul_u32_u24 v2, {RSH}, v2
    v_and_b32 v3, 15, v0
    v_lshl_add_u32 v2, v3, 5, v2
    s_mul_i32 s36, s3, {147*SKEW}
    s_lshr_b32 s36, s36, 12
    s_add_u32 s36, s36, s3
    s_lshl_b32 s36, s36, 10
    s_mov_b32 s37, 0x05040100
    s_mov_b32 s38, 0x07060302
    """)
    for h in range(2):
        a(f"s_waitcnt vmcnt({4*(1-h)})")
        Rr = [4*h, 4*h+1, 4*h+2, 4*h+3, 8+4*h, 9+4*h, 10+4*h, 11+4*h]
        for p in range(4):
            a(f"v_perm_b32 v{32+8*h+p}, v{8+Rr[2*p+1]}, v{8+Rr[2*p]}, s37")
            a(f"v_perm_b32 v{36+8*h+p}, v{8+Rr[2*p+1]}, v{8+Rr[2*p]}, s38")
    for h in range(2):
        a(f"buffer_store_dwordx4 v[{32+8*h}:{35+8*h}], v2, s[24:27], s36 offen offset:{512*h}")
        a(f"buffer_store_dwordx4 v[{36+8*h}:{39+8*h}], v2, s[24:27], s36 offen offset:{512*h+16}")
    a("s_endpgm")
    a("L0_zero:")
    a("""
    s_cmp_ge_u32 s2, 241
    s_cbranch_scc1 L0_tab
    """)
    srd(a, 24, 16, 17, FLG, 98304)
    a("""
    v_lshlrev_b32 v1, 4, v0
    v_mov_b32 v4, 0
    v_mov_b32 v5, 0
    v_mov_b32 v6, 0
    v_mov_b32 v7, 0
    """)
    for i in range(24):
        a(f"s_mov_b32 s32, {i*4096}")
        a("buffer_store_dwordx4 v[4:7], v1, s[24:27], s32 offen")
    a("""
    s_endpgm
    L0_tab:
    """)
    srd(a, 24, 16, 17, TB, 16384)
    a(f"""
    s_sub_u32 s3, s2, 241
    s_lshl_b32 s32, s3, 11
    v_lshl_add_u32 v1, v0, 3, s32   ; idx
    v_lshrrev_b32 v2, 12, v1        ; sign
    v_and_b32 v3, 4095, v1
    v_lshl_add_u32 v3, v2, 15, v3
    v_add_u32 v3, 0x{TLO:x}, v3
    v_lshlrev_b32 v3, 16, v3
    v_lshlrev_b32 v1, 1, v1
    s_mov_b32 s47, {f32(KB)}
    v_mov_b32 v10, {f32(KA)}
    """)
    for e in range(8): a(f"v_add_u32 v{16+e}, 0x{e<<16:x}, v3")
    gelu8(a, 16, 24)
    for i in range(4): a(f"v_cvt_pk_bf16_f32 v{32+i}, v{24+2*i}, v{25+2*i}")
    a("""
    buffer_store_dwordx4 v[32:35], v1, s[24:27], 0 offen
    L0_exit:
    s_endpgm
    """)

def gelu8(a, G, S):
    for j in range(8): a(f"v_mul_f32_e32 v{S+j}, v{G+j}, v{G+j}")
    for j in range(8): a(f"v_fma_f32 v{S+j}, v{S+j}, s47, v10")
    for j in range(8): a(f"v_mul_f32_e32 v{S+j}, v{S+j}, v{G+j}")
    for j in range(8): a(f"v_exp_f32_e32 v{S+j}, v{S+j}")
    a("s_nop 0")
    for j in range(8): a(f"v_add_f32_e32 v{S+j}, 1.0, v{S+j}")
    for j in range(8): a(f"v_rcp_f32_e32 v{S+j}, v{S+j}")
    a("s_nop 0")
    for j in range(8): a(f"v_mul_f32_e32 v{S+j}, v{S+j}, v{G+j}")

def cpath(a):
    RS = 528
    WB = 16*RS
    TRS = 208
    KH, KL, UB = 0, 7680, 15360
    CB = 32768
    TS(a, 0)
    TR(a, 7)
    if os.environ.get("CPRIO"): a(f"s_setprio {os.environ['CPRIO']}")
    a("""
    s_load_dwordx8 s[72:79], s[0:1], 8
    s_load_dwordx2 s[80:81], s[0:1], 40
    s_lshl_b32 s10, s2, 1           ; channel c0
    s_lshl_b32 s11, s10, 12
    """)
    srd_dyn(a, 20, 16, 17, XNT, 11, 8192)
    srd_dyn(a, 32, 16, 17, AT, 11, 8192)
    srd(a, 36, 8, 9, 0, 1024)
    a("s_waitcnt lgkmcnt(0)")
    srd(a, 24, 72, 73, 0, 131072)
    srd(a, 28, 74, 75, 0, 131072)
    srd(a, 48, 76, 77, 0, 131072)
    srd(a, 52, 78, 79, 0, 131072)
    srd(a, 56, 80, 81, 0, 1024)
    a(f"""
    s_lshl_b32 s12, s2, 9           ; c0*256 bytes
    v_lshl_add_u32 v2, v15, 1, s12
    s_lshl_b32 s12, s2, 2
    v_lshrrev_b32 v3, 7, v15
    v_lshl_add_u32 v3, v3, 1, s12
    buffer_load_ushort v16, v2, s[24:27], 0 offen
    buffer_load_ushort v17, v2, s[28:31], 0 offen
    buffer_load_ushort v18, v2, s[48:51], 0 offen
    buffer_load_ushort v19, v2, s[52:55], 0 offen
    buffer_load_ushort v20, v3, s[56:59], 0 offen
    s_lshr_b32 s14, s3, 1
    s_lshl_b32 s14, s14, 15
    s_and_b32 s15, s3, 1
    s_mul_i32 s15, s15, {WB}
    s_add_u32 s14, s14, s15
    s_add_u32 s14, s14, {UB}
    v_lshl_add_u32 v2, v0, 3, s14
    v_and_b32 v4, 15, v0            ; r / j
    v_lshrrev_b32 v5, 4, v0         ; q
    v_mul_u32_u24 v3, {RS}, v4
    v_lshl_add_u32 v3, v5, 4, v3
    v_add_u32 v3, s14, v3
    v_mul_u32_u24 v60, {4*TRS}, v5
    v_lshl_add_u32 v60, v4, 2, v60
    v_add_u32 v60, s14, v60
    v_mov_b32 v6, 0
    v_cmp_le_u32 vcc, 32, v15
    s_nop 1
    v_addc_co_u32 v6, vcc, 0, v6, vcc
    v_cmp_le_u32 vcc, 64, v15
    s_nop 1
    v_addc_co_u32 v6, vcc, 0, v6, vcc
    v_cmp_le_u32 vcc, 128, v15
    s_nop 1
    v_addc_co_u32 v6, vcc, 0, v6, vcc     ; s
    v_lshlrev_b32 v7, v6, 1
    v_lshrrev_b32 v7, 1, v7
    v_add_u32 v7, -1, v7                  ; half-1
    v_lshlrev_b32 v8, 3, v15              ; l0
    v_lshlrev_b32 v9, 3, v6               ; 8s
    v_lshrrev_b32 v12, v6, 16             ; 16>>s
    v_cmp_eq_u32 vcc, 0, v6
    """)
    for e in range(8):
        a(f"""
        v_add_u32 v10, {e}, v8
        v_lshrrev_b32 v11, v6, v10
        v_and_b32 v11, 1, v11
        v_add3_u32 v11, v10, v7, v11
        v_lshrrev_b32 v11, v6, v11
        v_cndmask_b32 v11, v11, v10, vcc      ; m
        v_lshlrev_b32 v11, v6, v11            ; p
        v_lshrrev_b32 v10, 8, v11
        v_mad_u32_u24 v10, v10, v12, v9       ; 8s + (p>>8)*(16>>s)
        v_and_b32 v13, 15, v11
        v_lshrrev_b32 v13, v6, v13
        v_add_u32 v10, v10, v13               ; col
        v_bfe_u32 v11, v11, 4, 4              ; row
        v_mul_u32_u24 v11, {TRS}, v11
        v_lshl_add_u32 v{52+e}, v10, 2, v11
        """)
    a("s_waitcnt vmcnt(0)")
    TS(a, 1)
    a(f"""
    v_lshlrev_b32 v16, 16, v16
    v_lshlrev_b32 v17, 16, v17
    v_lshlrev_b32 v18, 16, v18
    v_lshlrev_b32 v19, 16, v19
    v_lshlrev_b32 v20, 16, v20
    v_mul_f32 v16, {f32(LOG2E)}, v16
    v_mul_f32 v20, {f32(LOG2E)}, v20
    v_exp_f32 v16, v16
    v_exp_f32 v20, v20
    s_nop 0
    v_cvt_pk_bf16_f32 v16, v16, v20
    v_and_b32 v20, 0xffff0000, v16    ; dt
    v_lshlrev_b32 v16, 16, v16
    v_mul_f32 v16, v16, v20
    v_mul_f32 v17, v17, v20
    v_mul_f32 v18, v18, v20
    v_mul_f32 v19, v19, v20
    v_mul_f32 v16, {f32(-LOG2E)}, v16
    v_mul_f32 v17, {f32(1.0/(2*math.pi))}, v17
    v_add_f32 v18, v18, v18
    v_mul_f32 v19, -2.0, v19
    """)
    regs = {"C": 18}
    nxt = [184]
    def R(name):
        if name not in regs:
            regs[name] = nxt[0]; nxt[0] += 2
            assert nxt[0] <= 250
        return regs[name]
    def pr(r): return f"v[{r}:{r+1}]"
    anch = [("W16", 16, 1), ("W64", 64, 1), ("W128", 128, 1), ("Z1", 1, 0), ("Z4", 4, 0), ("Z8", 8, 0), ("Z256", 256, 0), ("Z512", 512, 0), ("Z1024", 1024, 0)]
    for k, (nm, p, cj) in enumerate(anch):
        d = R(nm); t = 20 + 2*k
        a(f"v_mul_f32 v{t}, {f32(float(p))}, v16")
        a(f"v_mul_f32 v{t+1}, {f32(float(p))}, v17")
        a(f"v_exp_f32 v{t}, v{t}")
        a(f"v_cos_f32 v{d}, v{t+1}")
        a(f"v_sin_f32 v{d+1}, {'-' if cj else ''}v{t+1}")
    a("s_nop 0")
    for k, (nm, p, cj) in enumerate(anch):
        d = R(nm); t = 20 + 2*k
        a(f"v_mul_f32_e32 v{d}, v{d}, v{t}")
        a(f"v_mul_f32_e32 v{d+1}, v{d+1}, v{t}")
    tcnt = [0]
    def cmul(d, x, y):
        d, x, y = R(d), R(x), R(y)
        assert d != x and d != y
        a(f"v_mul_f32_e32 v{d}, v{x+1}, v{y+1}")
        a(f"v_mul_f32_e32 v{d+1}, v{x}, v{y+1}")
        a(f"v_fma_f32 v{d}, v{x}, v{y}, -v{d}")
        a(f"v_fmac_f32_e32 v{d+1}, v{x+1}, v{y}")
    scnt = [0]
    nds = [0]
    def put(nm, row):
        v = R(nm)
        h = 44 + 2*(scnt[0] % 2); u = 48 + 2*(scnt[0] % 2); scnt[0] += 1
        a(f"""
        v_cvt_pk_bf16_f32 v{h}, v{v}, v{v+1}
        v_lshlrev_b32 v{u}, 16, v{h}
        v_and_b32 v{u+1}, 0xffff0000, v{h}
        v_sub_f32_e32 v{u}, v{v}, v{u}
        v_sub_f32_e32 v{u+1}, v{v+1}, v{u+1}
        v_cvt_pk_bf16_f32 v{h+1}, v{u}, v{u+1}
        ds_write_b64 v2, {pr(h)} offset:{row*RS}
        """)
        nds[0] += 1
    A1, A2, BO, ACC = 64, 96, 128, 160
    cmul("w2", "W16", "W16"); cmul("w3", "w2", "W16"); cmul("W192", "W128", "W64")
    regs["w1"] = regs["W16"]
    for aa in range(4):
        if aa == 0: regs["CW"] = regs["C"]
        else:
            regs["CW"] = R("CWt"); cmul("CWt", "C", f"W{64*aa}")
        put("CW", 4*aa)
        for b in range(1, 4):
            nm = f"T{b%2}"
            cmul(nm, "CW", f"w{b}"); put(nm, 4*aa+b)
    for ks in range(8):
        a(f"ds_read_b128 v[{A1+4*ks}:{A1+4*ks+3}], v3 offset:{ks*64}")
        a(f"ds_read2_b32 v[{A2+4*ks}:{A2+4*ks+1}], v3 offset0:{ks*16+1} offset1:{ks*16}")
        a(f"ds_read2_b32 v[{A2+4*ks+2}:{A2+4*ks+3}], v3 offset0:{ks*16+3} offset1:{ks*16+2}")
        nds[0] += 3
    def breads():
        for ks in range(8):
            a(f"ds_read_b128 v[{BO+4*ks}:{BO+4*ks+3}], v3 offset:{ks*64}")
            nds[0] += 1
        return nds[0]
    def mfmas(tau, mark):
        n = nds[0] - mark
        assert n <= 15
        a(f"s_waitcnt lgkmcnt({n})")
        for ks in range(8):
            for h, A_ in enumerate((A1, A2)):
                c = ACC + tau*8 + h*4
                cin = "0" if ks == 0 else f"v[{c}:{c+3}]"
                a(f"v_mfma_f32_16x16x32_bf16 v[{c}:{c+3}], v[{A_+4*ks}:{A_+4*ks+3}], v[{BO+4*ks}:{BO+4*ks+3}], {cin}")
    a(f"v_mov_b32 v{R('Z0')}, 1.0")
    a(f"v_mov_b32 v{R('Z0')+1}, 0")
    cmul("Z2", "Z1", "Z1"); cmul("Z3", "Z2", "Z1"); cmul("Z12", "Z8", "Z4")
    for aa in range(4):
        put(f"Z{4*aa}", 4*aa)
        for b in range(1, 4):
            j = 4*aa+b
            if aa > 0:
                nm = f"Z{j}" if j % 2 == 0 else f"T{(j//2)%2}"
                cmul(nm, f"Z{4*aa}", f"Z{b}")
            else: nm = f"Z{j}"
            put(nm, j)
    mark = breads()
    cmul("Z768", "Z512", "Z256")
    vals = [("Z256", 2*j) for j in range(8)] + [("Z512", 4*r) for r in range(4)] + [("Z768", 4*r) for r in range(4)]
    for j, (bs, e) in enumerate(vals):
        if e == 0: nm = bs
        else:
            nm = f"T{j%2}"; cmul(nm, bs, f"Z{e}")
        put(nm, j)
        if j == 3: mfmas(0, mark)
    mark = breads()
    cmul("Z1280", "Z1024", "Z256"); cmul("Z1536", "Z1024", "Z512"); cmul("Z1792", "Z1024", "Z768"); cmul("Z2048", "Z1024", "Z1024")
    vals = [(f"Z{1024+256*c}", 8*e) for c in range(4) for e in range(2)] + [("Z2048", 0)]
    for j, (bs, e) in enumerate(vals):
        if e == 0: nm = bs
        else:
            nm = f"T{j%2}"; cmul(nm, bs, f"Z{e}")
        put(nm, j)
        if j == 3: mfmas(1, mark)
    mark = breads()
    LR = [dict(U=184, Um=188, D=190, Ue=192), dict(U=200, Um=204, D=206, Ue=208)]
    a(f"""
    v_lshlrev_b32 v1, 4, v15
    v_add_u32 v4, -8, v1
    s_lshl_b32 s12, s10, 1
    v_mov_b32 v8, s12
    s_mov_b32 s43, 0
    s_mov_b32 s44, 4096
    v_and_b32 v5, 31, v0
    v_lshrrev_b32 v6, 5, v0
    s_lshr_b32 s13, s3, 1
    s_lshl_b32 s13, s13, 11
    s_and_b32 s14, s3, 1
    s_lshl_b32 s14, s14, 5
    s_add_u32 s13, s13, s14
    v_lshlrev_b32 v13, 6, v5
    v_lshl_add_u32 v13, v6, 4, v13
    v_add_u32 v13, s13, v13
    """)
    for c in range(2):
        R_ = LR[c]
        a(f"""
        buffer_load_dwordx4 v[{R_['U']}:{R_['U']+3}], v1, s[20:23], s{43+c} offen
        buffer_load_dwordx2 v[{R_['Um']}:{R_['Um']+1}], v4, s[20:23], s{43+c} offen
        """)
    for c in range(2):
        R_ = LR[c]
        a(f"""
        buffer_load_ushort v{R_['D']}, v8, s[36:39], 0 offen offset:{2*c}
        buffer_load_dwordx4 v[{R_['Ue']}:{R_['Ue']+3}], v13, s[20:23], s{43+c} offen
        """)
    mfmas(2, mark)
    TS(a, 2)
    if os.environ.get("CPRIOI"): a(f"s_setprio {os.environ['CPRIOI']}")
    a(f"""
    v_mov_b32 v40, 0
    v_mov_b32 v41, 0
    v_mov_b32 v42, 0
    v_mov_b32 v43, 0
    v_cmp_gt_u32 vcc, 160, v15
    s_and_saveexec_b64 s[40:41], vcc
    ds_write_b128 v1, v[40:43] offset:{KH}
    ds_write_b128 v1, v[40:43] offset:{KL}
    ds_write_b128 v1, v[40:43] offset:{CB+KH}
    ds_write_b128 v1, v[40:43] offset:{CB+KL}
    s_mov_b64 exec, s[40:41]
    s_nop 3
    """)
    for tau in range(3):
        for r in range(4):
            c = ACC + tau*8 + r
            a(f"v_add_f32 v{c}, v{c}, v{c+4}")
            a(f"ds_write_b32 v60, v{c} offset:{r*TRS+tau*64}")
    a(f"""
    v_lshrrev_b32 v7, 2, v15
    v_mul_u32_u24 v7, 80, v7
    v_and_b32 v12, 3, v15
    v_lshl_add_u32 v7, v12, 4, v7
    v_lshrrev_b32 v9, 2, v15
    v_mul_u32_u24 v9, 4160, v9
    v_lshl_add_u32 v9, v12, 4, v9
    v_sub_u32 v12, 255, v15
    v_lshlrev_b32 v12, 4, v12
    s_mov_b32 s42, 0xffff
    ; A base
    v_sub_u32 v3, 3, v5
    v_and_b32 v3, 3, v3             ; r
    v_mul_u32_u24 v1, 4160, v3
    v_add_u32 v3, v3, v5            ; b+r
    v_lshlrev_b32 v3, 1, v3
    v_sub_u32 v1, v1, v3
    v_lshl_add_u32 v1, v6, 4, v1
    s_lshl_b32 s14, s3, 6
    s_sub_u32 s15, {UB+4094-3840}, s14
    v_add_u32 v1, s15, v1
    ; B base
    v_mul_u32_u24 v2, 80, v5
    v_lshl_add_u32 v2, v6, 4, v2
    s_sub_u32 s14, 3, s3
    s_mul_i32 s14, s14, 80
    v_add_u32 v2, s14, v2
    s_waitcnt lgkmcnt(0)
    s_barrier
    """)
    for c in range(2):
        for e in range(8):
            a(f"ds_read2st64_b32 v[{64+c*16+2*e}:{65+c*16+2*e}], v{52+e} offset0:{128*c+60} offset1:{128*c+93}")
    for c in range(2):
        a(f"s_waitcnt lgkmcnt({8*(1-c)})")
        for e in range(8):
            a(f"v_add_f32 v{64+c*16+2*e}, v{64+c*16+2*e}, v{65+c*16+2*e}")
        if c == 1:
            a("s_barrier")
        for i in range(4):
            k0_, k1_ = 64+c*16+4*i, 66+c*16+4*i
            a(f"""
            v_cvt_pk_bf16_f32 v{32+8*c+i}, v{k0_}, v{k1_}
            v_lshlrev_b32 v20, 16, v{32+8*c+i}
            v_and_b32 v21, 0xffff0000, v{32+8*c+i}
            v_sub_f32 v20, v{k0_}, v20
            v_sub_f32 v21, v{k1_}, v21
            v_cvt_pk_bf16_f32 v{36+8*c+i}, v20, v21
            """)
        a(f"ds_write_b128 v7, v[{32+8*c}:{35+8*c}] offset:{c*CB+KH+32*80}")
        a(f"ds_write_b128 v7, v[{36+8*c}:{39+8*c}] offset:{c*CB+KL+32*80}")
    a(f"""
    v_mov_b32 v16, 0
    v_mov_b32 v17, 0
    v_mov_b32 v18, 0
    v_mov_b32 v19, 0
    v_cmp_gt_u32 vcc, 16, v15
    s_and_saveexec_b64 s[40:41], vcc
    ds_write_b128 v9, v[16:19] offset:{UB+4096}
    ds_write_b128 v9, v[16:19] offset:{CB+UB+4096}
    s_mov_b64 exec, s[40:41]
    v_cmp_eq_u32 vcc, 0, v15
    """)
    for c in range(2):
        R_ = LR[c]
        a(f"s_waitcnt vmcnt({4+2*(1-c)})")
        if c == 1:
            a(f"v_cndmask_b32_e64 v{R_['Um']}, v{R_['Um']}, 0, vcc")
            a(f"v_cndmask_b32_e64 v{R_['Um']+1}, v{R_['Um']+1}, 0, vcc")
        S = {-2: R_['Um'], -1: R_['Um']+1, 0: R_['U'], 1: R_['U']+1, 2: R_['U']+2, 3: R_['U']+3}
        for r in range(4):
            d = 96 + 16*c + 4*r
            for j in range(4):
                if r % 2 == 0:
                    p = 3 - r//2 - j
                    a(f"v_alignbit_b32 v{d+j}, v{S[p]}, v{S[p]}, 16")
                else:
                    p = (7-r)//2 - j
                    a(f"v_bfi_b32 v{d+j}, s42, v{S[p]}, v{S[p-1]}")
            a(f"ds_write_b128 v12, v[{d}:{d+3}] offset:{c*CB+UB+r*4160}")
    a("s_waitcnt lgkmcnt(0)")
    a("s_barrier")
    TS(a, 3)
    if os.environ.get("CPRIO2"): a(f"s_setprio {os.environ['CPRIO2']}")
    steps = [(c, i, ks) for c in range(2) for i in range(8) for ks in range(2)]
    def loads(n):
        c, i, ks = steps[n]
        af = 16 + (n % 2)*24; bf_ = af + 8
        for z in range(2):
            off = c*CB + 64*(60-4*(i+8*z)) + 32*ks
            a(f"ds_read_b64 v[{af+4*z}:{af+4*z+1}], v1 offset:{off}")
            a(f"ds_read_b64 v[{af+4*z+2}:{af+4*z+3}], v1 offset:{off+8}")
            for blk in ([0] if z == 0 else [1]):
                for hl in range(2):
                    img = KH if hl == 0 else KL
                    o = c*CB + img + (32+32*blk-4*i)*80 + 32*ks - 240
                    r_ = bf_ + (blk*2+hl)*4
                    a(f"ds_read_b128 v[{r_}:{r_+3}], v2 offset:{o}")
        return 8
    loads(0)
    NST = len(steps)
    for n in range(NST):
        c, i, ks = steps[n]
        if n+1 < NST:
            cn = loads(n+1)
            a(f"s_waitcnt lgkmcnt({cn})")
        else:
            a("s_waitcnt lgkmcnt(0)")
        af = 16 + (n % 2)*24; bf_ = af + 8
        first = (i == 0 and ks == 0)
        a0, a1 = 64 + c*32, 80 + c*32
        for j, (ac, z, blk, hl) in enumerate([(a0,0,0,0), (a1,1,0,0), (a0,0,0,1), (a1,0,1,0), (a1,1,0,1), (a1,0,1,1)]):
            r_ = bf_ + (blk*2+hl)*4
            cin = "0" if (first and j < 2) else f"v[{ac}:{ac+15}]"
            a(f"v_mfma_f32_32x32x16_bf16 v[{ac}:{ac+15}], v[{af+4*z}:{af+4*z+3}], v[{r_}:{r_+3}], {cin}")
    TS(a, 4)
    if os.environ.get("CPRIO3"): a(f"s_setprio {os.environ['CPRIO3']}")
    srd(a, 24, 16, 17, FLG, 98304)
    a("""
    s_nop 7
    s_barrier
    s_lshl_b32 s14, s3, 13
    v_lshlrev_b32 v1, 4, v0
    v_add_u32 v2, s14, v1
    """)
    for c in range(2):
        for qq in range(8):
            a(f"ds_write_b128 v2, v[{64+32*c+4*qq}:{67+32*c+4*qq}] offset:{c*CB+qq*1024}")
    a("""
    s_lshl_b32 s14, s3, 11
    v_lshlrev_b32 v1, 4, v5
    v_lshl_add_u32 v1, v6, 10, v1
    v_add_u32 v1, s14, v1
    s_lshr_b32 s45, s2, 5
    s_lshr_b32 s14, s3, 1
    s_lshl_b32 s14, s14, 7
    s_add_u32 s45, s45, s14
    s_add_u32 s45, s45, 128
    s_lshl_b32 s45, s45, 8
    s_and_b32 s14, s2, 31
    s_lshl_b32 s14, s14, 1
    s_and_b32 s15, s3, 1
    s_add_u32 s14, s14, s15
    s_lshl_b32 s14, s14, 2
    s_add_u32 s45, s45, s14
    s_waitcnt lgkmcnt(0)
    s_barrier
    """)
    for c in range(2):
        for ww in range(4):
            for e in range(2):
                r_ = 64 + c*32 + (ww*2+e)*4
                a(f"ds_read_b128 v[{r_}:{r_+3}], v1 offset:{c*CB+ww*8192+e*512}")
    a("s_waitcnt lgkmcnt(0) vmcnt(0)")
    for c in range(2):
        R_ = LR[c]
        a(f"v_lshlrev_b32 v{R_['D']}, 16, v{R_['D']}")
        o = 56 + 4*c
        for e in range(2):
            for j in range(4):
                r_ = 64 + c*32 + e*4 + j
                a(f"v_add_f32 v{r_}, v{r_}, v{r_+8}")
                a(f"v_add_f32 v{r_+16}, v{r_+16}, v{r_+24}")
                a(f"v_add_f32 v{r_}, v{r_}, v{r_+16}")
            y = 64 + c*32 + e*4
            for p in range(2):
                uu = R_['Ue'] + 2*e + p
                a(f"""
                v_cvt_pk_bf16_f32 v48, v{y+2*p}, v{y+2*p+1}
                v_lshlrev_b32 v49, 16, v48
                v_and_b32 v50, 0xffff0000, v48
                v_lshlrev_b32 v51, 16, v{uu}
                v_and_b32 v52, 0xffff0000, v{uu}
                v_mul_f32 v51, v51, v{R_['D']}
                v_mul_f32 v52, v52, v{R_['D']}
                v_cvt_pk_bf16_f32 v48, v51, v52
                v_lshlrev_b32 v51, 16, v48
                v_and_b32 v52, 0xffff0000, v48
                v_add_f32 v49, v49, v51
                v_add_f32 v50, v50, v52
                v_cvt_pk_bf16_f32 v{o+2*e+p}, v49, v50
                """)
        a(f"buffer_store_dwordx4 v[{o}:{o+3}], v13, s[32:35], s{43+c} offen sc1")
    TS(a, 5)
    a(f"""
    {"s_waitcnt vmcnt(0)" if TSON else ""}
    """)
    TS(a, 6)
    TR(a, 9)
    TSDUMP(a, 10, "c")
    a("s_endpgm")

E = os.environ.get
NBR, NBL = 12, 8
XS = 11
def breg(j): return 160 if j == 11 else 168 + ((j + 10) % 11)*8
def kk(j): return (j//2)*4 + (j % 2) if j < 14 else ((j-14)//2)*4 + 2 + (j % 2)
def g2_early(a):
    srd(a, 84, 16, 17, WF, WSZ)
    a(f"""
    s_and_b32 s44, s2, 7
    s_lshl_b32 s44, s44, 2
    s_bfe_u32 s45, s2, 0x20003
    s_add_u32 s44, s44, s45         ; tt
    s_lshr_b32 s45, s2, 5           ; dt
    s_mul_i32 s14, s3, {WS_*1024}
    s_mul_i32 s18, s44, {2*RSH}
    s_add_u32 s18, s18, s14
    s_mul_i32 s19, s45, {2*RSH}
    s_add_u32 s19, s19, s14
    s_lshl_b32 s43, s44, 2
    s_add_u32 s43, s43, s3
    s_lshl_b32 s43, s43, 8
    s_lshl_b32 s61, s3, 14
    s_add_u32 s8, s61, 8192
    s_cmp_eq_u32 s3, 0
    s_cselect_b32 s61, 73728, s61
    v_lshlrev_b32 v4, 4, v0         ; lane*16
    v_add_u32 v5, {RSH}, v4
    """)
def g2_late(a):
    srd(a, 32, 16, 17, FLG, 98304)
    srd(a, 36, 16, 17, AT, SZ2M)
    srd(a, 48, 56, 57, 0, SZ2M)
    srd(a, 52, 58, 59, 0, SZ2M)
def g2_b1(a, st, cb):
    r = breg(st) + cb*4
    if cb == 0: a(f"s_add_u32 s14, s19, {kk(st)*1024}")
    a(f"buffer_load_dwordx4 v[{r}:{r+3}], v{4+cb}, s[84:87], s14 offen")
def g2_bpre_lds(a, q=None):
    for j in range(NBL):
        st = NBR + j
        a(f"s_add_u32 s14, s19, {kk(st)*1024}")
        for cb in range(2):
            c = j*2+cb
            a(f"s_add_u32 m0, s{61 if c < 8 else 8}, {(c%8)*1024}")
            a("s_nop 0")
            a(f"buffer_load_dwordx4 v{4+cb}, s[84:87], s14 offen lds")
            if q is not None: q.append(("bl", st))

def poll(a, tag, soff, target, off=0, slp=2):
    a(f"""
    s_mov_b32 s9, 0
    Lp_{tag}:
    buffer_load_dword v7, v6, s[32:35], s{soff} offen offset:{off} sc1
    s_waitcnt vmcnt(0)
    v_readfirstlane_b32 s14, v7
    s_add_u32 s9, s9, 1
    s_cmp_ge_u32 s14, {target}
    s_cbranch_scc1 Lpd_{tag}
    s_cmp_ge_u32 s9, {POLL_LIMIT}
    s_cbranch_scc1 Lpd_{tag}
    s_sleep {slp}
    s_branch Lp_{tag}
    Lpd_{tag}:
    """)

def gemm2(a):
    a("L1_g2:")
    if E("PRIO2"): a(f"s_setprio {E('PRIO2')}")
    a("v_mov_b32 v6, 0")
    a("s_barrier")
    poll(a, "h", 43, 7)
    TS(a, 9)
    NS = 28
    q = []
    def wait_for(tags):
        idx = max(i for i, t in enumerate(q) if t in tags)
        n = len(q) - 1 - idx
        assert n <= 63
        a(f"s_waitcnt vmcnt({n})")
    free = [96 + 8*i for i in range(8)]
    pend = []
    for st in range(NS):
        pend.append(("A", st))
        if st >= NBR + NBL: pend.append(("B", st))
    loc = {}
    for st in range(NBR): loc[("B", st)] = breg(st)
    fb = [False]
    def issue():
        while pend and free:
            k, st = pend[0]
            if k == "A" and st >= 14 and not fb[0]:
                fb[0] = True
                wait_for([("F", 1)])
                a(f"""
                v_readfirstlane_b32 s14, v7
                s_cmp_ge_u32 s14, 7
                s_cbranch_scc1 Lpd_hb
                """)
                poll(a, "hb", 43, 7, off=128)
            pend.pop(0)
            r = free.pop(0)
            loc[(k, st)] = r
            a(f"s_add_u32 s41, s{18 if k == 'A' else 19}, {kk(st)*1024}")
            for j in range(2):
                a(f"buffer_load_dwordx4 v[{r+4*j}:{r+4*j+3}], v{4+j}, s[{28 if k == 'A' else 84}:{31 if k == 'A' else 87}], s41 offen")
                q.append((k, st))
    issue()
    FBI = int(E("FBI", "-1"))
    def fbload():
        a("buffer_load_dword v7, v6, s[32:35], s43 offen offset:128 sc1")
        q.append(("F", 1))
    if FBI < 0: fbload()
    a(f"""
    v_and_b32 v8, 15, v0
    v_lshrrev_b32 v9, 4, v0         ; dg
    s_lshl_b32 s62, s44, 6
    s_lshl_b32 s63, s45, 6
    s_lshl_b32 s14, s3, 4
    v_add_u32 v10, s14, v8          ; t local
    v_add_u32 v11, s62, v10
    v_lshlrev_b32 v13, 10, v11
    v_lshl_add_u32 v13, v9, 4, v13
    s_lshl_b32 s15, s63, 1
    v_add_u32 v13, s15, v13
    v_lshrrev_b32 v12, 3, v0
    v_add_u32 v12, s14, v12
    v_add_u32 v12, s63, v12
    v_lshlrev_b32 v12, 12, v12
    v_and_b32 v11, 7, v0
    v_lshl_add_u32 v12, v11, 4, v12
    s_lshl_b32 s15, s62, 1
    v_add_u32 v12, s15, v12
    s_lshl_b32 s20, s3, 11
    s_add_u32 s20, s20, 65536
    s_mov_b32 s21, 32768
    s_lshl_b32 s14, s44, 3
    s_add_u32 s45, s45, s14
    s_add_u32 s45, s45, 128
    s_lshl_b32 s45, s45, 8
    v_and_b32 v11, 31, v0
    v_lshrrev_b32 v14, 5, v0
    v_xor_b32 v14, v14, v8
    v_lshlrev_b32 v14, 4, v14
    v_lshl_add_u32 v14, v11, 8, v14
    s_lshl_b32 s14, s3, 14
    v_add_u32 v14, s14, v14
    v_lshlrev_b32 v15, 1, v9
    v_xor_b32 v15, v15, v8
    v_lshlrev_b32 v15, 4, v15
    v_lshl_add_u32 v15, v10, 8, v15
    v_lshrrev_b32 v1, 2, v8
    v_lshl_add_u32 v1, v9, 3, v1
    v_lshlrev_b32 v1, 7, v1
    v_and_b32 v11, 3, v0
    v_lshl_add_u32 v1, v11, 3, v1
    s_lshl_b32 s14, s3, 5
    s_add_u32 s14, s14, 65536
    v_add_u32 v1, s14, v1
    v_add_u32 v2, s61, v4
    v_add_u32 v3, s8, v4
    """)
    ACC = 16
    X_R = 248
    def acc(cb, rb): return ACC + (cb*2+rb)*16
    def ldsb(st):
        j = st - NBR
        r = 80 + 8*(st % 2)
        loc[("B", st)] = r
        vb = 2 if j < 4 else 3
        a(f"ds_read_b128 v[{r}:{r+3}], v{vb} offset:{((2*j)%8)*1024}")
        a(f"ds_read_b128 v[{r+4}:{r+7}], v{vb} offset:{((2*j+1)%8)*1024}")
    def atload(r):
        for j in range(2):
            a(f"buffer_load_dwordx4 v[{r+4*j}:{r+4*j+3}], v12, s[36:39], {'0' if j == 0 else 's21'} offen sc1")
            q.append(("T", 0))
    def atchk(r):
        a(f"""
        v_max3_u32 v11, v{r}, v{r+1}, v{r+2}
        v_max3_u32 v7, v{r+3}, v{r+4}, v{r+5}
        v_max3_u32 v11, v11, v{r+6}, v{r+7}
        v_max_u32 v11, v11, v7
        v_cmp_eq_u32 vcc, {'-1' if not E("NOC") else '0x12345'}, v11
        s_nop 1
        s_cmp_eq_u64 vcc, 0
        """)
    FPOLL, FCHK = int(E("FPOLL", "18")), int(E("FCHK", "25"))
    TR_ = [None]
    for st in range(NS):
        lds_next = NBR <= st+1 < NBR+NBL
        if lds_next: ldsb(st+1)
        tags = [("A", st)] + ([("B", st)] if st >= NBR+NBL else [])
        wait_for(tags)
        if NBR <= st < NBR+NBL: a(f"s_waitcnt lgkmcnt({2 if lds_next else 0})")
        for rb in range(2):
            for cb in range(2):
                c = acc(cb, rb); x = loc[("A", st)] + 4*rb; y = loc[("B", st)] + 4*cb
                cin = "0" if st == 0 else f"v[{c}:{c+15}]"
                a(f"v_mfma_f32_32x32x16_bf16 v[{c}:{c+15}], v[{y}:{y+3}], v[{x}:{x+3}], {cin}")
        free.append(loc[("A", st)])
        if (st < NBR and loc[("B", st)] < X_R) or st >= NBR+NBL: free.append(loc[("B", st)])
        if st == FBI: fbload()
        issue()
        if st == FPOLL:
            assert fb[0] and not pend
            TR_[0] = free.pop(0)
            for j in range(2):
                a(f"buffer_load_dwordx4 v[{X_R+4*j}:{X_R+4*j+3}], v13, s[48:51], 0 offen offset:{64*j}")
                q.append(("X", 0))
            atload(TR_[0])
        if st == FCHK:
            wait_for([("T", 0)])
            atchk(TR_[0])
            a("s_cselect_b32 s22, 0, 1")
    assert not pend
    TS(a, 10)
    a("s_nop 15")
    for cb in range(2):
        for rb in range(2):
            for i in range(4):
                c = acc(cb, rb) + 4*i
                dq = cb*8 + 2*i
                if dq == 0: vv = 14
                else:
                    vv = 11
                    a(f"v_xor_b32 v11, {dq*16}, v14")
                a(f"ds_write_b128 v{vv}, v[{c}:{c+3}] offset:{rb*8192}")
    a(f"""
    s_cmp_eq_u32 s22, 0
    s_cbranch_scc1 La_ok
    s_mov_b32 s9, 0
    Lp_a:
    """)
    atload(TR_[0])
    a("s_waitcnt vmcnt(0)")
    atchk(TR_[0])
    a(f"""
    s_cbranch_scc1 La_ok
    s_add_u32 s9, s9, 1
    s_cmp_ge_u32 s9, {POLL_LIMIT}
    s_cbranch_scc1 La_ok
    s_sleep {E("ASLP", "1")}
    s_branch Lp_a
    """)
    a("La_ok:")
    a("v_add_u32 v11, s20, v4")
    for j in range(2):
        a(f"ds_write_b128 v11, v[{TR_[0]+4*j}:{TR_[0]+4*j+3}] offset:{j*1024}")
    a("""
    v_xor_b32 v11, 16, v15
    v_xor_b32 v10, 128, v15
    v_xor_b32 v9, 144, v15
    s_waitcnt vmcnt(0) lgkmcnt(0)
    s_barrier
    """)
    AT_R = 80
    va = [15, 11, 10, 9]
    for j in range(2):
        for ww in range(4):
            for hh in range(2):
                r = 16 + j*32 + ww*8 + hh*4
                a(f"ds_read_b128 v[{r}:{r+3}], v{va[j*2+hh]} offset:{ww*16384}")
        for hh in range(2):
            a(f"ds_read_b64_tr_b16 v[{AT_R+4*j+2*hh}:{AT_R+4*j+2*hh+1}], v1 offset:{(32*j+4*hh)*128}")
    for j in range(2):
        a(f"s_waitcnt lgkmcnt({10*(1-j)})")
        b = 16 + j*32
        for e in range(8):
            a(f"v_add_f32 v{b+e}, v{b+e}, v{b+8+e}")
            a(f"v_add_f32 v{b+16+e}, v{b+16+e}, v{b+24+e}")
        for p in range(4):
            at = AT_R + 4*j + p; x0 = X_R + 4*j + p
            a(f"""
            v_lshlrev_b32 v{b+8+2*p}, 16, v{at}
            v_and_b32 v{b+9+2*p}, 0xffff0000, v{at}
            v_lshlrev_b32 v{b+24+2*p}, 16, v{x0}
            v_and_b32 v{b+25+2*p}, 0xffff0000, v{x0}
            """)
        for e in range(8):
            a(f"v_add_f32 v{b+e}, v{b+e}, v{b+16+e}")
            a(f"v_add_f32 v{b+8+e}, v{b+8+e}, v{b+24+e}")
        for e in range(8):
            a(f"v_cvt_pk_bf16_f32 v{b+e}, 0, v{b+e}")
            a(f"v_cvt_pk_bf16_f32 v{b+8+e}, 0, v{b+8+e}")
        for e in range(8):
            a(f"v_add_f32 v{b+e}, v{b+e}, v{b+8+e}")
        for p in range(4):
            a(f"v_cvt_pk_bf16_f32 v{b+16+p}, v{b+2*p}, v{b+2*p+1}")
        a(f"buffer_store_dwordx4 v[{b+16}:{b+19}], v13, s[52:55], 0 offen offset:{64*j}")
    if TSON: a("s_waitcnt vmcnt(0)")
    TS(a, 11)
    TSDUMP(a, 12, "g")
    a("s_endpgm")

SLOW = []
MAP0 = """
    s_lshr_b32 s12, s2, 3
    s_mul_i32 s13, s12, 37
    s_lshr_b32 s13, s13, 8          ; q/7
    s_mul_i32 s14, s13, 7
    s_sub_u32 s14, s12, s14         ; q%7
    s_and_b32 s15, s2, 3
    s_mov_b32 s97, s15              ; ct/7
    s_mul_i32 s15, s15, 7
    s_add_u32 s10, s15, s14         ; ct
    s_bfe_u32 s15, s2, 0x10002
    s_lshl_b32 s15, s15, 2
    s_add_u32 s11, s15, s13         ; rt
"""
def gemm1(a):
    TS(a, 0)
    if E("PRIO"): a(f"s_setprio {E('PRIO')}")
    srd(a, 20, 16, 17, XN, 64*XRS)
    a(f"""
    s_cmp_ge_u32 s3, 2
    s_cselect_b32 s24, s6, s4
    s_cselect_b32 s25, s7, s5
    s_and_b32 s25, s25, 0xffff
    s_mov_b32 s26, 0x1c0000
    s_mov_b32 s27, 0x20000
    {MAP0}
    s_lshl_b32 s12, s11, 3
    s_lshl_b32 s13, s3, 1
    s_add_u32 s12, s12, s13
    s_mul_i32 s12, s12, {XRS}
    v_lshlrev_b32 v1, 4, v0
    v_add_u32 v1, s12, v1
    v_lshrrev_b32 v5, 3, v0         ; row8
    v_and_b32 v6, 7, v0             ; c'
    v_and_b32 v7, 3, v5
    v_lshlrev_b32 v7, 1, v7
    v_xor_b32 v6, v6, v7
    v_mul_u32_u24 v2, 3584, v5
    s_lshl_b32 s13, s10, 7
    v_add_u32 v2, s13, v2
    v_lshl_add_u32 v2, v6, 4, v2
    s_and_b32 s14, s3, 1
    s_mul_i32 s40, s14, {16*3584}
    s_lshr_b32 s15, s3, 1
    s_lshl_b32 s42, s15, 12
    s_lshl_b32 s14, s14, 11
    s_add_u32 s42, s42, s14
    s_add_u32 s42, s42, 8192
    """)
    sx = [32,33,34,35,36,37,38,39,48,49,50,51,52,53,54,55]
    for rb in range(2):
        for h in range(8):
            a(f"s_mov_b32 s{sx[rb*8+h]}, {rb*XRS+h*4096}")
    ACC = 16
    def acc(mat, cb, rb): return ACC + ((cb*2+rb)*2+mat)*16
    NS, NSL = 16, 7
    KT = int(E("KT", "24"))
    assert KT % 2 == 0 and 22 <= KT <= 30
    FR = []
    for ks in range(KT): FR += [(ks,0,0),(ks,0,1),(ks,1,0),(ks,1,1)]
    for ks in range(KT, 32): FR += [(ks,0,0),(ks,0,1)]
    NB1 = len(FR)
    for ks in range(KT, 32): FR += [(ks,1,0),(ks,1,1)]
    NF = len(FR)
    last_use = {}
    first_use = {}
    for n, (ks, cb, mat) in enumerate(FR):
        last_use[ks] = n
        first_use.setdefault(ks, n)
    q = []
    def wait_for(tag):
        idx = max(i for i, t in enumerate(q) if t == tag)
        n = len(q) - 1 - idx
        assert n <= 63
        a(f"s_waitcnt vmcnt({n})")
    lq = []
    def wait_l(tag):
        idx = max(i for i, t in enumerate(lq) if t == tag)
        n = len(lq) - 1 - idx
        a(f"s_waitcnt lgkmcnt({min(n, 15)})")
    def xr(ks, rb): return 168 + (ks % XS)*8 + rb*4
    WFr, NR = 144, 6
    barr = -1
    def do_barrier(s):
        nonlocal barr
        wait_for(("w", s))
        a("s_barrier")
        barr = s
    def trread(n):
        ks, cb, mat = FR[n]
        if ks//2 > barr: do_barrier(ks//2)
        b = WFr + (n % NR)*4
        base = 8192 + ((ks//2) % NSL)*8192 + mat*4096 + (ks & 1)*2048
        a(f"ds_read_b64_tr_b16 v[{b}:{b+1}], v{8+cb} offset:{base}")
        a(f"ds_read_b64_tr_b16 v[{b+2}:{b+3}], v{8+cb} offset:{base+512}")
        lq.append(("f", n)); lq.append(("f", n))
    pend = []
    for s in range(NS):
        pend += [("w", s, 0), ("w", s, 1)] + [("x", 2*s+j, rb) for j in range(2) for rb in range(2)]
        if s == 3: pend += [("t", s, i) for i in range(4)]
    for j in range(11): pend += [("b", j, 0), ("b", j, 1)]
    def issue1(t):
        k, s, i = t
        if k == "w":
            a(f"s_add_u32 s41, s40, {(32*s+8*i)*3584}")
            a(f"s_add_u32 m0, s42, {(s%NSL)*8192+i*1024}")
            a("s_nop 0")
            a(f"buffer_load_dwordx4 v2, s[24:27], s41 offen lds")
        elif k == "x":
            r = xr(s, i)
            a(f"buffer_load_dwordx4 v[{r}:{r+3}], v1, s[20:23], s{sx[i*8+(s>>2)]} offen offset:{(s&3)*1024}")
        elif k == "t":
            a(f"s_mov_b32 m0, s63")
            a("s_nop 0")
            a(f"buffer_load_dwordx4 v4, s[80:83], s62 offen offset:{i*1024} lds")
        else:
            g2_b1(a, s, i)
        q.append((k, s))
    PRO = int(E("PRO", "3"))
    def allowed(t, n):
        k, s, i = t
        ahead = (first_use[2*s if k == "w" else s] - n) if k in "wx" else 0
        if k == "w": return (s < NSL or barr >= s-(NSL-2)) and ahead <= 8*PRO+8
        if k == "x": return (s < XS or last_use[s-XS] <= n) and ahead <= 8*PRO+8
        if k == "t": return True
        return last_use[21+s] <= n
    for _ in range(6*min(PRO, 3)): issue1(pend.pop(0))
    a("""
    v_bfe_u32 v7, v0, 2, 2          ; r
    v_lshrrev_b32 v6, 5, v0
    v_lshl_add_u32 v6, v6, 3, v7    ; row_l
    v_bfe_u32 v10, v0, 4, 1
    v_bfe_u32 v11, v0, 1, 1
    v_lshl_add_u32 v10, v10, 1, v11 ; gc0
    v_lshlrev_b32 v7, 1, v7
    v_xor_b32 v10, v10, v7          ; pc
    v_lshlrev_b32 v8, 7, v6
    v_lshl_add_u32 v8, v10, 4, v8
    v_and_b32 v11, 1, v0
    v_lshl_add_u32 v8, v11, 3, v8
    v_xor_b32 v9, 64, v8
    """)
    g2_early(a)
    srd(a, 80, 16, 17, TB, 16384)
    a(f"""
    s_lshl_b32 s62, s3, 12
    s_and_b32 s63, s3, 1
    s_lshl_b32 s63, s63, 12
    s_lshr_b32 s14, s3, 1
    s_lshl_b32 s14, s14, 16
    s_add_u32 s63, s63, s14
    s_lshl_b32 s12, s11, 3
    s_lshl_b32 s13, s3, 1
    s_add_u32 s12, s12, s13
    s_mul_i32 s12, s12, {RSH}
    s_lshl_b32 s13, s10, 2
    s_mul_i32 s14, s97, {SKEW}
    s_add_u32 s13, s13, s14
    s_lshl_b32 s13, s13, 10
    s_add_u32 s12, s12, s13
    s_add_u32 s13, s12, {RSH}
    s_mov_b32 s46, 0x{TLO*0x10001:x}
    s_mov_b32 s47, {f32(KB)}
    s_mov_b32 s98, 0x8fff8fff
    v_mov_b32 v10, {f32(KA)}
    s_lshl_b32 s60, s11, 2
    s_add_u32 s60, s60, s3
    s_lshl_b32 s60, s60, 2
    s_add_u32 s60, s60, s97
    s_lshl_b32 s60, s60, 8
    """)
    TS(a, 1)
    PD = int(E("PD", "4"))
    assert PD < NR
    PT = [[12, 13, 14, 15], [1, 2, 3, 6]]
    units = [(cb, rb, sp) for cb in range(2) for rb in range(2) for sp in range(2)]
    def EA(k):
        cb, rb, sp = units[k]
        g = acc(0, cb, rb) + 8*sp; P = PT[k % 2]; S = 90 + 2*(k % 2)
        o = []
        for i in range(4): o.append(f"v_cvt_pk_bf16_f32 v{P[i]}, v{g+2*i}, v{g+2*i+1}")
        for i in range(4): o.append(f"v_subrev_u32 v{P[i]}, s46, v{P[i]}")
        o.append(f"v_or3_b32 v11, v{P[0]}, v{P[1]}, v{P[2]}")
        o.append(f"v_or_b32 v11, v11, v{P[3]}")
        o.append(f"v_and_b32 v11, 0x70007000, v11")
        o.append(f"v_cmp_ne_u32_e64 s[{S}:{S+1}], 0, v11")
        for i in range(4):
            o.append(f"v_and_b32 v7, s98, v{P[i]}")
            for h in range(2):
                o.append(f"v_lshlrev_b32_sdwa v{g+2*i+h}, 1, v7 dst_sel:DWORD dst_unused:UNUSED_PAD src0_sel:DWORD src1_sel:WORD_{h}")
        for j in range(8):
            def f(j=j):
                a(f"ds_read_u16_d16_hi v{g+j}, v{g+j}")
                lq.append(("g", k))
            o.append(f)
        SLOW.append((k, g, P))
        return o
    def EB(k):
        cb, rb, sp = units[k]
        g = acc(0, cb, rb) + 8*sp; u = acc(1, cb, rb) + 8*sp; S = 90 + 2*(k % 2)
        o = []
        for j in range(8): o.append(f"v_cvt_pk_bf16_f32 v{u+j}, 0, v{u+j}")
        def f():
            wait_l(("g", k))
            a(f"s_cmp_lg_u64 s[{S}:{S+1}], 0")
            a(f"s_cbranch_scc1 Lslow_{k}")
            a(f"Lback_{k}:")
        o.append(f)
        for j in range(8): o.append(f"v_mul_f32_e32 v{u+j}, v{g+j}, v{u+j}")
        for i in range(4): o.append(f"v_cvt_pk_bf16_f32 v{g+i}, v{u+2*i}, v{u+2*i+1}")
        def s():
            a(f"buffer_store_dwordx4 v[{g}:{g+3}], v4, s[28:31], s{12+rb} offen offset:{(cb*2+sp)*1024} sc1")
            q.append(("h", cb))
        o.append(s)
        return o
    def stream(k0):
        return EA(k0) + EA(k0+1) + EB(k0) + EA(k0+2) + EB(k0+1) + EA(k0+3) + EB(k0+2) + EB(k0+3)
    def emit(o):
        if callable(o): o()
        else: a(o)
    ES = stream(0)
    per = -(-len(ES)//(2*(NF-NB1-int(E("EFL", "2")))))
    for n in range(PD): trread(n)
    for n in range(NF):
        ks, cb, mat = FR[n]
        if n == 0: TS(a, 2)
        if n == 64: TS(a, 3)
        if n == NB1:
            TS(a, 4)
            assert all(t[0] == "b" for t in pend)
        if n+PD < NF: trread(n+PD)
        if n == first_use[ks]: wait_for(("x", ks))
        wait_l(("f", n))
        b = WFr + (n % NR)*4
        for rb in range(2):
            c = acc(mat, cb, rb)
            cin = "0" if ks == 0 else f"v[{c}:{c+15}]"
            a(f"v_mfma_f32_32x32x16_bf16 v[{c}:{c+15}], v[{b}:{b+3}], v[{xr(ks,rb)}:{xr(ks,rb)+3}], {cin}")
            if n > NB1:
                for _ in range(per):
                    if ES: emit(ES.pop(0))
        for _ in range(2 if n >= 4*KT - 16 else 1):
            if pend and allowed(pend[0], n): issue1(pend.pop(0))
    while ES: emit(ES.pop(0))
    while pend: issue1(pend.pop(0))
    TS(a, 6)
    g2_late(a)
    a("s_barrier")
    BL = []
    def mkb(cb):
        def f():
            a(f"s_add_u32 s14, s19, {kk(11)*1024}")
            r = breg(11) + cb*4
            a(f"buffer_load_dwordx4 v[{r}:{r+3}], v{4+cb}, s[84:87], s14 offen")
            q.append(("b", 11))
        return f
    def mkl(j, cb):
        def f():
            st = NBR + j; c = j*2+cb
            a(f"s_add_u32 s14, s19, {kk(st)*1024}")
            a(f"s_add_u32 m0, s{61 if c < 8 else 8}, {(c%8)*1024}")
            a("s_nop 0")
            a(f"buffer_load_dwordx4 v{4+cb}, s[84:87], s14 offen lds")
            q.append(("bl", st))
        return f
    BL = [mkb(0), mkb(1)] + [mkl(j, cb) for j in range(NBL) for cb in range(2)]
    def flag(cb):
        wait_for(("h", cb))
        a(f"""
        v_mov_b32 v8, 0
        v_mov_b32 v9, 1
        s_mov_b64 exec, 1
        buffer_atomic_add v9, v8, s[32:35], s60 offen offset:{128*cb}
        s_mov_b64 exec, -1
        """)
        q.append(("fl", cb))
    ES = stream(4)
    FAP = int(len(ES)*float(E("FAP", "1.0")))
    BSP = float(E("BSP", "0"))
    nb = len(BL); done = 0
    for i, o in enumerate(ES):
        if i == FAP:
            flag(0); TS(a, 5)
        want = nb if BSP <= 0 else min(nb, int(nb*(i+1)/(BSP*len(ES)))+1)
        if BSP <= 1.0:
            while done < want:
                BL[done](); done += 1
        emit(o)
    TS(a, 7)
    if FAP >= len(ES):
        flag(0); TS(a, 5)
    while done < nb:
        BL[done](); done += 1
    flag(1)
    TS(a, 8)

def slowpaths(a):
    for (k, g, P) in SLOW:
        a(f"Lslow_{k}:")
        a("s_waitcnt lgkmcnt(0)")
        for i in range(4):
            a(f"""
            v_add_u32 v{P[i]}, s46, v{P[i]}
            v_lshlrev_b32 v7, 16, v{P[i]}
            v_and_b32 v{P[i]}, 0xffff0000, v{P[i]}
            """)
            for (G, S) in ((7, g+2*i), (P[i], g+2*i+1)):
                a(f"""
                v_mul_f32_e32 v{S}, v{G}, v{G}
                v_fma_f32 v{S}, v{S}, s47, v10
                v_mul_f32_e32 v{S}, v{S}, v{G}
                v_exp_f32_e32 v{S}, v{S}
                s_nop 0
                v_add_f32_e32 v{S}, 1.0, v{S}
                v_rcp_f32_e32 v{S}, v{S}
                s_nop 0
                v_mul_f32_e32 v{S}, v{S}, v{G}
                v_cvt_pk_bf16_f32 v{S}, 0, v{S}
                """)
        a(f"s_branch Lback_{k}")

def k1(a):
    header(a, "main_kernel")
    a(f"""
    s_cmp_ge_u32 s2, 512
    s_cbranch_scc1 L1_exit
    s_load_dwordx4 s[4:7], s[0:1], 64
    s_load_dwordx2 s[8:9], s[0:1], 48
    s_load_dwordx2 s[16:17], s[0:1], 104
    s_load_dwordx2 s[56:57], s[0:1], 0
    s_load_dwordx2 s[58:59], s[0:1], 88
    v_lshrrev_b32 v5, 6, v0
    v_mov_b32 v15, v0
    v_readfirstlane_b32 s3, v5      ; wave
    v_and_b32 v0, 63, v0
    s_mov_b32 s96, s2
    {"s_memrealtime s[98:99]" if TSALL else ""}
    s_waitcnt lgkmcnt(0)
    {"s_mov_b32 s99, s98" if TSALL else ""}
    s_cmp_lt_u32 s2, 256
    s_cbranch_scc1 {"L1_exit" if E("NOC") else "L1_conv"}
    {"s_endpgm" if E("NOG") else ""}
    s_sub_u32 s2, s2, 256
    """)
    srd(a, 28, 16, 17, HB, HSZ)
    a("""
    s_cmp_ge_u32 s2, 224
    s_cbranch_scc1 L1_h
    """)
    gemm1(a)
    gemm2(a)
    slowpaths(a)
    a("L1_h:")
    TS(a, 0)
    g2_early(a)
    g2_late(a)
    for _ in range(int(E("HSLP", "12"))): a("s_sleep 10")
    for st in range(NBR):
        g2_b1(a, st, 0); g2_b1(a, st, 1)
    g2_bpre_lds(a)
    a("s_branch L1_g2")
    a("L1_conv:")
    cpath(a)
    a("""
    L1_exit:
    s_endpgm
    """)

def build():
    launches = [f"; @launch kernel=prep_kernel grid=({NK0},1,1) block=(256,1,1) lds=16384",
                "; @launch kernel=main_kernel grid=(512,1,1) block=(256,1,1) lds=81920"]
    descs = [desc("prep_kernel", 72), desc("main_kernel", 256, acc=256)]
    body = A()
    k0(body)
    k1(body)
    txt = "\n".join(launches) + "\n"
    txt += '.amdgcn_target "amdgcn-amd-amdhsa--gfx950"\n.text\n'
    txt += body.text()
    txt += '.section .rodata,"a"\n' + "".join(descs)
    return txt

if __name__ == "__main__":
    out = sys.argv[1]
    open(out, "w").write(build())
    print("wrote", out)
```

```python
import sys, struct, math, os
OUT = "parallel_sum__ssm_conv_s4d__glu_gated_geglu__prompt.s"

class A:
    def __init__(self): self.l = []
    def __call__(self, s):
        for ln in s.strip("\n").split("\n"):
            self.l.append("    " + ln.strip() if not ln.strip().endswith(":") else ln.strip())
    def raw(self, s): self.l.append(s)
    def text(self): return "\n".join(self.l) + "\n"

def f32(x): return "0x%08x" % struct.unpack("<I", struct.pack("<f", x))[0]
LOG2E = 1.4426950408889634

XN, XNT, HB, AT, WF, FLG, TB = 0, 4<<20, 8<<20, 16<<20, 18<<20, 20<<20, 22<<20
SKEW = int(os.environ.get("SKEW", "1"))
WS_ = 29 if SKEW else 28
RSH = 4*WS_*1024 + (768 if SKEW else 0)
XRS = 32768 + (256 if SKEW else 0)
TLO = 0x3100
C0 = math.sqrt(2.0/math.pi)
KA = -2.0*LOG2E*C0
KB = KA*0.044715
SZ2M = 2<<20
HSZ = 64*RSH
WSZ = 16*RSH
POLL_LIMIT = 60000

def srd(a, s, lo, hi, off, size):
    if off:
        a(f"s_add_u32 s{s}, s{lo}, 0x{off:x}")
        a(f"s_addc_u32 s{s+1}, s{hi}, 0")
        a(f"s_and_b32 s{s+1}, s{s+1}, 0xffff")
    else:
        a(f"s_mov_b32 s{s}, s{lo}")
        a(f"s_and_b32 s{s+1}, s{hi}, 0xffff")
    a(f"s_mov_b32 s{s+2}, 0x{size:x}")
    a(f"s_mov_b32 s{s+3}, 0x20000")

def srd_dyn(a, s, lo, hi, off, sx, size):
    a(f"s_add_u32 s{s}, s{lo}, 0x{off:x}")
    a(f"s_addc_u32 s{s+1}, s{hi}, 0")
    a(f"s_add_u32 s{s}, s{s}, s{sx}")
    a(f"s_addc_u32 s{s+1}, s{s+1}, 0")
    a(f"s_and_b32 s{s+1}, s{s+1}, 0xffff")
    a(f"s_mov_b32 s{s+2}, 0x{size:x}")
    a(f"s_mov_b32 s{s+3}, 0x20000")

def header(a, name):
    a.raw(f".globl {name}")
    a.raw(".p2align 8")
    a.raw(f".type {name},@function")
    a.raw(f"{name}:")

def desc(name, vgpr, sgpr=100, acc=None):
    if acc is None: acc = (vgpr + 3)//4*4
    return f""".p2align 6
.amdhsa_kernel {name}
  .amdhsa_next_free_vgpr {vgpr}
  .amdhsa_next_free_sgpr {sgpr}
  .amdhsa_accum_offset {acc}
  .amdhsa_group_segment_fixed_size 0
  .amdhsa_kernarg_size 112
  .amdhsa_user_sgpr_count 2
  .amdhsa_user_sgpr_kernarg_segment_ptr 1
  .amdhsa_system_sgpr_workgroup_id_x 1
.end_amdhsa_kernel
"""

TSON = os.environ.get("TS", "") != ""
TSALL = os.environ.get("TS", "") == "all"
TSWG = 0 if TSALL else int(os.environ.get("TS", "0") or 0)
def TS(a, i):
    if not TSON: return
    a("s_memtime s[94:95]")
    a("s_waitcnt lgkmcnt(0)")
    a(f"s_mov_b32 s{64+i}, s94")
def TR(a, i):
    if not TSON: return
    a("s_memrealtime s[94:95]")
    a("s_waitcnt lgkmcnt(0)")
    a(f"s_mov_b32 s{64+i}, s94")
def TSDUMP(a, n, tag):
    if not TSON: return
    if TSALL:
        a(f"""
        s_cmp_lg_u32 s3, 0
        s_cbranch_scc1 Lts_{tag}
        s_memrealtime s[94:95]
        s_getreg_b32 s76, hwreg(HW_REG_HW_ID)
        s_getreg_b32 s77, hwreg(HW_REG_XCC_ID)
        s_lshl_b32 s92, s96, 7
        v_mov_b32 v1, s92
        s_waitcnt lgkmcnt(0)
        s_mov_b32 s78, s99
        s_mov_b32 s79, s94
        """)
        srd(a, 88, 16, 17, 24 << 20, 65536)
        for i in range(16):
            a(f"v_mov_b32 v2, s{64+i}")
            a(f"buffer_store_dword v2, v1, s[88:91], 0 offen offset:{4*i}")
        a(f"Lts_{tag}:")
        return
    a(f"""
    s_cmp_lg_u32 s96, {TSWG}
    s_cbranch_scc1 Lts_{tag}
    s_cmp_lg_u32 s3, 0
    s_cbranch_scc1 Lts_{tag}
    s_load_dwordx2 s[92:93], s[0:1], 96
    s_waitcnt lgkmcnt(0)
    """)
    srd(a, 88, 92, 93, 0, 256)
    a("v_mov_b32 v1, 0")
    for i in range(n):
        a(f"v_mov_b32 v2, s{64+i}")
        a(f"buffer_store_dword v2, v1, s[88:91], 0 offen offset:{4*i}")
    a(f"Lts_{tag}:")

PFN = int(os.environ.get("PFN", "0"))
NK0 = 245 + (128 if PFN else 0)
def k0(a):
    header(a, "prep_kernel")
    a(f"""
    s_cmp_ge_u32 s2, {NK0}
    s_cbranch_scc1 L0_exit
    s_load_dwordx2 s[4:5], s[0:1], 0
    s_load_dwordx2 s[18:19], s[0:1], 80
    s_load_dwordx2 s[16:17], s[0:1], 104
    s_waitcnt lgkmcnt(0)
    s_cmp_ge_u32 s2, 128
    s_cbranch_scc1 L0_swz
    """)
    srd(a, 20, 4, 5, 0, SZ2M)
    srd(a, 24, 16, 17, XN, 64*XRS)
    srd(a, 28, 16, 17, XNT, SZ2M)
    a("""
    s_lshl_b32 s3, s2, 4            ; r0
    v_lshrrev_b32 v1, 4, v0
    v_and_b32 v2, 15, v0            ; j
    v_add_u32 v3, s3, v1            ; row
    v_lshlrev_b32 v3, 10, v3
    v_lshl_add_u32 v3, v2, 4, v3    ; voffset
    """)
    for c in range(4):
        a(f"buffer_load_dwordx4 v[{8+4*c}:{11+4*c}], v3, s[20:23], 0 offen offset:{c*256}")
    srd(a, 40, 16, 17, AT, SZ2M)
    a("""
    v_mov_b32 v32, -1
    v_mov_b32 v33, -1
    v_mov_b32 v34, -1
    v_mov_b32 v35, -1
    v_lshlrev_b32 v36, 4, v0
    s_lshl_b32 s32, s2, 14
    """)
    for c in range(4):
        a(f"s_add_u32 s33, s32, {c*4096}")
        a(f"buffer_store_dwordx4 v[32:35], v36, s[40:43], s33 offen")
    a("s_waitcnt vmcnt(4)")
    for i in range(16):
        a(f"v_lshlrev_b32 v{32+2*i}, 16, v{8+i}")
        a(f"v_and_b32 v{33+2*i}, 0xffff0000, v{8+i}")
    a("v_add_f32 v4, v32, v33")
    a("v_add_f32 v5, v34, v35")
    for i in range(36, 64, 2):
        a(f"v_add_f32 v4, v4, v{i}")
        a(f"v_add_f32 v5, v5, v{i+1}")
    a("v_add_f32 v4, v4, v5")
    def rowsum(r):
        for ror in (8, 4, 2, 1):
            a("s_nop 1")
            a(f"v_add_f32_dpp v{r}, v{r}, v{r} row_ror:{ror} row_mask:0xf bank_mask:0xf")
    rowsum(4)
    a(f"v_mul_f32 v4, {f32(1.0/512)}, v4")
    a("v_sub_f32 v6, v32, v4")
    a("v_mul_f32 v5, v6, v6")
    a("v_sub_f32 v6, v33, v4")
    a("v_mul_f32 v7, v6, v6")
    for i in range(34, 64, 2):
        a(f"v_sub_f32 v6, v{i}, v4")
        a(f"v_fma_f32 v5, v6, v6, v5")
        a(f"v_sub_f32 v64, v{i+1}, v4")
        a(f"v_fma_f32 v7, v64, v64, v7")
    a("v_add_f32 v5, v5, v7")
    rowsum(5)
    a(f"""
    v_mul_f32 v5, {f32(1.0/512)}, v5
    v_cvt_pk_bf16_f32 v4, v4, v5
    v_and_b32 v5, 0xffff0000, v4
    v_lshlrev_b32 v4, 16, v4
    v_add_f32 v5, {f32(1e-5)}, v5
    v_cvt_pk_bf16_f32 v5, v5, v5
    v_lshlrev_b32 v5, 16, v5
    v_sqrt_f32 v5, v5
    s_nop 0
    v_cvt_pk_bf16_f32 v5, v5, v5
    v_lshlrev_b32 v5, 16, v5         ; s (bf16)
    v_rcp_f32 v6, v5
    s_nop 0
    """)
    for i in range(16):
        x0, x1 = 32+2*i, 33+2*i
        a(f"""
        v_sub_f32 v{x0}, v{x0}, v4
        v_sub_f32 v{x1}, v{x1}, v4
        v_cvt_pk_bf16_f32 v7, v{x0}, v{x1}
        v_lshlrev_b32 v{x0}, 16, v7
        v_and_b32 v{x1}, 0xffff0000, v7
        v_mul_f32 v64, v{x0}, v6
        v_mul_f32 v65, v{x1}, v6
        v_fma_f32 v66, -v64, v5, v{x0}
        v_fma_f32 v67, -v65, v5, v{x1}
        v_fma_f32 v64, v66, v6, v64
        v_fma_f32 v65, v67, v6, v65
        v_cvt_pk_bf16_f32 v{8+i}, v64, v65
        """)
    a(f"""
    v_lshlrev_b32 v7, 10, v1
    v_lshl_add_u32 v7, v2, 4, v7
    v_lshrrev_b32 v64, 1, v2
    v_lshlrev_b32 v64, 10, v64
    v_and_b32 v65, 1, v2
    v_lshl_add_u32 v64, v65, 9, v64
    v_lshl_add_u32 v64, v1, 4, v64
    s_lshr_b32 s34, s2, 1
    s_mul_i32 s34, s34, {XRS}
    s_and_b32 s35, s2, 1
    s_lshl_b32 s35, s35, 8
    s_add_u32 s34, s34, s35
    s_add_u32 s35, s34, 0x2000
    s_add_u32 s36, s34, 0x4000
    s_add_u32 s37, s34, 0x6000
    """)
    for c in range(4):
        a(f"buffer_store_dwordx4 v[{8+4*c}:{11+4*c}], v64, s[24:27], s{34+c} offen")
        a(f"ds_write_b128 v7, v[{8+4*c}:{11+4*c}] offset:{c*256}")
    a("""
    s_waitcnt lgkmcnt(0)
    s_barrier
    v_lshlrev_b32 v7, 2, v0
    """)
    for r in range(16):
        a(f"ds_read_b32 v{32+r}, v7 offset:{r*1024}")
    a("""
    s_mov_b32 s32, 0x05040100
    s_mov_b32 s33, 0x07060302
    v_lshlrev_b32 v3, 13, v0        ; d=2*tid -> d*4096
    s_lshl_b32 s3, s3, 1            ; r0*2 bytes
    v_add_u32 v3, s3, v3
    s_waitcnt lgkmcnt(0)
    """)
    for q in range(8):
        a(f"v_perm_b32 v{48+q}, v{33+2*q}, v{32+2*q}, s32")
        a(f"v_perm_b32 v{56+q}, v{33+2*q}, v{32+2*q}, s33")
    a("""
    buffer_store_dwordx4 v[48:51], v3, s[28:31], 0 offen
    buffer_store_dwordx4 v[52:55], v3, s[28:31], 0 offen offset:16
    v_add_u32 v3, 0x1000, v3
    buffer_store_dwordx4 v[56:59], v3, s[28:31], 0 offen
    buffer_store_dwordx4 v[60:63], v3, s[28:31], 0 offen offset:16
    s_endpgm
    """)
    a(f"""
    L0_swz:
    s_cmp_ge_u32 s2, 240
    s_cbranch_scc1 L0_zero
    """)
    srd(a, 24, 16, 17, WF, WSZ)
    srd(a, 20, 18, 19, 0, 1792*1024)
    a("""
    s_sub_u32 s3, s2, 128
    s_lshl_b32 s32, s3, 14
    v_lshlrev_b32 v1, 2, v0
    s_add_u32 s33, s32, 0x1000
    s_add_u32 s34, s32, 0x2000
    s_add_u32 s35, s32, 0x3000
    """)
    for e in range(16):
        a(f"buffer_load_dword v{8+e}, v1, s[20:23], s{32+e//4} offen offset:{(e%4)*1024}")
    a(f"""
    v_lshrrev_b32 v2, 4, v0
    v_mul_u32_u24 v2, {RSH}, v2
    v_and_b32 v3, 15, v0
    v_lshl_add_u32 v2, v3, 5, v2
    s_mul_i32 s36, s3, {147*SKEW}
    s_lshr_b32 s36, s36, 12
    s_add_u32 s36, s36, s3
    s_lshl_b32 s36, s36, 10
    s_mov_b32 s37, 0x05040100
    s_mov_b32 s38, 0x07060302
    """)
    for h in range(2):
        a(f"s_waitcnt vmcnt({4*(1-h)})")
        Rr = [4*h, 4*h+1, 4*h+2, 4*h+3, 8+4*h, 9+4*h, 10+4*h, 11+4*h]
        for p in range(4):
            a(f"v_perm_b32 v{32+8*h+p}, v{8+Rr[2*p+1]}, v{8+Rr[2*p]}, s37")
            a(f"v_perm_b32 v{36+8*h+p}, v{8+Rr[2*p+1]}, v{8+Rr[2*p]}, s38")
    for h in range(2):
        a(f"buffer_store_dwordx4 v[{32+8*h}:{35+8*h}], v2, s[24:27], s36 offen offset:{512*h}")
        a(f"buffer_store_dwordx4 v[{36+8*h}:{39+8*h}], v2, s[24:27], s36 offen offset:{512*h+16}")
    a("s_endpgm")
    a("L0_zero:")
    a("""
    s_cmp_ge_u32 s2, 241
    s_cbranch_scc1 L0_tab
    """)
    srd(a, 24, 16, 17, FLG, 98304)
    a("""
    v_lshlrev_b32 v1, 4, v0
    v_mov_b32 v4, 0
    v_mov_b32 v5, 0
    v_mov_b32 v6, 0
    v_mov_b32 v7, 0
    """)
    for i in range(24):
        a(f"s_mov_b32 s32, {i*4096}")
        a("buffer_store_dwordx4 v[4:7], v1, s[24:27], s32 offen")
    a("""
    s_endpgm
    L0_tab:
    """)
    if PFN:
        a("""
        s_cmp_ge_u32 s2, 245
        s_cbranch_scc1 L0_pf
        """)
    srd(a, 24, 16, 17, TB, 16384)
    a(f"""
    s_sub_u32 s3, s2, 241
    s_lshl_b32 s32, s3, 11
    v_lshl_add_u32 v1, v0, 3, s32   ; idx
    v_lshrrev_b32 v2, 12, v1        ; sign
    v_and_b32 v3, 4095, v1
    v_lshl_add_u32 v3, v2, 15, v3
    v_add_u32 v3, 0x{TLO:x}, v3
    v_lshlrev_b32 v3, 16, v3
    v_lshlrev_b32 v1, 1, v1
    s_mov_b32 s47, {f32(KB)}
    v_mov_b32 v10, {f32(KA)}
    """)
    for e in range(8): a(f"v_add_u32 v{16+e}, 0x{e<<16:x}, v3")
    gelu8(a, 16, 24)
    for i in range(4): a(f"v_cvt_pk_bf16_f32 v{32+i}, v{24+2*i}, v{25+2*i}")
    a("""
    buffer_store_dwordx4 v[32:35], v1, s[24:27], 0 offen
    L0_exit:
    s_endpgm
    """)
    if PFN:
        a("""
        L0_pf:
        s_load_dwordx4 s[40:43], s[0:1], 64
        s_load_dwordx8 s[48:55], s[0:1], 8
        s_load_dwordx2 s[56:57], s[0:1], 88
        s_sub_u32 s3, s2, 245
        v_lshlrev_b32 v1, 4, v0
        s_waitcnt lgkmcnt(0)
        s_cmp_ge_u32 s3, 112
        s_cbranch_scc1 L0_pf2
        """)
        srd(a, 20, 40, 41, 0, 1792*1024)
        srd(a, 24, 42, 43, 0, 1792*1024)
        a("s_lshl_b32 s32, s3, 14")
        for c in range(4):
            a(f"s_add_u32 s33, s32, {c*4096}")
            a(f"buffer_load_dwordx4 v[{8+8*c}:{11+8*c}], v1, s[20:23], s33 offen")
            a(f"buffer_load_dwordx4 v[{12+8*c}:{15+8*c}], v1, s[24:27], s33 offen")
        if PFN >= 2:
            srd(a, 28, 16, 17, HB, 8<<20)
            srd(a, 36, 56, 57, 0, SZ2M)
            a("""
            v_lshlrev_b32 v2, 15, v0
            v_lshlrev_b32 v3, 13, v0
            buffer_load_dword v40, v2, s[28:31], 0 offen
            buffer_load_dword v41, v3, s[36:39], 0 offen
            """)
        a("""
        s_waitcnt vmcnt(0)
        s_endpgm
        L0_pf2:
        s_sub_u32 s3, s3, 112
        s_lshl_b32 s60, s3, 13
        """)
        for q in range(4):
            srd(a, 20+4*q, 48+2*q, 49+2*q, 0, 131072)
        for q in range(4):
            for c in range(2):
                a(f"s_add_u32 s61, s60, {c*4096}")
                a(f"buffer_load_dwordx4 v[{8+8*q+4*c}:{11+8*q+4*c}], v1, s[{20+4*q}:{23+4*q}], s61 offen")
        a("""
        s_waitcnt vmcnt(0)
        s_endpgm
        """)

def gelu8(a, G, S):
    for j in range(8): a(f"v_mul_f32_e32 v{S+j}, v{G+j}, v{G+j}")
    for j in range(8): a(f"v_fma_f32 v{S+j}, v{S+j}, s47, v10")
    for j in range(8): a(f"v_mul_f32_e32 v{S+j}, v{S+j}, v{G+j}")
    for j in range(8): a(f"v_exp_f32_e32 v{S+j}, v{S+j}")
    a("s_nop 0")
    for j in range(8): a(f"v_add_f32_e32 v{S+j}, 1.0, v{S+j}")
    for j in range(8): a(f"v_rcp_f32_e32 v{S+j}, v{S+j}")
    a("s_nop 0")
    for j in range(8): a(f"v_mul_f32_e32 v{S+j}, v{S+j}, v{G+j}")

def cpath(a):
    RS = 528
    WB = 16*RS
    TRS = 208
    KH, KL, UB = 0, 7680, 15360
    CB = 32768
    TS(a, 0)
    TR(a, 7)
    if os.environ.get("CPRIO"): a(f"s_setprio {os.environ['CPRIO']}")
    a("""
    s_load_dwordx8 s[72:79], s[0:1], 8
    s_load_dwordx2 s[80:81], s[0:1], 40
    s_lshl_b32 s10, s2, 1           ; channel c0
    s_lshl_b32 s11, s10, 12
    """)
    srd_dyn(a, 20, 16, 17, XNT, 11, 8192)
    srd_dyn(a, 32, 16, 17, AT, 11, 8192)
    srd(a, 36, 8, 9, 0, 1024)
    a("s_waitcnt lgkmcnt(0)")
    srd(a, 24, 72, 73, 0, 131072)
    srd(a, 28, 74, 75, 0, 131072)
    srd(a, 48, 76, 77, 0, 131072)
    srd(a, 52, 78, 79, 0, 131072)
    srd(a, 56, 80, 81, 0, 1024)
    a(f"""
    s_lshl_b32 s12, s2, 9           ; c0*256 bytes
    v_lshl_add_u32 v2, v15, 1, s12
    s_lshl_b32 s12, s2, 2
    v_lshrrev_b32 v3, 7, v15
    v_lshl_add_u32 v3, v3, 1, s12
    buffer_load_ushort v16, v2, s[24:27], 0 offen
    buffer_load_ushort v17, v2, s[28:31], 0 offen
    buffer_load_ushort v18, v2, s[48:51], 0 offen
    buffer_load_ushort v19, v2, s[52:55], 0 offen
    buffer_load_ushort v20, v3, s[56:59], 0 offen
    s_lshr_b32 s14, s3, 1
    s_lshl_b32 s14, s14, 15
    s_and_b32 s15, s3, 1
    s_mul_i32 s15, s15, {WB}
    s_add_u32 s14, s14, s15
    s_add_u32 s14, s14, {UB}
    v_lshl_add_u32 v2, v0, 3, s14
    v_and_b32 v4, 15, v0            ; r / j
    v_lshrrev_b32 v5, 4, v0         ; q
    v_mul_u32_u24 v3, {RS}, v4
    v_lshl_add_u32 v3, v5, 4, v3
    v_add_u32 v3, s14, v3
    v_mul_u32_u24 v60, {4*TRS}, v5
    v_lshl_add_u32 v60, v4, 2, v60
    v_add_u32 v60, s14, v60
    v_mov_b32 v6, 0
    v_cmp_le_u32 vcc, 32, v15
    s_nop 1
    v_addc_co_u32 v6, vcc, 0, v6, vcc
    v_cmp_le_u32 vcc, 64, v15
    s_nop 1
    v_addc_co_u32 v6, vcc, 0, v6, vcc
    v_cmp_le_u32 vcc, 128, v15
    s_nop 1
    v_addc_co_u32 v6, vcc, 0, v6, vcc     ; s
    v_lshlrev_b32 v7, v6, 1
    v_lshrrev_b32 v7, 1, v7
    v_add_u32 v7, -1, v7                  ; half-1
    v_lshlrev_b32 v8, 3, v15              ; l0
    v_lshlrev_b32 v9, 3, v6               ; 8s
    v_lshrrev_b32 v12, v6, 16             ; 16>>s
    v_cmp_eq_u32 vcc, 0, v6
    """)
    for e in range(8):
        a(f"""
        v_add_u32 v10, {e}, v8
        v_lshrrev_b32 v11, v6, v10
        v_and_b32 v11, 1, v11
        v_add3_u32 v11, v10, v7, v11
        v_lshrrev_b32 v11, v6, v11
        v_cndmask_b32 v11, v11, v10, vcc      ; m
        v_lshlrev_b32 v11, v6, v11            ; p
        v_lshrrev_b32 v10, 8, v11
        v_mad_u32_u24 v10, v10, v12, v9       ; 8s + (p>>8)*(16>>s)
        v_and_b32 v13, 15, v11
        v_lshrrev_b32 v13, v6, v13
        v_add_u32 v10, v10, v13               ; col
        v_bfe_u32 v11, v11, 4, 4              ; row
        v_mul_u32_u24 v11, {TRS}, v11
        v_lshl_add_u32 v{52+e}, v10, 2, v11
        """)
    a("s_waitcnt vmcnt(0)")
    TS(a, 1)
    a(f"""
    v_lshlrev_b32 v16, 16, v16
    v_lshlrev_b32 v17, 16, v17
    v_lshlrev_b32 v18, 16, v18
    v_lshlrev_b32 v19, 16, v19
    v_lshlrev_b32 v20, 16, v20
    v_mul_f32 v16, {f32(LOG2E)}, v16
    v_mul_f32 v20, {f32(LOG2E)}, v20
    v_exp_f32 v16, v16
    v_exp_f32 v20, v20
    s_nop 0
    v_cvt_pk_bf16_f32 v16, v16, v20
    v_and_b32 v20, 0xffff0000, v16    ; dt
    v_lshlrev_b32 v16, 16, v16
    v_mul_f32 v16, v16, v20
    v_mul_f32 v17, v17, v20
    v_mul_f32 v18, v18, v20
    v_mul_f32 v19, v19, v20
    v_mul_f32 v16, {f32(-LOG2E)}, v16
    v_mul_f32 v17, {f32(1.0/(2*math.pi))}, v17
    v_add_f32 v18, v18, v18
    v_mul_f32 v19, -2.0, v19
    """)
    regs = {"C": 18}
    nxt = [184]
    def R(name):
        if name not in regs:
            regs[name] = nxt[0]; nxt[0] += 2
            assert nxt[0] <= 250
        return regs[name]
    def pr(r): return f"v[{r}:{r+1}]"
    anch = [("W16", 16, 1), ("W64", 64, 1), ("W128", 128, 1), ("Z1", 1, 0), ("Z4", 4, 0), ("Z8", 8, 0), ("Z256", 256, 0), ("Z512", 512, 0), ("Z1024", 1024, 0)]
    for k, (nm, p, cj) in enumerate(anch):
        d = R(nm); t = 20 + 2*k
        a(f"v_mul_f32 v{t}, {f32(float(p))}, v16")
        a(f"v_mul_f32 v{t+1}, {f32(float(p))}, v17")
        a(f"v_exp_f32 v{t}, v{t}")
        a(f"v_cos_f32 v{d}, v{t+1}")
        a(f"v_sin_f32 v{d+1}, {'-' if cj else ''}v{t+1}")
    a("s_nop 0")
    for k, (nm, p, cj) in enumerate(anch):
        d = R(nm); t = 20 + 2*k
        a(f"v_mul_f32_e32 v{d}, v{d}, v{t}")
        a(f"v_mul_f32_e32 v{d+1}, v{d+1}, v{t}")
    tcnt = [0]
    def cmul(d, x, y):
        d, x, y = R(d), R(x), R(y)
        assert d != x and d != y
        a(f"v_mul_f32_e32 v{d}, v{x+1}, v{y+1}")
        a(f"v_mul_f32_e32 v{d+1}, v{x}, v{y+1}")
        a(f"v_fma_f32 v{d}, v{x}, v{y}, -v{d}")
        a(f"v_fmac_f32_e32 v{d+1}, v{x+1}, v{y}")
    scnt = [0]
    nds = [0]
    def put(nm, row):
        v = R(nm)
        h = 44 + 2*(scnt[0] % 2); u = 48 + 2*(scnt[0] % 2); scnt[0] += 1
        a(f"""
        v_cvt_pk_bf16_f32 v{h}, v{v}, v{v+1}
        v_lshlrev_b32 v{u}, 16, v{h}
        v_and_b32 v{u+1}, 0xffff0000, v{h}
        v_sub_f32_e32 v{u}, v{v}, v{u}
        v_sub_f32_e32 v{u+1}, v{v+1}, v{u+1}
        v_cvt_pk_bf16_f32 v{h+1}, v{u}, v{u+1}
        ds_write_b64 v2, {pr(h)} offset:{row*RS}
        """)
        nds[0] += 1
    A1, A2, BO, ACC = 64, 96, 128, 160
    cmul("w2", "W16", "W16"); cmul("w3", "w2", "W16"); cmul("W192", "W128", "W64")
    regs["w1"] = regs["W16"]
    for aa in range(4):
        if aa == 0: regs["CW"] = regs["C"]
        else:
            regs["CW"] = R("CWt"); cmul("CWt", "C", f"W{64*aa}")
        put("CW", 4*aa)
        for b in range(1, 4):
            nm = f"T{b%2}"
            cmul(nm, "CW", f"w{b}"); put(nm, 4*aa+b)
    for ks in range(8):
        a(f"ds_read_b128 v[{A1+4*ks}:{A1+4*ks+3}], v3 offset:{ks*64}")
        a(f"ds_read2_b32 v[{A2+4*ks}:{A2+4*ks+1}], v3 offset0:{ks*16+1} offset1:{ks*16}")
        a(f"ds_read2_b32 v[{A2+4*ks+2}:{A2+4*ks+3}], v3 offset0:{ks*16+3} offset1:{ks*16+2}")
        nds[0] += 3
    def breads():
        for ks in range(8):
            a(f"ds_read_b128 v[{BO+4*ks}:{BO+4*ks+3}], v3 offset:{ks*64}")
            nds[0] += 1
        return nds[0]
    def mfmas(tau, mark):
        n = nds[0] - mark
        assert n <= 15
        a(f"s_waitcnt lgkmcnt({n})")
        for ks in range(8):
            for h, A_ in enumerate((A1, A2)):
                c = ACC + tau*8 + h*4
                cin = "0" if ks == 0 else f"v[{c}:{c+3}]"
                a(f"v_mfma_f32_16x16x32_bf16 v[{c}:{c+3}], v[{A_+4*ks}:{A_+4*ks+3}], v[{BO+4*ks}:{BO+4*ks+3}], {cin}")
    a(f"v_mov_b32 v{R('Z0')}, 1.0")
    a(f"v_mov_b32 v{R('Z0')+1}, 0")
    cmul("Z2", "Z1", "Z1"); cmul("Z3", "Z2", "Z1"); cmul("Z12", "Z8", "Z4")
    for aa in range(4):
        put(f"Z{4*aa}", 4*aa)
        for b in range(1, 4):
            j = 4*aa+b
            if aa > 0:
                nm = f"Z{j}" if j % 2 == 0 else f"T{(j//2)%2}"
                cmul(nm, f"Z{4*aa}", f"Z{b}")
            else: nm = f"Z{j}"
            put(nm, j)
    mark = breads()
    cmul("Z768", "Z512", "Z256")
    vals = [("Z256", 2*j) for j in range(8)] + [("Z512", 4*r) for r in range(4)] + [("Z768", 4*r) for r in range(4)]
    for j, (bs, e) in enumerate(vals):
        if e == 0: nm = bs
        else:
            nm = f"T{j%2}"; cmul(nm, bs, f"Z{e}")
        put(nm, j)
        if j == 3: mfmas(0, mark)
    mark = breads()
    cmul("Z1280", "Z1024", "Z256"); cmul("Z1536", "Z1024", "Z512"); cmul("Z1792", "Z1024", "Z768"); cmul("Z2048", "Z1024", "Z1024")
    vals = [(f"Z{1024+256*c}", 8*e) for c in range(4) for e in range(2)] + [("Z2048", 0)]
    for j, (bs, e) in enumerate(vals):
        if e == 0: nm = bs
        else:
            nm = f"T{j%2}"; cmul(nm, bs, f"Z{e}")
        put(nm, j)
        if j == 3: mfmas(1, mark)
    mark = breads()
    LR = [dict(U=184, Um=188, D=190, Ue=192), dict(U=200, Um=204, D=206, Ue=208)]
    a(f"""
    v_lshlrev_b32 v1, 4, v15
    v_add_u32 v4, -8, v1
    s_lshl_b32 s12, s10, 1
    v_mov_b32 v8, s12
    s_mov_b32 s43, 0
    s_mov_b32 s44, 4096
    v_and_b32 v5, 31, v0
    v_lshrrev_b32 v6, 5, v0
    s_lshr_b32 s13, s3, 1
    s_lshl_b32 s13, s13, 11
    s_and_b32 s14, s3, 1
    s_lshl_b32 s14, s14, 5
    s_add_u32 s13, s13, s14
    v_lshlrev_b32 v13, 6, v5
    v_lshl_add_u32 v13, v6, 4, v13
    v_add_u32 v13, s13, v13
    """)
    for c in range(2):
        R_ = LR[c]
        a(f"""
        buffer_load_dwordx4 v[{R_['U']}:{R_['U']+3}], v1, s[20:23], s{43+c} offen
        buffer_load_dwordx2 v[{R_['Um']}:{R_['Um']+1}], v4, s[20:23], s{43+c} offen
        """)
    for c in range(2):
        R_ = LR[c]
        a(f"""
        buffer_load_ushort v{R_['D']}, v8, s[36:39], 0 offen offset:{2*c}
        buffer_load_dwordx4 v[{R_['Ue']}:{R_['Ue']+3}], v13, s[20:23], s{43+c} offen
        """)
    mfmas(2, mark)
    TS(a, 2)
    if os.environ.get("CPRIOI"): a(f"s_setprio {os.environ['CPRIOI']}")
    a(f"""
    v_mov_b32 v40, 0
    v_mov_b32 v41, 0
    v_mov_b32 v42, 0
    v_mov_b32 v43, 0
    v_cmp_gt_u32 vcc, 160, v15
    s_and_saveexec_b64 s[40:41], vcc
    ds_write_b128 v1, v[40:43] offset:{KH}
    ds_write_b128 v1, v[40:43] offset:{KL}
    ds_write_b128 v1, v[40:43] offset:{CB+KH}
    ds_write_b128 v1, v[40:43] offset:{CB+KL}
    s_mov_b64 exec, s[40:41]
    s_nop 3
    """)
    for tau in range(3):
        for r in range(4):
            c = ACC + tau*8 + r
            a(f"v_add_f32 v{c}, v{c}, v{c+4}")
            a(f"ds_write_b32 v60, v{c} offset:{r*TRS+tau*64}")
    a(f"""
    v_lshrrev_b32 v7, 2, v15
    v_mul_u32_u24 v7, 80, v7
    v_and_b32 v12, 3, v15
    v_lshl_add_u32 v7, v12, 4, v7
    v_lshrrev_b32 v9, 2, v15
    v_mul_u32_u24 v9, 4160, v9
    v_lshl_add_u32 v9, v12, 4, v9
    v_sub_u32 v12, 255, v15
    v_lshlrev_b32 v12, 4, v12
    s_mov_b32 s42, 0xffff
    ; A base
    v_sub_u32 v3, 3, v5
    v_and_b32 v3, 3, v3             ; r
    v_mul_u32_u24 v1, 4160, v3
    v_add_u32 v3, v3, v5            ; b+r
    v_lshlrev_b32 v3, 1, v3
    v_sub_u32 v1, v1, v3
    v_lshl_add_u32 v1, v6, 4, v1
    s_lshl_b32 s14, s3, 6
    s_sub_u32 s15, {UB+4094-3840}, s14
    v_add_u32 v1, s15, v1
    ; B base
    v_mul_u32_u24 v2, 80, v5
    v_lshl_add_u32 v2, v6, 4, v2
    s_sub_u32 s14, 3, s3
    s_mul_i32 s14, s14, 80
    v_add_u32 v2, s14, v2
    s_waitcnt lgkmcnt(0)
    s_barrier
    """)
    for c in range(2):
        for e in range(8):
            a(f"ds_read2st64_b32 v[{64+c*16+2*e}:{65+c*16+2*e}], v{52+e} offset0:{128*c+60} offset1:{128*c+93}")
    for c in range(2):
        a(f"s_waitcnt lgkmcnt({8*(1-c)})")
        for e in range(8):
            a(f"v_add_f32 v{64+c*16+2*e}, v{64+c*16+2*e}, v{65+c*16+2*e}")
        if c == 1:
            a("s_barrier")
        for i in range(4):
            k0_, k1_ = 64+c*16+4*i, 66+c*16+4*i
            a(f"""
            v_cvt_pk_bf16_f32 v{32+8*c+i}, v{k0_}, v{k1_}
            v_lshlrev_b32 v20, 16, v{32+8*c+i}
            v_and_b32 v21, 0xffff0000, v{32+8*c+i}
            v_sub_f32 v20, v{k0_}, v20
            v_sub_f32 v21, v{k1_}, v21
            v_cvt_pk_bf16_f32 v{36+8*c+i}, v20, v21
            """)
        a(f"ds_write_b128 v7, v[{32+8*c}:{35+8*c}] offset:{c*CB+KH+32*80}")
        a(f"ds_write_b128 v7, v[{36+8*c}:{39+8*c}] offset:{c*CB+KL+32*80}")
    a(f"""
    v_mov_b32 v16, 0
    v_mov_b32 v17, 0
    v_mov_b32 v18, 0
    v_mov_b32 v19, 0
    v_cmp_gt_u32 vcc, 16, v15
    s_and_saveexec_b64 s[40:41], vcc
    ds_write_b128 v9, v[16:19] offset:{UB+4096}
    ds_write_b128 v9, v[16:19] offset:{CB+UB+4096}
    s_mov_b64 exec, s[40:41]
    v_cmp_eq_u32 vcc, 0, v15
    """)
    for c in range(2):
        R_ = LR[c]
        a(f"s_waitcnt vmcnt({4+2*(1-c)})")
        if c == 1:
            a(f"v_cndmask_b32_e64 v{R_['Um']}, v{R_['Um']}, 0, vcc")
            a(f"v_cndmask_b32_e64 v{R_['Um']+1}, v{R_['Um']+1}, 0, vcc")
        S = {-2: R_['Um'], -1: R_['Um']+1, 0: R_['U'], 1: R_['U']+1, 2: R_['U']+2, 3: R_['U']+3}
        for r in range(4):
            d = 96 + 16*c + 4*r
            for j in range(4):
                if r % 2 == 0:
                    p = 3 - r//2 - j
                    a(f"v_alignbit_b32 v{d+j}, v{S[p]}, v{S[p]}, 16")
                else:
                    p = (7-r)//2 - j
                    a(f"v_bfi_b32 v{d+j}, s42, v{S[p]}, v{S[p-1]}")
            a(f"ds_write_b128 v12, v[{d}:{d+3}] offset:{c*CB+UB+r*4160}")
    a("s_waitcnt lgkmcnt(0)")
    a("s_barrier")
    TS(a, 3)
    if os.environ.get("CPRIO2"): a(f"s_setprio {os.environ['CPRIO2']}")
    steps = [(c, i, ks) for c in range(2) for i in range(8) for ks in range(2)]
    def loads(n):
        c, i, ks = steps[n]
        af = 16 + (n % 2)*24; bf_ = af + 8
        for z in range(2):
            off = c*CB + 64*(60-4*(i+8*z)) + 32*ks
            a(f"ds_read_b64 v[{af+4*z}:{af+4*z+1}], v1 offset:{off}")
            a(f"ds_read_b64 v[{af+4*z+2}:{af+4*z+3}], v1 offset:{off+8}")
            for blk in ([0] if z == 0 else [1]):
                for hl in range(2):
                    img = KH if hl == 0 else KL
                    o = c*CB + img + (32+32*blk-4*i)*80 + 32*ks - 240
                    r_ = bf_ + (blk*2+hl)*4
                    a(f"ds_read_b128 v[{r_}:{r_+3}], v2 offset:{o}")
        return 8
    loads(0)
    NST = len(steps)
    for n in range(NST):
        c, i, ks = steps[n]
        if n+1 < NST:
            cn = loads(n+1)
            a(f"s_waitcnt lgkmcnt({cn})")
        else:
            a("s_waitcnt lgkmcnt(0)")
        af = 16 + (n % 2)*24; bf_ = af + 8
        first = (i == 0 and ks == 0)
        a0, a1 = 64 + c*32, 80 + c*32
        for j, (ac, z, blk, hl) in enumerate([(a0,0,0,0), (a1,1,0,0), (a0,0,0,1), (a1,0,1,0), (a1,1,0,1), (a1,0,1,1)]):
            r_ = bf_ + (blk*2+hl)*4
            cin = "0" if (first and j < 2) else f"v[{ac}:{ac+15}]"
            a(f"v_mfma_f32_32x32x16_bf16 v[{ac}:{ac+15}], v[{af+4*z}:{af+4*z+3}], v[{r_}:{r_+3}], {cin}")
    TS(a, 4)
    if os.environ.get("CPRIO3"): a(f"s_setprio {os.environ['CPRIO3']}")
    srd(a, 24, 16, 17, FLG, 98304)
    a("""
    s_nop 7
    s_barrier
    s_lshl_b32 s14, s3, 13
    v_lshlrev_b32 v1, 4, v0
    v_add_u32 v2, s14, v1
    """)
    for c in range(2):
        for qq in range(8):
            a(f"ds_write_b128 v2, v[{64+32*c+4*qq}:{67+32*c+4*qq}] offset:{c*CB+qq*1024}")
    a("""
    s_lshl_b32 s14, s3, 11
    v_lshlrev_b32 v1, 4, v5
    v_lshl_add_u32 v1, v6, 10, v1
    v_add_u32 v1, s14, v1
    s_lshr_b32 s45, s2, 5
    s_lshr_b32 s14, s3, 1
    s_lshl_b32 s14, s14, 7
    s_add_u32 s45, s45, s14
    s_add_u32 s45, s45, 128
    s_lshl_b32 s45, s45, 8
    s_and_b32 s14, s2, 31
    s_lshl_b32 s14, s14, 1
    s_and_b32 s15, s3, 1
    s_add_u32 s14, s14, s15
    s_lshl_b32 s14, s14, 2
    s_add_u32 s45, s45, s14
    s_waitcnt lgkmcnt(0)
    s_barrier
    """)
    for c in range(2):
        for ww in range(4):
            for e in range(2):
                r_ = 64 + c*32 + (ww*2+e)*4
                a(f"ds_read_b128 v[{r_}:{r_+3}], v1 offset:{c*CB+ww*8192+e*512}")
    a("s_waitcnt lgkmcnt(0) vmcnt(0)")
    for c in range(2):
        R_ = LR[c]
        a(f"v_lshlrev_b32 v{R_['D']}, 16, v{R_['D']}")
        o = 56 + 4*c
        for e in range(2):
            for j in range(4):
                r_ = 64 + c*32 + e*4 + j
                a(f"v_add_f32 v{r_}, v{r_}, v{r_+8}")
                a(f"v_add_f32 v{r_+16}, v{r_+16}, v{r_+24}")
                a(f"v_add_f32 v{r_}, v{r_}, v{r_+16}")
            y = 64 + c*32 + e*4
            for p in range(2):
                uu = R_['Ue'] + 2*e + p
                a(f"""
                v_cvt_pk_bf16_f32 v48, v{y+2*p}, v{y+2*p+1}
                v_lshlrev_b32 v49, 16, v48
                v_and_b32 v50, 0xffff0000, v48
                v_lshlrev_b32 v51, 16, v{uu}
                v_and_b32 v52, 0xffff0000, v{uu}
                v_mul_f32 v51, v51, v{R_['D']}
                v_mul_f32 v52, v52, v{R_['D']}
                v_cvt_pk_bf16_f32 v48, v51, v52
                v_lshlrev_b32 v51, 16, v48
                v_and_b32 v52, 0xffff0000, v48
                v_add_f32 v49, v49, v51
                v_add_f32 v50, v50, v52
                v_cvt_pk_bf16_f32 v{o+2*e+p}, v49, v50
                """)
        a(f"buffer_store_dwordx4 v[{o}:{o+3}], v13, s[32:35], s{43+c} offen sc1")
    TS(a, 5)
    a(f"""
    {"s_waitcnt vmcnt(0)" if TSON else ""}
    """)
    TS(a, 6)
    TR(a, 9)
    TSDUMP(a, 10, "c")
    a("s_endpgm")

E = os.environ.get
NBR, NBL = 12, 8
XS = 11
def breg(j): return 160 if j == 11 else 168 + ((j + 10) % 11)*8
def kk(j): return (j//2)*4 + (j % 2) if j < 14 else ((j-14)//2)*4 + 2 + (j % 2)
def g2_early(a):
    srd(a, 84, 16, 17, WF, WSZ)
    a(f"""
    s_and_b32 s44, s2, 7
    s_lshl_b32 s44, s44, 2
    s_bfe_u32 s45, s2, 0x20003
    s_add_u32 s44, s44, s45         ; tt
    s_lshr_b32 s45, s2, 5           ; dt
    s_mul_i32 s14, s3, {WS_*1024}
    s_mul_i32 s18, s44, {2*RSH}
    s_add_u32 s18, s18, s14
    s_mul_i32 s19, s45, {2*RSH}
    s_add_u32 s19, s19, s14
    s_lshl_b32 s43, s44, 2
    s_add_u32 s43, s43, s3
    s_lshl_b32 s43, s43, 8
    s_lshl_b32 s61, s3, 14
    s_add_u32 s8, s61, 8192
    s_cmp_eq_u32 s3, 0
    s_cselect_b32 s61, 73728, s61
    v_lshlrev_b32 v4, 4, v0         ; lane*16
    v_add_u32 v5, {RSH}, v4
    """)
def g2_late(a):
    srd(a, 32, 16, 17, FLG, 98304)
    srd(a, 36, 16, 17, AT, SZ2M)
    srd(a, 48, 56, 57, 0, SZ2M)
    srd(a, 52, 58, 59, 0, SZ2M)
def g2_b1(a, st, cb):
    r = breg(st) + cb*4
    if cb == 0: a(f"s_add_u32 s14, s19, {kk(st)*1024}")
    a(f"buffer_load_dwordx4 v[{r}:{r+3}], v{4+cb}, s[84:87], s14 offen")
def g2_bpre_lds(a, q=None):
    for j in range(NBL):
        st = NBR + j
        a(f"s_add_u32 s14, s19, {kk(st)*1024}")
        for cb in range(2):
            c = j*2+cb
            a(f"s_add_u32 m0, s{61 if c < 8 else 8}, {(c%8)*1024}")
            a("s_nop 0")
            a(f"buffer_load_dwordx4 v{4+cb}, s[84:87], s14 offen lds")
            if q is not None: q.append(("bl", st))

def poll(a, tag, soff, target, off=0, slp=2):
    a(f"""
    s_mov_b32 s9, 0
    Lp_{tag}:
    buffer_load_dword v7, v6, s[32:35], s{soff} offen offset:{off} sc1
    s_waitcnt vmcnt(0)
    v_readfirstlane_b32 s14, v7
    s_add_u32 s9, s9, 1
    s_cmp_ge_u32 s14, {target}
    s_cbranch_scc1 Lpd_{tag}
    s_cmp_ge_u32 s9, {POLL_LIMIT}
    s_cbranch_scc1 Lpd_{tag}
    s_sleep {slp}
    s_branch Lp_{tag}
    Lpd_{tag}:
    """)

def gemm2(a):
    a("L1_g2:")
    if E("PRIO2"): a(f"s_setprio {E('PRIO2')}")
    a("v_mov_b32 v6, 0")
    a("s_barrier")
    poll(a, "h", 43, 7)
    TS(a, 9)
    NS = 28
    q = []
    def wait_for(tags):
        idx = max(i for i, t in enumerate(q) if t in tags)
        n = len(q) - 1 - idx
        assert n <= 63
        a(f"s_waitcnt vmcnt({n})")
    free = [96 + 8*i for i in range(8)]
    pend = []
    for st in range(NS):
        pend.append(("A", st))
        if st >= NBR + NBL: pend.append(("B", st))
    loc = {}
    for st in range(NBR): loc[("B", st)] = breg(st)
    fb = [False]
    def issue():
        while pend and free:
            k, st = pend[0]
            if k == "A" and st >= 14 and not fb[0]:
                fb[0] = True
                wait_for([("F", 1)])
                a(f"""
                v_readfirstlane_b32 s14, v7
                s_cmp_ge_u32 s14, 7
                s_cbranch_scc1 Lpd_hb
                """)
                poll(a, "hb", 43, 7, off=128)
            pend.pop(0)
            r = free.pop(0)
            loc[(k, st)] = r
            a(f"s_add_u32 s41, s{18 if k == 'A' else 19}, {kk(st)*1024}")
            for j in range(2):
                a(f"buffer_load_dwordx4 v[{r+4*j}:{r+4*j+3}], v{4+j}, s[{28 if k == 'A' else 84}:{31 if k == 'A' else 87}], s41 offen")
                q.append((k, st))
    issue()
    FBI = int(E("FBI", "-1"))
    def fbload():
        a("buffer_load_dword v7, v6, s[32:35], s43 offen offset:128 sc1")
        q.append(("F", 1))
    if FBI < 0: fbload()
    a(f"""
    v_and_b32 v8, 15, v0
    v_lshrrev_b32 v9, 4, v0         ; dg
    s_lshl_b32 s62, s44, 6
    s_lshl_b32 s63, s45, 6
    s_lshl_b32 s14, s3, 4
    v_add_u32 v10, s14, v8          ; t local
    v_add_u32 v11, s62, v10
    v_lshlrev_b32 v13, 10, v11
    v_lshl_add_u32 v13, v9, 4, v13
    s_lshl_b32 s15, s63, 1
    v_add_u32 v13, s15, v13
    v_lshrrev_b32 v12, 3, v0
    v_add_u32 v12, s14, v12
    v_add_u32 v12, s63, v12
    v_lshlrev_b32 v12, 12, v12
    v_and_b32 v11, 7, v0
    v_lshl_add_u32 v12, v11, 4, v12
    s_lshl_b32 s15, s62, 1
    v_add_u32 v12, s15, v12
    s_lshl_b32 s20, s3, 11
    s_add_u32 s20, s20, 65536
    s_mov_b32 s21, 32768
    s_lshl_b32 s14, s44, 3
    s_add_u32 s45, s45, s14
    s_add_u32 s45, s45, 128
    s_lshl_b32 s45, s45, 8
    v_and_b32 v11, 31, v0
    v_lshrrev_b32 v14, 5, v0
    v_xor_b32 v14, v14, v8
    v_lshlrev_b32 v14, 4, v14
    v_lshl_add_u32 v14, v11, 8, v14
    s_lshl_b32 s14, s3, 14
    v_add_u32 v14, s14, v14
    v_lshlrev_b32 v15, 1, v9
    v_xor_b32 v15, v15, v8
    v_lshlrev_b32 v15, 4, v15
    v_lshl_add_u32 v15, v10, 8, v15
    v_lshrrev_b32 v1, 2, v8
    v_lshl_add_u32 v1, v9, 3, v1
    v_lshlrev_b32 v1, 7, v1
    v_and_b32 v11, 3, v0
    v_lshl_add_u32 v1, v11, 3, v1
    s_lshl_b32 s14, s3, 5
    s_add_u32 s14, s14, 65536
    v_add_u32 v1, s14, v1
    v_add_u32 v2, s61, v4
    v_add_u32 v3, s8, v4
    """)
    ACC = 16
    X_R = 248
    def acc(cb, rb): return ACC + (cb*2+rb)*16
    def ldsb(st):
        j = st - NBR
        r = 80 + 8*(st % 2)
        loc[("B", st)] = r
        vb = 2 if j < 4 else 3
        a(f"ds_read_b128 v[{r}:{r+3}], v{vb} offset:{((2*j)%8)*1024}")
        a(f"ds_read_b128 v[{r+4}:{r+7}], v{vb} offset:{((2*j+1)%8)*1024}")
    def atload(r):
        for j in range(2):
            a(f"buffer_load_dwordx4 v[{r+4*j}:{r+4*j+3}], v12, s[36:39], {'0' if j == 0 else 's21'} offen sc1")
            q.append(("T", 0))
    def atchk(r):
        a(f"""
        v_max3_u32 v11, v{r}, v{r+1}, v{r+2}
        v_max3_u32 v7, v{r+3}, v{r+4}, v{r+5}
        v_max3_u32 v11, v11, v{r+6}, v{r+7}
        v_max_u32 v11, v11, v7
        v_cmp_eq_u32 vcc, {'-1' if not E("NOC") else '0x12345'}, v11
        s_nop 1
        s_cmp_eq_u64 vcc, 0
        """)
    FPOLL, FCHK = int(E("FPOLL", "18")), int(E("FCHK", "25"))
    TR_ = [None]
    for st in range(NS):
        lds_next = NBR <= st+1 < NBR+NBL
        if lds_next: ldsb(st+1)
        tags = [("A", st)] + ([("B", st)] if st >= NBR+NBL else [])
        wait_for(tags)
        if NBR <= st < NBR+NBL: a(f"s_waitcnt lgkmcnt({2 if lds_next else 0})")
        for rb in range(2):
            for cb in range(2):
                c = acc(cb, rb); x = loc[("A", st)] + 4*rb; y = loc[("B", st)] + 4*cb
                cin = "0" if st == 0 else f"v[{c}:{c+15}]"
                a(f"v_mfma_f32_32x32x16_bf16 v[{c}:{c+15}], v[{y}:{y+3}], v[{x}:{x+3}], {cin}")
        free.append(loc[("A", st)])
        if (st < NBR and loc[("B", st)] < X_R) or st >= NBR+NBL: free.append(loc[("B", st)])
        if st == FBI: fbload()
        issue()
        if st == FPOLL:
            assert fb[0] and not pend
            TR_[0] = free.pop(0)
            for j in range(2):
                a(f"buffer_load_dwordx4 v[{X_R+4*j}:{X_R+4*j+3}], v13, s[48:51], 0 offen offset:{64*j}")
                q.append(("X", 0))
            atload(TR_[0])
        if st == FCHK:
            wait_for([("T", 0)])
            atchk(TR_[0])
            a("s_cselect_b32 s22, 0, 1")
    assert not pend
    TS(a, 10)
    a("s_nop 15")
    for cb in range(2):
        for rb in range(2):
            for i in range(4):
                c = acc(cb, rb) + 4*i
                dq = cb*8 + 2*i
                if dq == 0: vv = 14
                else:
                    vv = 11
                    a(f"v_xor_b32 v11, {dq*16}, v14")
                a(f"ds_write_b128 v{vv}, v[{c}:{c+3}] offset:{rb*8192}")
    a(f"""
    s_cmp_eq_u32 s22, 0
    s_cbranch_scc1 La_ok
    s_mov_b32 s9, 0
    Lp_a:
    """)
    atload(TR_[0])
    a("s_waitcnt vmcnt(0)")
    atchk(TR_[0])
    a(f"""
    s_cbranch_scc1 La_ok
    s_add_u32 s9, s9, 1
    s_cmp_ge_u32 s9, {POLL_LIMIT}
    s_cbranch_scc1 La_ok
    s_sleep {E("ASLP", "1")}
    s_branch Lp_a
    """)
    a("La_ok:")
    a("v_add_u32 v11, s20, v4")
    for j in range(2):
        a(f"ds_write_b128 v11, v[{TR_[0]+4*j}:{TR_[0]+4*j+3}] offset:{j*1024}")
    a("""
    v_xor_b32 v11, 16, v15
    v_xor_b32 v10, 128, v15
    v_xor_b32 v9, 144, v15
    s_waitcnt vmcnt(0) lgkmcnt(0)
    s_barrier
    """)
    AT_R = 80
    va = [15, 11, 10, 9]
    for j in range(2):
        for ww in range(4):
            for hh in range(2):
                r = 16 + j*32 + ww*8 + hh*4
                a(f"ds_read_b128 v[{r}:{r+3}], v{va[j*2+hh]} offset:{ww*16384}")
        for hh in range(2):
            a(f"ds_read_b64_tr_b16 v[{AT_R+4*j+2*hh}:{AT_R+4*j+2*hh+1}], v1 offset:{(32*j+4*hh)*128}")
    for j in range(2):
        a(f"s_waitcnt lgkmcnt({10*(1-j)})")
        b = 16 + j*32
        for e in range(8):
            a(f"v_add_f32 v{b+e}, v{b+e}, v{b+8+e}")
            a(f"v_add_f32 v{b+16+e}, v{b+16+e}, v{b+24+e}")
        for p in range(4):
            at = AT_R + 4*j + p; x0 = X_R + 4*j + p
            a(f"""
            v_lshlrev_b32 v{b+8+2*p}, 16, v{at}
            v_and_b32 v{b+9+2*p}, 0xffff0000, v{at}
            v_lshlrev_b32 v{b+24+2*p}, 16, v{x0}
            v_and_b32 v{b+25+2*p}, 0xffff0000, v{x0}
            """)
        for e in range(8):
            a(f"v_add_f32 v{b+e}, v{b+e}, v{b+16+e}")
            a(f"v_add_f32 v{b+8+e}, v{b+8+e}, v{b+24+e}")
        for e in range(8):
            a(f"v_cvt_pk_bf16_f32 v{b+e}, 0, v{b+e}")
            a(f"v_cvt_pk_bf16_f32 v{b+8+e}, 0, v{b+8+e}")
        for e in range(8):
            a(f"v_add_f32 v{b+e}, v{b+e}, v{b+8+e}")
        for p in range(4):
            a(f"v_cvt_pk_bf16_f32 v{b+16+p}, v{b+2*p}, v{b+2*p+1}")
        a(f"buffer_store_dwordx4 v[{b+16}:{b+19}], v13, s[52:55], 0 offen offset:{64*j}")
    if TSON: a("s_waitcnt vmcnt(0)")
    TS(a, 11)
    TSDUMP(a, 12, "g")
    a("s_endpgm")

SLOW = []
MAP0 = """
    s_lshr_b32 s12, s2, 3
    s_mul_i32 s13, s12, 37
    s_lshr_b32 s13, s13, 8          ; q/7
    s_mul_i32 s14, s13, 7
    s_sub_u32 s14, s12, s14         ; q%7
    s_and_b32 s15, s2, 3
    s_mov_b32 s97, s15              ; ct/7
    s_mul_i32 s15, s15, 7
    s_add_u32 s10, s15, s14         ; ct
    s_bfe_u32 s15, s2, 0x10002
    s_lshl_b32 s15, s15, 2
    s_add_u32 s11, s15, s13         ; rt
"""
def gemm1(a):
    TS(a, 0)
    if E("PRIO"): a(f"s_setprio {E('PRIO')}")
    srd(a, 20, 16, 17, XN, 64*XRS)
    a(f"""
    s_cmp_ge_u32 s3, 2
    s_cselect_b32 s24, s6, s4
    s_cselect_b32 s25, s7, s5
    s_and_b32 s25, s25, 0xffff
    s_mov_b32 s26, 0x1c0000
    s_mov_b32 s27, 0x20000
    {MAP0}
    s_lshl_b32 s12, s11, 3
    s_lshl_b32 s13, s3, 1
    s_add_u32 s12, s12, s13
    s_mul_i32 s12, s12, {XRS}
    v_lshlrev_b32 v1, 4, v0
    v_add_u32 v1, s12, v1
    v_lshrrev_b32 v5, 3, v0         ; row8
    v_and_b32 v6, 7, v0             ; c'
    v_and_b32 v7, 3, v5
    v_lshlrev_b32 v7, 1, v7
    v_xor_b32 v6, v6, v7
    v_mul_u32_u24 v2, 3584, v5
    s_lshl_b32 s13, s10, 7
    v_add_u32 v2, s13, v2
    v_lshl_add_u32 v2, v6, 4, v2
    s_and_b32 s14, s3, 1
    s_mul_i32 s40, s14, {16*3584}
    s_lshr_b32 s15, s3, 1
    s_lshl_b32 s42, s15, 12
    s_lshl_b32 s14, s14, 11
    s_add_u32 s42, s42, s14
    s_add_u32 s42, s42, 8192
    """)
    sx = [32,33,34,35,36,37,38,39,48,49,50,51,52,53,54,55]
    for rb in range(2):
        for h in range(8):
            a(f"s_mov_b32 s{sx[rb*8+h]}, {rb*XRS+h*4096}")
    ACC = 16
    def acc(mat, cb, rb): return ACC + ((cb*2+rb)*2+mat)*16
    NS, NSL = 16, 7
    KT = int(E("KT", "24"))
    assert KT % 2 == 0 and 22 <= KT <= 30
    FR = []
    for ks in range(KT): FR += [(ks,0,0),(ks,0,1),(ks,1,0),(ks,1,1)]
    for ks in range(KT, 32): FR += [(ks,0,0),(ks,0,1)]
    NB1 = len(FR)
    for ks in range(KT, 32): FR += [(ks,1,0),(ks,1,1)]
    NF = len(FR)
    last_use = {}
    first_use = {}
    for n, (ks, cb, mat) in enumerate(FR):
        last_use[ks] = n
        first_use.setdefault(ks, n)
    q = []
    def wait_for(tag):
        idx = max(i for i, t in enumerate(q) if t == tag)
        n = len(q) - 1 - idx
        assert n <= 63
        a(f"s_waitcnt vmcnt({n})")
    lq = []
    def wait_l(tag):
        idx = max(i for i, t in enumerate(lq) if t == tag)
        n = len(lq) - 1 - idx
        a(f"s_waitcnt lgkmcnt({min(n, 15)})")
    def xr(ks, rb): return 168 + (ks % XS)*8 + rb*4
    WFr, NR = 144, 6
    barr = -1
    def do_barrier(s):
        nonlocal barr
        wait_for(("w", s))
        a("s_barrier")
        barr = s
    def trread(n):
        ks, cb, mat = FR[n]
        if ks//2 > barr: do_barrier(ks//2)
        b = WFr + (n % NR)*4
        base = 8192 + ((ks//2) % NSL)*8192 + mat*4096 + (ks & 1)*2048
        a(f"ds_read_b64_tr_b16 v[{b}:{b+1}], v{8+cb} offset:{base}")
        a(f"ds_read_b64_tr_b16 v[{b+2}:{b+3}], v{8+cb} offset:{base+512}")
        lq.append(("f", n)); lq.append(("f", n))
    pend = []
    for s in range(NS):
        pend += [("w", s, 0), ("w", s, 1)] + [("x", 2*s+j, rb) for j in range(2) for rb in range(2)]
        if s == 3: pend += [("t", s, i) for i in range(4)]
    for j in range(11): pend += [("b", j, 0), ("b", j, 1)]
    def issue1(t):
        k, s, i = t
        if k == "w":
            a(f"s_add_u32 s41, s40, {(32*s+8*i)*3584}")
            a(f"s_add_u32 m0, s42, {(s%NSL)*8192+i*1024}")
            a("s_nop 0")
            a(f"buffer_load_dwordx4 v2, s[24:27], s41 offen lds")
        elif k == "x":
            r = xr(s, i)
            a(f"buffer_load_dwordx4 v[{r}:{r+3}], v1, s[20:23], s{sx[i*8+(s>>2)]} offen offset:{(s&3)*1024}")
        elif k == "t":
            a(f"s_mov_b32 m0, s63")
            a("s_nop 0")
            a(f"buffer_load_dwordx4 v4, s[80:83], s62 offen offset:{i*1024} lds")
        else:
            g2_b1(a, s, i)
        q.append((k, s))
    PRO = int(E("PRO", "3"))
    def allowed(t, n):
        k, s, i = t
        ahead = (first_use[2*s if k == "w" else s] - n) if k in "wx" else 0
        if k == "w": return (s < NSL or barr >= s-(NSL-2)) and ahead <= 8*PRO+8
        if k == "x": return (s < XS or last_use[s-XS] <= n) and ahead <= 8*PRO+8
        if k == "t": return True
        return last_use[21+s] <= n
    for _ in range(6*min(PRO, 3)): issue1(pend.pop(0))
    a("""
    v_bfe_u32 v7, v0, 2, 2          ; r
    v_lshrrev_b32 v6, 5, v0
    v_lshl_add_u32 v6, v6, 3, v7    ; row_l
    v_bfe_u32 v10, v0, 4, 1
    v_bfe_u32 v11, v0, 1, 1
    v_lshl_add_u32 v10, v10, 1, v11 ; gc0
    v_lshlrev_b32 v7, 1, v7
    v_xor_b32 v10, v10, v7          ; pc
    v_lshlrev_b32 v8, 7, v6
    v_lshl_add_u32 v8, v10, 4, v8
    v_and_b32 v11, 1, v0
    v_lshl_add_u32 v8, v11, 3, v8
    v_xor_b32 v9, 64, v8
    """)
    g2_early(a)
    srd(a, 80, 16, 17, TB, 16384)
    a(f"""
    s_lshl_b32 s62, s3, 12
    s_and_b32 s63, s3, 1
    s_lshl_b32 s63, s63, 12
    s_lshr_b32 s14, s3, 1
    s_lshl_b32 s14, s14, 16
    s_add_u32 s63, s63, s14
    s_lshl_b32 s12, s11, 3
    s_lshl_b32 s13, s3, 1
    s_add_u32 s12, s12, s13
    s_mul_i32 s12, s12, {RSH}
    s_lshl_b32 s13, s10, 2
    s_mul_i32 s14, s97, {SKEW}
    s_add_u32 s13, s13, s14
    s_lshl_b32 s13, s13, 10
    s_add_u32 s12, s12, s13
    s_add_u32 s13, s12, {RSH}
    s_mov_b32 s46, 0x{TLO*0x10001:x}
    s_mov_b32 s47, {f32(KB)}
    s_mov_b32 s98, 0x8fff8fff
    v_mov_b32 v10, {f32(KA)}
    s_lshl_b32 s60, s11, 2
    s_add_u32 s60, s60, s3
    s_lshl_b32 s60, s60, 2
    s_add_u32 s60, s60, s97
    s_lshl_b32 s60, s60, 8
    """)
    TS(a, 1)
    PD = int(E("PD", "4"))
    assert PD < NR
    PT = [[12, 13, 14, 15], [1, 2, 3, 6]]
    units = [(cb, rb, sp) for cb in range(2) for rb in range(2) for sp in range(2)]
    def EA(k):
        cb, rb, sp = units[k]
        g = acc(0, cb, rb) + 8*sp; P = PT[k % 2]; S = 90 + 2*(k % 2)
        o = []
        for i in range(4): o.append(f"v_cvt_pk_bf16_f32 v{P[i]}, v{g+2*i}, v{g+2*i+1}")
        for i in range(4): o.append(f"v_subrev_u32 v{P[i]}, s46, v{P[i]}")
        o.append(f"v_or3_b32 v11, v{P[0]}, v{P[1]}, v{P[2]}")
        o.append(f"v_or_b32 v11, v11, v{P[3]}")
        o.append(f"v_and_b32 v11, 0x70007000, v11")
        o.append(f"v_cmp_ne_u32_e64 s[{S}:{S+1}], 0, v11")
        for i in range(4):
            o.append(f"v_and_b32 v7, s98, v{P[i]}")
            for h in range(2):
                o.append(f"v_lshlrev_b32_sdwa v{g+2*i+h}, 1, v7 dst_sel:DWORD dst_unused:UNUSED_PAD src0_sel:DWORD src1_sel:WORD_{h}")
        for j in range(8):
            def f(j=j):
                a(f"ds_read_u16_d16_hi v{g+j}, v{g+j}")
                lq.append(("g", k))
            o.append(f)
        SLOW.append((k, g, P))
        return o
    def EB(k):
        cb, rb, sp = units[k]
        g = acc(0, cb, rb) + 8*sp; u = acc(1, cb, rb) + 8*sp; S = 90 + 2*(k % 2)
        o = []
        for j in range(8): o.append(f"v_cvt_pk_bf16_f32 v{u+j}, 0, v{u+j}")
        def f():
            wait_l(("g", k))
            a(f"s_cmp_lg_u64 s[{S}:{S+1}], 0")
            a(f"s_cbranch_scc1 Lslow_{k}")
            a(f"Lback_{k}:")
        o.append(f)
        for j in range(8): o.append(f"v_mul_f32_e32 v{u+j}, v{g+j}, v{u+j}")
        for i in range(4): o.append(f"v_cvt_pk_bf16_f32 v{g+i}, v{u+2*i}, v{u+2*i+1}")
        def s():
            a(f"buffer_store_dwordx4 v[{g}:{g+3}], v4, s[28:31], s{12+rb} offen offset:{(cb*2+sp)*1024} sc1")
            q.append(("h", cb))
        o.append(s)
        return o
    def stream(k0):
        return EA(k0) + EA(k0+1) + EB(k0) + EA(k0+2) + EB(k0+1) + EA(k0+3) + EB(k0+2) + EB(k0+3)
    def emit(o):
        if callable(o): o()
        else: a(o)
    ES = stream(0)
    per = -(-len(ES)//(2*(NF-NB1-int(E("EFL", "2")))))
    for n in range(PD): trread(n)
    for n in range(NF):
        ks, cb, mat = FR[n]
        if n == 0: TS(a, 2)
        if n == 64: TS(a, 3)
        if n == NB1:
            TS(a, 4)
            assert all(t[0] == "b" for t in pend)
        if n+PD < NF: trread(n+PD)
        if n == first_use[ks]: wait_for(("x", ks))
        wait_l(("f", n))
        b = WFr + (n % NR)*4
        for rb in range(2):
            c = acc(mat, cb, rb)
            cin = "0" if ks == 0 else f"v[{c}:{c+15}]"
            a(f"v_mfma_f32_32x32x16_bf16 v[{c}:{c+15}], v[{b}:{b+3}], v[{xr(ks,rb)}:{xr(ks,rb)+3}], {cin}")
            if n > NB1:
                for _ in range(per):
                    if ES: emit(ES.pop(0))
        for _ in range(2 if n >= 4*KT - 16 else 1):
            if pend and allowed(pend[0], n): issue1(pend.pop(0))
    while ES: emit(ES.pop(0))
    while pend: issue1(pend.pop(0))
    TS(a, 6)
    g2_late(a)
    a("s_barrier")
    BL = []
    def mkb(cb):
        def f():
            a(f"s_add_u32 s14, s19, {kk(11)*1024}")
            r = breg(11) + cb*4
            a(f"buffer_load_dwordx4 v[{r}:{r+3}], v{4+cb}, s[84:87], s14 offen")
            q.append(("b", 11))
        return f
    def mkl(j, cb):
        def f():
            st = NBR + j; c = j*2+cb
            a(f"s_add_u32 s14, s19, {kk(st)*1024}")
            a(f"s_add_u32 m0, s{61 if c < 8 else 8}, {(c%8)*1024}")
            a("s_nop 0")
            a(f"buffer_load_dwordx4 v{4+cb}, s[84:87], s14 offen lds")
            q.append(("bl", st))
        return f
    BL = [mkb(0), mkb(1)] + [mkl(j, cb) for j in range(NBL) for cb in range(2)]
    def flag(cb):
        wait_for(("h", cb))
        a(f"""
        v_mov_b32 v8, 0
        v_mov_b32 v9, 1
        s_mov_b64 exec, 1
        buffer_atomic_add v9, v8, s[32:35], s60 offen offset:{128*cb}
        s_mov_b64 exec, -1
        """)
        q.append(("fl", cb))
    ES = stream(4)
    FAP = int(len(ES)*float(E("FAP", "1.0")))
    BSP = float(E("BSP", "0"))
    nb = len(BL); done = 0
    for i, o in enumerate(ES):
        if i == FAP:
            flag(0); TS(a, 5)
        want = nb if BSP <= 0 else min(nb, int(nb*(i+1)/(BSP*len(ES)))+1)
        if BSP <= 1.0:
            while done < want:
                BL[done](); done += 1
        emit(o)
    TS(a, 7)
    if FAP >= len(ES):
        flag(0); TS(a, 5)
    while done < nb:
        BL[done](); done += 1
    flag(1)
    TS(a, 8)

def slowpaths(a):
    for (k, g, P) in SLOW:
        a(f"Lslow_{k}:")
        a("s_waitcnt lgkmcnt(0)")
        for i in range(4):
            a(f"""
            v_add_u32 v{P[i]}, s46, v{P[i]}
            v_lshlrev_b32 v7, 16, v{P[i]}
            v_and_b32 v{P[i]}, 0xffff0000, v{P[i]}
            """)
            for (G, S) in ((7, g+2*i), (P[i], g+2*i+1)):
                a(f"""
                v_mul_f32_e32 v{S}, v{G}, v{G}
                v_fma_f32 v{S}, v{S}, s47, v10
                v_mul_f32_e32 v{S}, v{S}, v{G}
                v_exp_f32_e32 v{S}, v{S}
                s_nop 0
                v_add_f32_e32 v{S}, 1.0, v{S}
                v_rcp_f32_e32 v{S}, v{S}
                s_nop 0
                v_mul_f32_e32 v{S}, v{S}, v{G}
                v_cvt_pk_bf16_f32 v{S}, 0, v{S}
                """)
        a(f"s_branch Lback_{k}")

def k1(a):
    header(a, "main_kernel")
    a(f"""
    s_cmp_ge_u32 s2, 512
    s_cbranch_scc1 L1_exit
    s_load_dwordx4 s[4:7], s[0:1], 64
    s_load_dwordx2 s[8:9], s[0:1], 48
    s_load_dwordx2 s[16:17], s[0:1], 104
    s_load_dwordx2 s[56:57], s[0:1], 0
    s_load_dwordx2 s[58:59], s[0:1], 88
    v_lshrrev_b32 v5, 6, v0
    v_mov_b32 v15, v0
    v_readfirstlane_b32 s3, v5      ; wave
    v_and_b32 v0, 63, v0
    s_mov_b32 s96, s2
    {"s_memrealtime s[98:99]" if TSALL else ""}
    s_waitcnt lgkmcnt(0)
    {"s_mov_b32 s99, s98" if TSALL else ""}
    s_cmp_lt_u32 s2, 256
    s_cbranch_scc1 {"L1_exit" if E("NOC") else "L1_conv"}
    {"s_endpgm" if E("NOG") else ""}
    s_sub_u32 s2, s2, 256
    """)
    srd(a, 28, 16, 17, HB, HSZ)
    a("""
    s_cmp_ge_u32 s2, 224
    s_cbranch_scc1 L1_h
    """)
    gemm1(a)
    gemm2(a)
    slowpaths(a)
    a("L1_h:")
    TS(a, 0)
    g2_early(a)
    g2_late(a)
    for _ in range(int(E("HSLP", "12"))): a("s_sleep 10")
    for st in range(NBR):
        g2_b1(a, st, 0); g2_b1(a, st, 1)
    g2_bpre_lds(a)
    a("s_branch L1_g2")
    a("L1_conv:")
    cpath(a)
    a("""
    L1_exit:
    s_endpgm
    """)

def build():
    launches = [f"; @launch kernel=prep_kernel grid=({NK0},1,1) block=(256,1,1) lds=16384",
                "; @launch kernel=main_kernel grid=(512,1,1) block=(256,1,1) lds=81920"]
    descs = [desc("prep_kernel", 72), desc("main_kernel", 256, acc=256)]
    body = A()
    k0(body)
    k1(body)
    txt = "\n".join(launches) + "\n"
    txt += '.amdgcn_target "amdgcn-amd-amdhsa--gfx950"\n.text\n'
    txt += body.text()
    txt += '.section .rodata,"a"\n' + "".join(descs)
    return txt

if __name__ == "__main__":
    out = sys.argv[1]
    open(out, "w").write(build())
    print("wrote", out)
```

```python
import sys, struct, math, os
OUT = "parallel_sum__ssm_conv_s4d__glu_gated_geglu__prompt.s"

class A:
    def __init__(self): self.l = []
    def __call__(self, s):
        for ln in s.strip("\n").split("\n"):
            self.l.append("    " + ln.strip() if not ln.strip().endswith(":") else ln.strip())
    def raw(self, s): self.l.append(s)
    def text(self): return "\n".join(self.l) + "\n"

def f32(x): return "0x%08x" % struct.unpack("<I", struct.pack("<f", x))[0]
LOG2E = 1.4426950408889634

XN, XNT, HB, AT, WF, FLG, TB = 0, 4<<20, 8<<20, 16<<20, 18<<20, 20<<20, 22<<20
SKEW = int(os.environ.get("SKEW", "1"))
WS_ = 29 if SKEW else 28
RSH = 4*WS_*1024 + (768 if SKEW else 0)
XRS = 32768 + (256 if SKEW else 0)
TLO = 0x3100
C0 = math.sqrt(2.0/math.pi)
KA = -2.0*LOG2E*C0
KB = KA*0.044715
SZ2M = 2<<20
HSZ = 64*RSH
WSZ = 16*RSH
POLL_LIMIT = 60000

def srd(a, s, lo, hi, off, size):
    if off:
        a(f"s_add_u32 s{s}, s{lo}, 0x{off:x}")
        a(f"s_addc_u32 s{s+1}, s{hi}, 0")
        a(f"s_and_b32 s{s+1}, s{s+1}, 0xffff")
    else:
        a(f"s_mov_b32 s{s}, s{lo}")
        a(f"s_and_b32 s{s+1}, s{hi}, 0xffff")
    a(f"s_mov_b32 s{s+2}, 0x{size:x}")
    a(f"s_mov_b32 s{s+3}, 0x20000")

def srd_dyn(a, s, lo, hi, off, sx, size):
    a(f"s_add_u32 s{s}, s{lo}, 0x{off:x}")
    a(f"s_addc_u32 s{s+1}, s{hi}, 0")
    a(f"s_add_u32 s{s}, s{s}, s{sx}")
    a(f"s_addc_u32 s{s+1}, s{s+1}, 0")
    a(f"s_and_b32 s{s+1}, s{s+1}, 0xffff")
    a(f"s_mov_b32 s{s+2}, 0x{size:x}")
    a(f"s_mov_b32 s{s+3}, 0x20000")

def header(a, name):
    a.raw(f".globl {name}")
    a.raw(".p2align 8")
    a.raw(f".type {name},@function")
    a.raw(f"{name}:")

def desc(name, vgpr, sgpr=100, acc=None):
    if acc is None: acc = (vgpr + 3)//4*4
    return f""".p2align 6
.amdhsa_kernel {name}
  .amdhsa_next_free_vgpr {vgpr}
  .amdhsa_next_free_sgpr {sgpr}
  .amdhsa_accum_offset {acc}
  .amdhsa_group_segment_fixed_size 0
  .amdhsa_kernarg_size 112
  .amdhsa_user_sgpr_count 2
  .amdhsa_user_sgpr_kernarg_segment_ptr 1
  .amdhsa_system_sgpr_workgroup_id_x 1
.end_amdhsa_kernel
"""

TSON = os.environ.get("TS", "") != ""
TSALL = os.environ.get("TS", "") == "all"
TSWG = 0 if TSALL else int(os.environ.get("TS", "0") or 0)
def TS(a, i):
    if not TSON: return
    a("s_memtime s[94:95]")
    a("s_waitcnt lgkmcnt(0)")
    a(f"s_mov_b32 s{64+i}, s94")
def TR(a, i):
    if not TSON: return
    a("s_memrealtime s[94:95]")
    a("s_waitcnt lgkmcnt(0)")
    a(f"s_mov_b32 s{64+i}, s94")
def TSDUMP(a, n, tag):
    if not TSON: return
    if TSALL:
        a(f"""
        s_cmp_lg_u32 s3, 0
        s_cbranch_scc1 Lts_{tag}
        s_memrealtime s[94:95]
        s_getreg_b32 s76, hwreg(HW_REG_HW_ID)
        s_getreg_b32 s77, hwreg(HW_REG_XCC_ID)
        s_lshl_b32 s92, s96, 7
        v_mov_b32 v1, s92
        s_waitcnt lgkmcnt(0)
        s_mov_b32 s78, s99
        s_mov_b32 s79, s94
        """)
        srd(a, 88, 16, 17, 24 << 20, 65536)
        for i in range(16):
            a(f"v_mov_b32 v2, s{64+i}")
            a(f"buffer_store_dword v2, v1, s[88:91], 0 offen offset:{4*i}")
        a(f"Lts_{tag}:")
        return
    a(f"""
    s_cmp_lg_u32 s96, {TSWG}
    s_cbranch_scc1 Lts_{tag}
    s_cmp_lg_u32 s3, 0
    s_cbranch_scc1 Lts_{tag}
    s_load_dwordx2 s[92:93], s[0:1], 96
    s_waitcnt lgkmcnt(0)
    """)
    srd(a, 88, 92, 93, 0, 256)
    a("v_mov_b32 v1, 0")
    for i in range(n):
        a(f"v_mov_b32 v2, s{64+i}")
        a(f"buffer_store_dword v2, v1, s[88:91], 0 offen offset:{4*i}")
    a(f"Lts_{tag}:")

PFN = int(os.environ.get("PFN", "0"))
NK0 = 245 + (128 if PFN else 0)
def k0(a):
    n0 = len(a.l)
    k0_(a)
    PSC = os.environ.get("PSC", "")
    if PSC:
        for i in range(n0, len(a.l)):
            if "buffer_store" in a.l[i] and "s[88:91]" not in a.l[i]:
                a.l[i] = a.l[i].split(";")[0].rstrip() + " " + PSC
def k0_(a):
    header(a, "prep_kernel")
    a(f"""
    s_cmp_ge_u32 s2, {NK0}
    s_cbranch_scc1 L0_exit
    s_load_dwordx2 s[4:5], s[0:1], 0
    s_load_dwordx2 s[18:19], s[0:1], 80
    s_load_dwordx2 s[16:17], s[0:1], 104
    {"s_memrealtime s[98:99]" if TSALL else ""}
    s_waitcnt lgkmcnt(0)
    s_cmp_ge_u32 s2, 128
    s_cbranch_scc1 L0_swz
    """)
    if os.environ.get("LNMAP"):
        a("""
        s_and_b32 s3, s2, 7
        s_lshl_b32 s3, s3, 4
        s_lshr_b32 s2, s2, 3
        s_add_u32 s2, s2, s3
        """)
    srd(a, 20, 4, 5, 0, SZ2M)
    srd(a, 24, 16, 17, XN, 64*XRS)
    srd(a, 28, 16, 17, XNT, SZ2M)
    a("""
    s_lshl_b32 s3, s2, 4            ; r0
    v_lshrrev_b32 v1, 4, v0
    v_and_b32 v2, 15, v0            ; j
    v_add_u32 v3, s3, v1            ; row
    v_lshlrev_b32 v3, 10, v3
    v_lshl_add_u32 v3, v2, 4, v3    ; voffset
    """)
    for c in range(4):
        a(f"buffer_load_dwordx4 v[{8+4*c}:{11+4*c}], v3, s[20:23], 0 offen offset:{c*256}")
    srd(a, 40, 16, 17, AT, SZ2M)
    a("""
    v_mov_b32 v32, -1
    v_mov_b32 v33, -1
    v_mov_b32 v34, -1
    v_mov_b32 v35, -1
    v_lshlrev_b32 v36, 4, v0
    s_lshl_b32 s32, s2, 14
    """)
    for c in range(4):
        a(f"s_add_u32 s33, s32, {c*4096}")
        a(f"buffer_store_dwordx4 v[32:35], v36, s[40:43], s33 offen {os.environ.get('PSCA', '')}")
    a("s_waitcnt vmcnt(4)")
    for i in range(16):
        a(f"v_lshlrev_b32 v{32+2*i}, 16, v{8+i}")
        a(f"v_and_b32 v{33+2*i}, 0xffff0000, v{8+i}")
    a("v_add_f32 v4, v32, v33")
    a("v_add_f32 v5, v34, v35")
    for i in range(36, 64, 2):
        a(f"v_add_f32 v4, v4, v{i}")
        a(f"v_add_f32 v5, v5, v{i+1}")
    a("v_add_f32 v4, v4, v5")
    def rowsum(r):
        for ror in (8, 4, 2, 1):
            a("s_nop 1")
            a(f"v_add_f32_dpp v{r}, v{r}, v{r} row_ror:{ror} row_mask:0xf bank_mask:0xf")
    rowsum(4)
    a(f"v_mul_f32 v4, {f32(1.0/512)}, v4")
    a("v_sub_f32 v6, v32, v4")
    a("v_mul_f32 v5, v6, v6")
    a("v_sub_f32 v6, v33, v4")
    a("v_mul_f32 v7, v6, v6")
    for i in range(34, 64, 2):
        a(f"v_sub_f32 v6, v{i}, v4")
        a(f"v_fma_f32 v5, v6, v6, v5")
        a(f"v_sub_f32 v64, v{i+1}, v4")
        a(f"v_fma_f32 v7, v64, v64, v7")
    a("v_add_f32 v5, v5, v7")
    rowsum(5)
    a(f"""
    v_mul_f32 v5, {f32(1.0/512)}, v5
    v_cvt_pk_bf16_f32 v4, v4, v5
    v_and_b32 v5, 0xffff0000, v4
    v_lshlrev_b32 v4, 16, v4
    v_add_f32 v5, {f32(1e-5)}, v5
    v_cvt_pk_bf16_f32 v5, v5, v5
    v_lshlrev_b32 v5, 16, v5
    v_sqrt_f32 v5, v5
    s_nop 0
    v_cvt_pk_bf16_f32 v5, v5, v5
    v_lshlrev_b32 v5, 16, v5         ; s (bf16)
    v_rcp_f32 v6, v5
    s_nop 0
    """)
    for i in range(16):
        x0, x1 = 32+2*i, 33+2*i
        a(f"""
        v_sub_f32 v{x0}, v{x0}, v4
        v_sub_f32 v{x1}, v{x1}, v4
        v_cvt_pk_bf16_f32 v7, v{x0}, v{x1}
        v_lshlrev_b32 v{x0}, 16, v7
        v_and_b32 v{x1}, 0xffff0000, v7
        v_mul_f32 v64, v{x0}, v6
        v_mul_f32 v65, v{x1}, v6
        v_fma_f32 v66, -v64, v5, v{x0}
        v_fma_f32 v67, -v65, v5, v{x1}
        v_fma_f32 v64, v66, v6, v64
        v_fma_f32 v65, v67, v6, v65
        v_cvt_pk_bf16_f32 v{8+i}, v64, v65
        """)
    a(f"""
    v_lshlrev_b32 v7, 10, v1
    v_lshl_add_u32 v7, v2, 4, v7
    v_lshrrev_b32 v64, 1, v2
    v_lshlrev_b32 v64, 10, v64
    v_and_b32 v65, 1, v2
    v_lshl_add_u32 v64, v65, 9, v64
    v_lshl_add_u32 v64, v1, 4, v64
    s_lshr_b32 s34, s2, 1
    s_mul_i32 s34, s34, {XRS}
    s_and_b32 s35, s2, 1
    s_lshl_b32 s35, s35, 8
    s_add_u32 s34, s34, s35
    s_add_u32 s35, s34, 0x2000
    s_add_u32 s36, s34, 0x4000
    s_add_u32 s37, s34, 0x6000
    """)
    for c in range(4):
        a(f"buffer_store_dwordx4 v[{8+4*c}:{11+4*c}], v64, s[24:27], s{34+c} offen {os.environ.get('PSCX', '')}")
        a(f"ds_write_b128 v7, v[{8+4*c}:{11+4*c}] offset:{c*256}")
    a("""
    s_waitcnt lgkmcnt(0)
    s_barrier
    v_lshlrev_b32 v7, 2, v0
    """)
    for r in range(16):
        a(f"ds_read_b32 v{32+r}, v7 offset:{r*1024}")
    a("""
    s_mov_b32 s32, 0x05040100
    s_mov_b32 s33, 0x07060302
    v_lshlrev_b32 v3, 13, v0        ; d=2*tid -> d*4096
    s_lshl_b32 s3, s3, 1            ; r0*2 bytes
    v_add_u32 v3, s3, v3
    s_waitcnt lgkmcnt(0)
    """)
    for q in range(8):
        a(f"v_perm_b32 v{48+q}, v{33+2*q}, v{32+2*q}, s32")
        a(f"v_perm_b32 v{56+q}, v{33+2*q}, v{32+2*q}, s33")
    PT_ = os.environ.get('PSCT', '')
    a(f"""
    buffer_store_dwordx4 v[48:51], v3, s[28:31], 0 offen {PT_}
    buffer_store_dwordx4 v[52:55], v3, s[28:31], 0 offen offset:16 {PT_}
    v_add_u32 v3, 0x1000, v3
    buffer_store_dwordx4 v[56:59], v3, s[28:31], 0 offen {PT_}
    buffer_store_dwordx4 v[60:63], v3, s[28:31], 0 offen offset:16 {PT_}
    s_branch L0_fin
    """)
    a(f"""
    L0_swz:
    s_cmp_ge_u32 s2, 240
    s_cbranch_scc1 L0_zero
    """)
    srd(a, 24, 16, 17, WF, WSZ)
    srd(a, 20, 18, 19, 0, 1792*1024)
    a("""
    s_sub_u32 s3, s2, 128
    s_lshl_b32 s32, s3, 14
    v_lshlrev_b32 v1, 2, v0
    s_add_u32 s33, s32, 0x1000
    s_add_u32 s34, s32, 0x2000
    s_add_u32 s35, s32, 0x3000
    """)
    for e in range(16):
        a(f"buffer_load_dword v{8+e}, v1, s[20:23], s{32+e//4} offen offset:{(e%4)*1024}")
    a(f"""
    v_lshrrev_b32 v2, 4, v0
    v_mul_u32_u24 v2, {RSH}, v2
    v_and_b32 v3, 15, v0
    v_lshl_add_u32 v2, v3, 5, v2
    s_mul_i32 s36, s3, {147*SKEW}
    s_lshr_b32 s36, s36, 12
    s_add_u32 s36, s36, s3
    s_lshl_b32 s36, s36, 10
    s_mov_b32 s37, 0x05040100
    s_mov_b32 s38, 0x07060302
    """)
    for h in range(2):
        a(f"s_waitcnt vmcnt({4*(1-h)})")
        Rr = [4*h, 4*h+1, 4*h+2, 4*h+3, 8+4*h, 9+4*h, 10+4*h, 11+4*h]
        for p in range(4):
            a(f"v_perm_b32 v{32+8*h+p}, v{8+Rr[2*p+1]}, v{8+Rr[2*p]}, s37")
            a(f"v_perm_b32 v{36+8*h+p}, v{8+Rr[2*p+1]}, v{8+Rr[2*p]}, s38")
    for h in range(2):
        a(f"buffer_store_dwordx4 v[{32+8*h}:{35+8*h}], v2, s[24:27], s36 offen offset:{512*h} {os.environ.get('PSCW', '')}")
        a(f"buffer_store_dwordx4 v[{36+8*h}:{39+8*h}], v2, s[24:27], s36 offen offset:{512*h+16} {os.environ.get('PSCW', '')}")
    a("s_branch L0_fin")
    a("L0_zero:")
    a("""
    s_cmp_ge_u32 s2, 241
    s_cbranch_scc1 L0_tab
    """)
    srd(a, 24, 16, 17, FLG, 98304)
    a("""
    v_lshlrev_b32 v1, 4, v0
    v_mov_b32 v4, 0
    v_mov_b32 v5, 0
    v_mov_b32 v6, 0
    v_mov_b32 v7, 0
    """)
    for i in range(24):
        a(f"s_mov_b32 s32, {i*4096}")
        a("buffer_store_dwordx4 v[4:7], v1, s[24:27], s32 offen")
    a("""
    s_branch L0_fin
    L0_tab:
    """)
    if PFN:
        a("""
        s_cmp_ge_u32 s2, 245
        s_cbranch_scc1 L0_pf
        """)
    srd(a, 24, 16, 17, TB, 16384)
    a(f"""
    s_sub_u32 s3, s2, 241
    s_lshl_b32 s32, s3, 11
    v_lshl_add_u32 v1, v0, 3, s32   ; idx
    v_lshrrev_b32 v2, 12, v1        ; sign
    v_and_b32 v3, 4095, v1
    v_lshl_add_u32 v3, v2, 15, v3
    v_add_u32 v3, 0x{TLO:x}, v3
    v_lshlrev_b32 v3, 16, v3
    v_lshlrev_b32 v1, 1, v1
    s_mov_b32 s47, {f32(KB)}
    v_mov_b32 v10, {f32(KA)}
    """)
    for e in range(8): a(f"v_add_u32 v{16+e}, 0x{e<<16:x}, v3")
    gelu8(a, 16, 24)
    for i in range(4): a(f"v_cvt_pk_bf16_f32 v{32+i}, v{24+2*i}, v{25+2*i}")
    a("""
    buffer_store_dwordx4 v[32:35], v1, s[24:27], 0 offen
    L0_fin:
    """)
    if TSALL:
        a("""
        s_waitcnt vmcnt(0)
        s_memrealtime s[96:97]
        s_lshl_b32 s92, s2, 3
        v_mov_b32 v1, s92
        s_waitcnt lgkmcnt(0)
        v_mov_b32 v2, s98
        v_mov_b32 v3, s96
        """)
        srd(a, 88, 16, 17, 25 << 20, 65536)
        a("buffer_store_dwordx2 v[2:3], v1, s[88:91], 0 offen")
    a("""
    L0_exit:
    s_endpgm
    """)
    if PFN:
        a("""
        L0_pf:
        s_load_dwordx4 s[40:43], s[0:1], 64
        s_load_dwordx8 s[48:55], s[0:1], 8
        s_load_dwordx2 s[56:57], s[0:1], 88
        s_sub_u32 s3, s2, 245
        v_lshlrev_b32 v1, 4, v0
        s_waitcnt lgkmcnt(0)
        s_cmp_ge_u32 s3, 112
        s_cbranch_scc1 L0_pf2
        """)
        srd(a, 20, 40, 41, 0, 1792*1024)
        srd(a, 24, 42, 43, 0, 1792*1024)
        a("s_lshl_b32 s32, s3, 14")
        for c in range(4):
            a(f"s_add_u32 s33, s32, {c*4096}")
            a(f"buffer_load_dwordx4 v[{8+8*c}:{11+8*c}], v1, s[20:23], s33 offen")
            a(f"buffer_load_dwordx4 v[{12+8*c}:{15+8*c}], v1, s[24:27], s33 offen")
        if PFN >= 2:
            srd(a, 28, 16, 17, HB, 8<<20)
            srd(a, 36, 56, 57, 0, SZ2M)
            a("""
            v_lshlrev_b32 v2, 15, v0
            v_lshlrev_b32 v3, 13, v0
            buffer_load_dword v40, v2, s[28:31], 0 offen
            buffer_load_dword v41, v3, s[36:39], 0 offen
            """)
        a("""
        s_waitcnt vmcnt(0)
        s_branch L0_fin
        L0_pf2:
        s_sub_u32 s3, s3, 112
        s_lshl_b32 s60, s3, 13
        """)
        for q in range(4):
            srd(a, 20+4*q, 48+2*q, 49+2*q, 0, 131072)
        for q in range(4):
            for c in range(2):
                a(f"s_add_u32 s61, s60, {c*4096}")
                a(f"buffer_load_dwordx4 v[{8+8*q+4*c}:{11+8*q+4*c}], v1, s[{20+4*q}:{23+4*q}], s61 offen")
        a("""
        s_waitcnt vmcnt(0)
        s_branch L0_fin
        """)

def gelu8(a, G, S):
    for j in range(8): a(f"v_mul_f32_e32 v{S+j}, v{G+j}, v{G+j}")
    for j in range(8): a(f"v_fma_f32 v{S+j}, v{S+j}, s47, v10")
    for j in range(8): a(f"v_mul_f32_e32 v{S+j}, v{S+j}, v{G+j}")
    for j in range(8): a(f"v_exp_f32_e32 v{S+j}, v{S+j}")
    a("s_nop 0")
    for j in range(8): a(f"v_add_f32_e32 v{S+j}, 1.0, v{S+j}")
    for j in range(8): a(f"v_rcp_f32_e32 v{S+j}, v{S+j}")
    a("s_nop 0")
    for j in range(8): a(f"v_mul_f32_e32 v{S+j}, v{S+j}, v{G+j}")

def cpath(a):
    RS = 528
    WB = 16*RS
    TRS = 208
    KH, KL, UB = 0, 7680, 15360
    CB = 32768
    TS(a, 0)
    TR(a, 7)
    if os.environ.get("CPRIO"): a(f"s_setprio {os.environ['CPRIO']}")
    a("""
    s_load_dwordx8 s[72:79], s[0:1], 8
    s_load_dwordx2 s[80:81], s[0:1], 40
    s_lshl_b32 s10, s2, 1           ; channel c0
    s_lshl_b32 s11, s10, 12
    """)
    srd_dyn(a, 20, 16, 17, XNT, 11, 8192)
    srd_dyn(a, 32, 16, 17, AT, 11, 8192)
    srd(a, 36, 8, 9, 0, 1024)
    a("s_waitcnt lgkmcnt(0)")
    srd(a, 24, 72, 73, 0, 131072)
    srd(a, 28, 74, 75, 0, 131072)
    srd(a, 48, 76, 77, 0, 131072)
    srd(a, 52, 78, 79, 0, 131072)
    srd(a, 56, 80, 81, 0, 1024)
    a(f"""
    s_lshl_b32 s12, s2, 9           ; c0*256 bytes
    v_lshl_add_u32 v2, v15, 1, s12
    s_lshl_b32 s12, s2, 2
    v_lshrrev_b32 v3, 7, v15
    v_lshl_add_u32 v3, v3, 1, s12
    buffer_load_ushort v16, v2, s[24:27], 0 offen
    buffer_load_ushort v17, v2, s[28:31], 0 offen
    buffer_load_ushort v18, v2, s[48:51], 0 offen
    buffer_load_ushort v19, v2, s[52:55], 0 offen
    buffer_load_ushort v20, v3, s[56:59], 0 offen
    s_lshr_b32 s14, s3, 1
    s_lshl_b32 s14, s14, 15
    s_and_b32 s15, s3, 1
    s_mul_i32 s15, s15, {WB}
    s_add_u32 s14, s14, s15
    s_add_u32 s14, s14, {UB}
    v_lshl_add_u32 v2, v0, 3, s14
    v_and_b32 v4, 15, v0            ; r / j
    v_lshrrev_b32 v5, 4, v0         ; q
    v_mul_u32_u24 v3, {RS}, v4
    v_lshl_add_u32 v3, v5, 4, v3
    v_add_u32 v3, s14, v3
    v_mul_u32_u24 v60, {4*TRS}, v5
    v_lshl_add_u32 v60, v4, 2, v60
    v_add_u32 v60, s14, v60
    v_mov_b32 v6, 0
    v_cmp_le_u32 vcc, 32, v15
    s_nop 1
    v_addc_co_u32 v6, vcc, 0, v6, vcc
    v_cmp_le_u32 vcc, 64, v15
    s_nop 1
    v_addc_co_u32 v6, vcc, 0, v6, vcc
    v_cmp_le_u32 vcc, 128, v15
    s_nop 1
    v_addc_co_u32 v6, vcc, 0, v6, vcc     ; s
    v_lshlrev_b32 v7, v6, 1
    v_lshrrev_b32 v7, 1, v7
    v_add_u32 v7, -1, v7                  ; half-1
    v_lshlrev_b32 v8, 3, v15              ; l0
    v_lshlrev_b32 v9, 3, v6               ; 8s
    v_lshrrev_b32 v12, v6, 16             ; 16>>s
    v_cmp_eq_u32 vcc, 0, v6
    """)
    for e in range(8):
        a(f"""
        v_add_u32 v10, {e}, v8
        v_lshrrev_b32 v11, v6, v10
        v_and_b32 v11, 1, v11
        v_add3_u32 v11, v10, v7, v11
        v_lshrrev_b32 v11, v6, v11
        v_cndmask_b32 v11, v11, v10, vcc      ; m
        v_lshlrev_b32 v11, v6, v11            ; p
        v_lshrrev_b32 v10, 8, v11
        v_mad_u32_u24 v10, v10, v12, v9       ; 8s + (p>>8)*(16>>s)
        v_and_b32 v13, 15, v11
        v_lshrrev_b32 v13, v6, v13
        v_add_u32 v10, v10, v13               ; col
        v_bfe_u32 v11, v11, 4, 4              ; row
        v_mul_u32_u24 v11, {TRS}, v11
        v_lshl_add_u32 v{52+e}, v10, 2, v11
        """)
    a("s_waitcnt vmcnt(0)")
    TS(a, 1)
    a(f"""
    v_lshlrev_b32 v16, 16, v16
    v_lshlrev_b32 v17, 16, v17
    v_lshlrev_b32 v18, 16, v18
    v_lshlrev_b32 v19, 16, v19
    v_lshlrev_b32 v20, 16, v20
    v_mul_f32 v16, {f32(LOG2E)}, v16
    v_mul_f32 v20, {f32(LOG2E)}, v20
    v_exp_f32 v16, v16
    v_exp_f32 v20, v20
    s_nop 0
    v_cvt_pk_bf16_f32 v16, v16, v20
    v_and_b32 v20, 0xffff0000, v16    ; dt
    v_lshlrev_b32 v16, 16, v16
    v_mul_f32 v16, v16, v20
    v_mul_f32 v17, v17, v20
    v_mul_f32 v18, v18, v20
    v_mul_f32 v19, v19, v20
    v_mul_f32 v16, {f32(-LOG2E)}, v16
    v_mul_f32 v17, {f32(1.0/(2*math.pi))}, v17
    v_add_f32 v18, v18, v18
    v_mul_f32 v19, -2.0, v19
    """)
    regs = {"C": 18}
    nxt = [184]
    def R(name):
        if name not in regs:
            regs[name] = nxt[0]; nxt[0] += 2
            assert nxt[0] <= 250
        return regs[name]
    def pr(r): return f"v[{r}:{r+1}]"
    anch = [("W16", 16, 1), ("W64", 64, 1), ("W128", 128, 1), ("Z1", 1, 0), ("Z4", 4, 0), ("Z8", 8, 0), ("Z256", 256, 0), ("Z512", 512, 0), ("Z1024", 1024, 0)]
    for k, (nm, p, cj) in enumerate(anch):
        d = R(nm); t = 20 + 2*k
        a(f"v_mul_f32 v{t}, {f32(float(p))}, v16")
        a(f"v_mul_f32 v{t+1}, {f32(float(p))}, v17")
        a(f"v_exp_f32 v{t}, v{t}")
        a(f"v_cos_f32 v{d}, v{t+1}")
        a(f"v_sin_f32 v{d+1}, {'-' if cj else ''}v{t+1}")
    a("s_nop 0")
    for k, (nm, p, cj) in enumerate(anch):
        d = R(nm); t = 20 + 2*k
        a(f"v_mul_f32_e32 v{d}, v{d}, v{t}")
        a(f"v_mul_f32_e32 v{d+1}, v{d+1}, v{t}")
    tcnt = [0]
    def cmul(d, x, y):
        d, x, y = R(d), R(x), R(y)
        assert d != x and d != y
        a(f"v_mul_f32_e32 v{d}, v{x+1}, v{y+1}")
        a(f"v_mul_f32_e32 v{d+1}, v{x}, v{y+1}")
        a(f"v_fma_f32 v{d}, v{x}, v{y}, -v{d}")
        a(f"v_fmac_f32_e32 v{d+1}, v{x+1}, v{y}")
    scnt = [0]
    nds = [0]
    def put(nm, row):
        v = R(nm)
        h = 44 + 2*(scnt[0] % 2); u = 48 + 2*(scnt[0] % 2); scnt[0] += 1
        a(f"""
        v_cvt_pk_bf16_f32 v{h}, v{v}, v{v+1}
        v_lshlrev_b32 v{u}, 16, v{h}
        v_and_b32 v{u+1}, 0xffff0000, v{h}
        v_sub_f32_e32 v{u}, v{v}, v{u}
        v_sub_f32_e32 v{u+1}, v{v+1}, v{u+1}
        v_cvt_pk_bf16_f32 v{h+1}, v{u}, v{u+1}
        ds_write_b64 v2, {pr(h)} offset:{row*RS}
        """)
        nds[0] += 1
    A1, A2, BO, ACC = 64, 96, 128, 160
    cmul("w2", "W16", "W16"); cmul("w3", "w2", "W16"); cmul("W192", "W128", "W64")
    regs["w1"] = regs["W16"]
    for aa in range(4):
        if aa == 0: regs["CW"] = regs["C"]
        else:
            regs["CW"] = R("CWt"); cmul("CWt", "C", f"W{64*aa}")
        put("CW", 4*aa)
        for b in range(1, 4):
            nm = f"T{b%2}"
            cmul(nm, "CW", f"w{b}"); put(nm, 4*aa+b)
    for ks in range(8):
        a(f"ds_read_b128 v[{A1+4*ks}:{A1+4*ks+3}], v3 offset:{ks*64}")
        a(f"ds_read2_b32 v[{A2+4*ks}:{A2+4*ks+1}], v3 offset0:{ks*16+1} offset1:{ks*16}")
        a(f"ds_read2_b32 v[{A2+4*ks+2}:{A2+4*ks+3}], v3 offset0:{ks*16+3} offset1:{ks*16+2}")
        nds[0] += 3
    def breads():
        for ks in range(8):
            a(f"ds_read_b128 v[{BO+4*ks}:{BO+4*ks+3}], v3 offset:{ks*64}")
            nds[0] += 1
        return nds[0]
    def mfmas(tau, mark):
        n = nds[0] - mark
        assert n <= 15
        a(f"s_waitcnt lgkmcnt({n})")
        for ks in range(8):
            for h, A_ in enumerate((A1, A2)):
                c = ACC + tau*8 + h*4
                cin = "0" if ks == 0 else f"v[{c}:{c+3}]"
                a(f"v_mfma_f32_16x16x32_bf16 v[{c}:{c+3}], v[{A_+4*ks}:{A_+4*ks+3}], v[{BO+4*ks}:{BO+4*ks+3}], {cin}")
    a(f"v_mov_b32 v{R('Z0')}, 1.0")
    a(f"v_mov_b32 v{R('Z0')+1}, 0")
    cmul("Z2", "Z1", "Z1"); cmul("Z3", "Z2", "Z1"); cmul("Z12", "Z8", "Z4")
    for aa in range(4):
        put(f"Z{4*aa}", 4*aa)
        for b in range(1, 4):
            j = 4*aa+b
            if aa > 0:
                nm = f"Z{j}" if j % 2 == 0 else f"T{(j//2)%2}"
                cmul(nm, f"Z{4*aa}", f"Z{b}")
            else: nm = f"Z{j}"
            put(nm, j)
    mark = breads()
    cmul("Z768", "Z512", "Z256")
    vals = [("Z256", 2*j) for j in range(8)] + [("Z512", 4*r) for r in range(4)] + [("Z768", 4*r) for r in range(4)]
    for j, (bs, e) in enumerate(vals):
        if e == 0: nm = bs
        else:
            nm = f"T{j%2}"; cmul(nm, bs, f"Z{e}")
        put(nm, j)
        if j == 3: mfmas(0, mark)
    mark = breads()
    cmul("Z1280", "Z1024", "Z256"); cmul("Z1536", "Z1024", "Z512"); cmul("Z1792", "Z1024", "Z768"); cmul("Z2048", "Z1024", "Z1024")
    vals = [(f"Z{1024+256*c}", 8*e) for c in range(4) for e in range(2)] + [("Z2048", 0)]
    for j, (bs, e) in enumerate(vals):
        if e == 0: nm = bs
        else:
            nm = f"T{j%2}"; cmul(nm, bs, f"Z{e}")
        put(nm, j)
        if j == 3: mfmas(1, mark)
    mark = breads()
    LR = [dict(U=184, Um=188, D=190, Ue=192), dict(U=200, Um=204, D=206, Ue=208)]
    a(f"""
    v_lshlrev_b32 v1, 4, v15
    v_add_u32 v4, -8, v1
    s_lshl_b32 s12, s10, 1
    v_mov_b32 v8, s12
    s_mov_b32 s43, 0
    s_mov_b32 s44, 4096
    v_and_b32 v5, 31, v0
    v_lshrrev_b32 v6, 5, v0
    s_lshr_b32 s13, s3, 1
    s_lshl_b32 s13, s13, 11
    s_and_b32 s14, s3, 1
    s_lshl_b32 s14, s14, 5
    s_add_u32 s13, s13, s14
    v_lshlrev_b32 v13, 6, v5
    v_lshl_add_u32 v13, v6, 4, v13
    v_add_u32 v13, s13, v13
    """)
    for c in range(2):
        R_ = LR[c]
        a(f"""
        buffer_load_dwordx4 v[{R_['U']}:{R_['U']+3}], v1, s[20:23], s{43+c} offen
        buffer_load_dwordx2 v[{R_['Um']}:{R_['Um']+1}], v4, s[20:23], s{43+c} offen
        """)
    for c in range(2):
        R_ = LR[c]
        a(f"""
        buffer_load_ushort v{R_['D']}, v8, s[36:39], 0 offen offset:{2*c}
        buffer_load_dwordx4 v[{R_['Ue']}:{R_['Ue']+3}], v13, s[20:23], s{43+c} offen
        """)
    mfmas(2, mark)
    TS(a, 2)
    if os.environ.get("CPRIOI"): a(f"s_setprio {os.environ['CPRIOI']}")
    a(f"""
    v_mov_b32 v40, 0
    v_mov_b32 v41, 0
    v_mov_b32 v42, 0
    v_mov_b32 v43, 0
    v_cmp_gt_u32 vcc, 160, v15
    s_and_saveexec_b64 s[40:41], vcc
    ds_write_b128 v1, v[40:43] offset:{KH}
    ds_write_b128 v1, v[40:43] offset:{KL}
    ds_write_b128 v1, v[40:43] offset:{CB+KH}
    ds_write_b128 v1, v[40:43] offset:{CB+KL}
    s_mov_b64 exec, s[40:41]
    s_nop 3
    """)
    for tau in range(3):
        for r in range(4):
            c = ACC + tau*8 + r
            a(f"v_add_f32 v{c}, v{c}, v{c+4}")
            a(f"ds_write_b32 v60, v{c} offset:{r*TRS+tau*64}")
    a(f"""
    v_lshrrev_b32 v7, 2, v15
    v_mul_u32_u24 v7, 80, v7
    v_and_b32 v12, 3, v15
    v_lshl_add_u32 v7, v12, 4, v7
    v_lshrrev_b32 v9, 2, v15
    v_mul_u32_u24 v9, 4160, v9
    v_lshl_add_u32 v9, v12, 4, v9
    v_sub_u32 v12, 255, v15
    v_lshlrev_b32 v12, 4, v12
    s_mov_b32 s42, 0xffff
    ; A base
    v_sub_u32 v3, 3, v5
    v_and_b32 v3, 3, v3             ; r
    v_mul_u32_u24 v1, 4160, v3
    v_add_u32 v3, v3, v5            ; b+r
    v_lshlrev_b32 v3, 1, v3
    v_sub_u32 v1, v1, v3
    v_lshl_add_u32 v1, v6, 4, v1
    s_lshl_b32 s14, s3, 6
    s_sub_u32 s15, {UB+4094-3840}, s14
    v_add_u32 v1, s15, v1
    ; B base
    v_mul_u32_u24 v2, 80, v5
    v_lshl_add_u32 v2, v6, 4, v2
    s_sub_u32 s14, 3, s3
    s_mul_i32 s14, s14, 80
    v_add_u32 v2, s14, v2
    s_waitcnt lgkmcnt(0)
    s_barrier
    """)
    for c in range(2):
        for e in range(8):
            a(f"ds_read2st64_b32 v[{64+c*16+2*e}:{65+c*16+2*e}], v{52+e} offset0:{128*c+60} offset1:{128*c+93}")
    for c in range(2):
        a(f"s_waitcnt lgkmcnt({8*(1-c)})")
        for e in range(8):
            a(f"v_add_f32 v{64+c*16+2*e}, v{64+c*16+2*e}, v{65+c*16+2*e}")
        if c == 1:
            a("s_barrier")
        for i in range(4):
            k0_, k1_ = 64+c*16+4*i, 66+c*16+4*i
            a(f"""
            v_cvt_pk_bf16_f32 v{32+8*c+i}, v{k0_}, v{k1_}
            v_lshlrev_b32 v20, 16, v{32+8*c+i}
            v_and_b32 v21, 0xffff0000, v{32+8*c+i}
            v_sub_f32 v20, v{k0_}, v20
            v_sub_f32 v21, v{k1_}, v21
            v_cvt_pk_bf16_f32 v{36+8*c+i}, v20, v21
            """)
        a(f"ds_write_b128 v7, v[{32+8*c}:{35+8*c}] offset:{c*CB+KH+32*80}")
        a(f"ds_write_b128 v7, v[{36+8*c}:{39+8*c}] offset:{c*CB+KL+32*80}")
    a(f"""
    v_mov_b32 v16, 0
    v_mov_b32 v17, 0
    v_mov_b32 v18, 0
    v_mov_b32 v19, 0
    v_cmp_gt_u32 vcc, 16, v15
    s_and_saveexec_b64 s[40:41], vcc
    ds_write_b128 v9, v[16:19] offset:{UB+4096}
    ds_write_b128 v9, v[16:19] offset:{CB+UB+4096}
    s_mov_b64 exec, s[40:41]
    v_cmp_eq_u32 vcc, 0, v15
    """)
    for c in range(2):
        R_ = LR[c]
        a(f"s_waitcnt vmcnt({4+2*(1-c)})")
        if c == 1:
            a(f"v_cndmask_b32_e64 v{R_['Um']}, v{R_['Um']}, 0, vcc")
            a(f"v_cndmask_b32_e64 v{R_['Um']+1}, v{R_['Um']+1}, 0, vcc")
        S = {-2: R_['Um'], -1: R_['Um']+1, 0: R_['U'], 1: R_['U']+1, 2: R_['U']+2, 3: R_['U']+3}
        for r in range(4):
            d = 96 + 16*c + 4*r
            for j in range(4):
                if r % 2 == 0:
                    p = 3 - r//2 - j
                    a(f"v_alignbit_b32 v{d+j}, v{S[p]}, v{S[p]}, 16")
                else:
                    p = (7-r)//2 - j
                    a(f"v_bfi_b32 v{d+j}, s42, v{S[p]}, v{S[p-1]}")
            a(f"ds_write_b128 v12, v[{d}:{d+3}] offset:{c*CB+UB+r*4160}")
    a("s_waitcnt lgkmcnt(0)")
    a("s_barrier")
    TS(a, 3)
    if os.environ.get("CPRIO2"): a(f"s_setprio {os.environ['CPRIO2']}")
    steps = [(c, i, ks) for c in range(2) for i in range(8) for ks in range(2)]
    def loads(n):
        c, i, ks = steps[n]
        af = 16 + (n % 2)*24; bf_ = af + 8
        for z in range(2):
            off = c*CB + 64*(60-4*(i+8*z)) + 32*ks
            a(f"ds_read_b64 v[{af+4*z}:{af+4*z+1}], v1 offset:{off}")
            a(f"ds_read_b64 v[{af+4*z+2}:{af+4*z+3}], v1 offset:{off+8}")
            for blk in ([0] if z == 0 else [1]):
                for hl in range(2):
                    img = KH if hl == 0 else KL
                    o = c*CB + img + (32+32*blk-4*i)*80 + 32*ks - 240
                    r_ = bf_ + (blk*2+hl)*4
                    a(f"ds_read_b128 v[{r_}:{r_+3}], v2 offset:{o}")
        return 8
    loads(0)
    NST = len(steps)
    for n in range(NST):
        c, i, ks = steps[n]
        if n+1 < NST:
            cn = loads(n+1)
            a(f"s_waitcnt lgkmcnt({cn})")
        else:
            a("s_waitcnt lgkmcnt(0)")
        af = 16 + (n % 2)*24; bf_ = af + 8
        first = (i == 0 and ks == 0)
        a0, a1 = 64 + c*32, 80 + c*32
        for j, (ac, z, blk, hl) in enumerate([(a0,0,0,0), (a1,1,0,0), (a0,0,0,1), (a1,0,1,0), (a1,1,0,1), (a1,0,1,1)]):
            r_ = bf_ + (blk*2+hl)*4
            cin = "0" if (first and j < 2) else f"v[{ac}:{ac+15}]"
            a(f"v_mfma_f32_32x32x16_bf16 v[{ac}:{ac+15}], v[{af+4*z}:{af+4*z+3}], v[{r_}:{r_+3}], {cin}")
    TS(a, 4)
    if os.environ.get("CPRIO3"): a(f"s_setprio {os.environ['CPRIO3']}")
    srd(a, 24, 16, 17, FLG, 98304)
    a("""
    s_nop 7
    s_barrier
    s_lshl_b32 s14, s3, 13
    v_lshlrev_b32 v1, 4, v0
    v_add_u32 v2, s14, v1
    """)
    for c in range(2):
        for qq in range(8):
            a(f"ds_write_b128 v2, v[{64+32*c+4*qq}:{67+32*c+4*qq}] offset:{c*CB+qq*1024}")
    a("""
    s_lshl_b32 s14, s3, 11
    v_lshlrev_b32 v1, 4, v5
    v_lshl_add_u32 v1, v6, 10, v1
    v_add_u32 v1, s14, v1
    s_lshr_b32 s45, s2, 5
    s_lshr_b32 s14, s3, 1
    s_lshl_b32 s14, s14, 7
    s_add_u32 s45, s45, s14
    s_add_u32 s45, s45, 128
    s_lshl_b32 s45, s45, 8
    s_and_b32 s14, s2, 31
    s_lshl_b32 s14, s14, 1
    s_and_b32 s15, s3, 1
    s_add_u32 s14, s14, s15
    s_lshl_b32 s14, s14, 2
    s_add_u32 s45, s45, s14
    s_waitcnt lgkmcnt(0)
    s_barrier
    """)
    for c in range(2):
        for ww in range(4):
            for e in range(2):
                r_ = 64 + c*32 + (ww*2+e)*4
                a(f"ds_read_b128 v[{r_}:{r_+3}], v1 offset:{c*CB+ww*8192+e*512}")
    a("s_waitcnt lgkmcnt(0) vmcnt(0)")
    for c in range(2):
        R_ = LR[c]
        a(f"v_lshlrev_b32 v{R_['D']}, 16, v{R_['D']}")
        o = 56 + 4*c
        for e in range(2):
            for j in range(4):
                r_ = 64 + c*32 + e*4 + j
                a(f"v_add_f32 v{r_}, v{r_}, v{r_+8}")
                a(f"v_add_f32 v{r_+16}, v{r_+16}, v{r_+24}")
                a(f"v_add_f32 v{r_}, v{r_}, v{r_+16}")
            y = 64 + c*32 + e*4
            for p in range(2):
                uu = R_['Ue'] + 2*e + p
                a(f"""
                v_cvt_pk_bf16_f32 v48, v{y+2*p}, v{y+2*p+1}
                v_lshlrev_b32 v49, 16, v48
                v_and_b32 v50, 0xffff0000, v48
                v_lshlrev_b32 v51, 16, v{uu}
                v_and_b32 v52, 0xffff0000, v{uu}
                v_mul_f32 v51, v51, v{R_['D']}
                v_mul_f32 v52, v52, v{R_['D']}
                v_cvt_pk_bf16_f32 v48, v51, v52
                v_lshlrev_b32 v51, 16, v48
                v_and_b32 v52, 0xffff0000, v48
                v_add_f32 v49, v49, v51
                v_add_f32 v50, v50, v52
                v_cvt_pk_bf16_f32 v{o+2*e+p}, v49, v50
                """)
        a(f"buffer_store_dwordx4 v[{o}:{o+3}], v13, s[32:35], s{43+c} offen sc1")
    TS(a, 5)
    a(f"""
    {"s_waitcnt vmcnt(0)" if TSON else ""}
    """)
    TS(a, 6)
    TR(a, 9)
    TSDUMP(a, 10, "c")
    a("s_endpgm")

E = os.environ.get
NBR, NBL = 12, 8
XS = 11
def breg(j): return 160 if j == 11 else 168 + ((j + 10) % 11)*8
def kk(j): return (j//2)*4 + (j % 2) if j < 14 else ((j-14)//2)*4 + 2 + (j % 2)
def g2_early(a):
    srd(a, 84, 16, 17, WF, WSZ)
    a(f"""
    s_and_b32 s44, s2, 7
    s_lshl_b32 s44, s44, 2
    s_bfe_u32 s45, s2, 0x20003
    s_add_u32 s44, s44, s45         ; tt
    s_lshr_b32 s45, s2, 5           ; dt
    s_mul_i32 s14, s3, {WS_*1024}
    s_mul_i32 s18, s44, {2*RSH}
    s_add_u32 s18, s18, s14
    s_mul_i32 s19, s45, {2*RSH}
    s_add_u32 s19, s19, s14
    s_lshl_b32 s43, s44, 2
    s_add_u32 s43, s43, s3
    s_lshl_b32 s43, s43, 8
    s_lshl_b32 s61, s3, 14
    s_add_u32 s8, s61, 8192
    s_cmp_eq_u32 s3, 0
    s_cselect_b32 s61, 73728, s61
    v_lshlrev_b32 v4, 4, v0         ; lane*16
    v_add_u32 v5, {RSH}, v4
    """)
def g2_late(a):
    srd(a, 32, 16, 17, FLG, 98304)
    srd(a, 36, 16, 17, AT, SZ2M)
    srd(a, 48, 56, 57, 0, SZ2M)
    srd(a, 52, 58, 59, 0, SZ2M)
def g2_b1(a, st, cb):
    r = breg(st) + cb*4
    if cb == 0: a(f"s_add_u32 s14, s19, {kk(st)*1024}")
    a(f"buffer_load_dwordx4 v[{r}:{r+3}], v{4+cb}, s[84:87], s14 offen")
def g2_bpre_lds(a, q=None):
    for j in range(NBL):
        st = NBR + j
        a(f"s_add_u32 s14, s19, {kk(st)*1024}")
        for cb in range(2):
            c = j*2+cb
            a(f"s_add_u32 m0, s{61 if c < 8 else 8}, {(c%8)*1024}")
            a("s_nop 0")
            a(f"buffer_load_dwordx4 v{4+cb}, s[84:87], s14 offen lds")
            if q is not None: q.append(("bl", st))

def poll(a, tag, soff, target, off=0, slp=2):
    a(f"""
    s_mov_b32 s9, 0
    Lp_{tag}:
    buffer_load_dword v7, v6, s[32:35], s{soff} offen offset:{off} sc1
    s_waitcnt vmcnt(0)
    v_readfirstlane_b32 s14, v7
    s_add_u32 s9, s9, 1
    s_cmp_ge_u32 s14, {target}
    s_cbranch_scc1 Lpd_{tag}
    s_cmp_ge_u32 s9, {POLL_LIMIT}
    s_cbranch_scc1 Lpd_{tag}
    s_sleep {slp}
    s_branch Lp_{tag}
    Lpd_{tag}:
    """)

def gemm2(a):
    a("L1_g2:")
    if E("PRIO2"): a(f"s_setprio {E('PRIO2')}")
    a("v_mov_b32 v6, 0")
    a("s_barrier")
    poll(a, "h", 43, 7)
    TS(a, 9)
    NS = 28
    q = []
    def wait_for(tags):
        idx = max(i for i, t in enumerate(q) if t in tags)
        n = len(q) - 1 - idx
        assert n <= 63
        a(f"s_waitcnt vmcnt({n})")
    free = [96 + 8*i for i in range(8)]
    pend = []
    for st in range(NS):
        pend.append(("A", st))
        if st >= NBR + NBL: pend.append(("B", st))
    loc = {}
    for st in range(NBR): loc[("B", st)] = breg(st)
    fb = [False]
    def issue():
        while pend and free:
            k, st = pend[0]
            if k == "A" and st >= 14 and not fb[0]:
                fb[0] = True
                wait_for([("F", 1)])
                a(f"""
                v_readfirstlane_b32 s14, v7
                s_cmp_ge_u32 s14, 7
                s_cbranch_scc1 Lpd_hb
                """)
                poll(a, "hb", 43, 7, off=128)
            pend.pop(0)
            r = free.pop(0)
            loc[(k, st)] = r
            a(f"s_add_u32 s41, s{18 if k == 'A' else 19}, {kk(st)*1024}")
            for j in range(2):
                a(f"buffer_load_dwordx4 v[{r+4*j}:{r+4*j+3}], v{4+j}, s[{28 if k == 'A' else 84}:{31 if k == 'A' else 87}], s41 offen")
                q.append((k, st))
    issue()
    FBI = int(E("FBI", "-1"))
    def fbload():
        a("buffer_load_dword v7, v6, s[32:35], s43 offen offset:128 sc1")
        q.append(("F", 1))
    if FBI < 0: fbload()
    a(f"""
    v_and_b32 v8, 15, v0
    v_lshrrev_b32 v9, 4, v0         ; dg
    s_lshl_b32 s62, s44, 6
    s_lshl_b32 s63, s45, 6
    s_lshl_b32 s14, s3, 4
    v_add_u32 v10, s14, v8          ; t local
    v_add_u32 v11, s62, v10
    v_lshlrev_b32 v13, 10, v11
    v_lshl_add_u32 v13, v9, 4, v13
    s_lshl_b32 s15, s63, 1
    v_add_u32 v13, s15, v13
    v_lshrrev_b32 v12, 3, v0
    v_add_u32 v12, s14, v12
    v_add_u32 v12, s63, v12
    v_lshlrev_b32 v12, 12, v12
    v_and_b32 v11, 7, v0
    v_lshl_add_u32 v12, v11, 4, v12
    s_lshl_b32 s15, s62, 1
    v_add_u32 v12, s15, v12
    s_lshl_b32 s20, s3, 11
    s_add_u32 s20, s20, 65536
    s_mov_b32 s21, 32768
    s_lshl_b32 s14, s44, 3
    s_add_u32 s45, s45, s14
    s_add_u32 s45, s45, 128
    s_lshl_b32 s45, s45, 8
    v_and_b32 v11, 31, v0
    v_lshrrev_b32 v14, 5, v0
    v_xor_b32 v14, v14, v8
    v_lshlrev_b32 v14, 4, v14
    v_lshl_add_u32 v14, v11, 8, v14
    s_lshl_b32 s14, s3, 14
    v_add_u32 v14, s14, v14
    v_lshlrev_b32 v15, 1, v9
    v_xor_b32 v15, v15, v8
    v_lshlrev_b32 v15, 4, v15
    v_lshl_add_u32 v15, v10, 8, v15
    v_lshrrev_b32 v1, 2, v8
    v_lshl_add_u32 v1, v9, 3, v1
    v_lshlrev_b32 v1, 7, v1
    v_and_b32 v11, 3, v0
    v_lshl_add_u32 v1, v11, 3, v1
    s_lshl_b32 s14, s3, 5
    s_add_u32 s14, s14, 65536
    v_add_u32 v1, s14, v1
    v_add_u32 v2, s61, v4
    v_add_u32 v3, s8, v4
    """)
    ACC = 16
    X_R = 248
    def acc(cb, rb): return ACC + (cb*2+rb)*16
    def ldsb(st):
        j = st - NBR
        r = 80 + 8*(st % 2)
        loc[("B", st)] = r
        vb = 2 if j < 4 else 3
        a(f"ds_read_b128 v[{r}:{r+3}], v{vb} offset:{((2*j)%8)*1024}")
        a(f"ds_read_b128 v[{r+4}:{r+7}], v{vb} offset:{((2*j+1)%8)*1024}")
    def atload(r):
        for j in range(2):
            a(f"buffer_load_dwordx4 v[{r+4*j}:{r+4*j+3}], v12, s[36:39], {'0' if j == 0 else 's21'} offen sc1")
            q.append(("T", 0))
    def atchk(r):
        a(f"""
        v_max3_u32 v11, v{r}, v{r+1}, v{r+2}
        v_max3_u32 v7, v{r+3}, v{r+4}, v{r+5}
        v_max3_u32 v11, v11, v{r+6}, v{r+7}
        v_max_u32 v11, v11, v7
        v_cmp_eq_u32 vcc, {'-1' if not E("NOC") else '0x12345'}, v11
        s_nop 1
        s_cmp_eq_u64 vcc, 0
        """)
    FPOLL, FCHK = int(E("FPOLL", "18")), int(E("FCHK", "25"))
    TR_ = [None]
    for st in range(NS):
        lds_next = NBR <= st+1 < NBR+NBL
        if lds_next: ldsb(st+1)
        tags = [("A", st)] + ([("B", st)] if st >= NBR+NBL else [])
        wait_for(tags)
        if NBR <= st < NBR+NBL: a(f"s_waitcnt lgkmcnt({2 if lds_next else 0})")
        for rb in range(2):
            for cb in range(2):
                c = acc(cb, rb); x = loc[("A", st)] + 4*rb; y = loc[("B", st)] + 4*cb
                cin = "0" if st == 0 else f"v[{c}:{c+15}]"
                a(f"v_mfma_f32_32x32x16_bf16 v[{c}:{c+15}], v[{y}:{y+3}], v[{x}:{x+3}], {cin}")
        free.append(loc[("A", st)])
        if (st < NBR and loc[("B", st)] < X_R) or st >= NBR+NBL: free.append(loc[("B", st)])
        if st == FBI: fbload()
        issue()
        if st == FPOLL:
            assert fb[0] and not pend
            TR_[0] = free.pop(0)
            for j in range(2):
                a(f"buffer_load_dwordx4 v[{X_R+4*j}:{X_R+4*j+3}], v13, s[48:51], 0 offen offset:{64*j}")
                q.append(("X", 0))
            atload(TR_[0])
        if st == FCHK:
            wait_for([("T", 0)])
            atchk(TR_[0])
            a("s_cselect_b32 s22, 0, 1")
    assert not pend
    TS(a, 10)
    a("s_nop 15")
    for cb in range(2):
        for rb in range(2):
            for i in range(4):
                c = acc(cb, rb) + 4*i
                dq = cb*8 + 2*i
                if dq == 0: vv = 14
                else:
                    vv = 11
                    a(f"v_xor_b32 v11, {dq*16}, v14")
                a(f"ds_write_b128 v{vv}, v[{c}:{c+3}] offset:{rb*8192}")
    a(f"""
    s_cmp_eq_u32 s22, 0
    s_cbranch_scc1 La_ok
    s_mov_b32 s9, 0
    Lp_a:
    """)
    atload(TR_[0])
    a("s_waitcnt vmcnt(0)")
    atchk(TR_[0])
    a(f"""
    s_cbranch_scc1 La_ok
    s_add_u32 s9, s9, 1
    s_cmp_ge_u32 s9, {POLL_LIMIT}
    s_cbranch_scc1 La_ok
    s_sleep {E("ASLP", "1")}
    s_branch Lp_a
    """)
    a("La_ok:")
    a("v_add_u32 v11, s20, v4")
    for j in range(2):
        a(f"ds_write_b128 v11, v[{TR_[0]+4*j}:{TR_[0]+4*j+3}] offset:{j*1024}")
    a("""
    v_xor_b32 v11, 16, v15
    v_xor_b32 v10, 128, v15
    v_xor_b32 v9, 144, v15
    s_waitcnt vmcnt(0) lgkmcnt(0)
    s_barrier
    """)
    AT_R = 80
    va = [15, 11, 10, 9]
    for j in range(2):
        for ww in range(4):
            for hh in range(2):
                r = 16 + j*32 + ww*8 + hh*4
                a(f"ds_read_b128 v[{r}:{r+3}], v{va[j*2+hh]} offset:{ww*16384}")
        for hh in range(2):
            a(f"ds_read_b64_tr_b16 v[{AT_R+4*j+2*hh}:{AT_R+4*j+2*hh+1}], v1 offset:{(32*j+4*hh)*128}")
    for j in range(2):
        a(f"s_waitcnt lgkmcnt({10*(1-j)})")
        b = 16 + j*32
        for e in range(8):
            a(f"v_add_f32 v{b+e}, v{b+e}, v{b+8+e}")
            a(f"v_add_f32 v{b+16+e}, v{b+16+e}, v{b+24+e}")
        for p in range(4):
            at = AT_R + 4*j + p; x0 = X_R + 4*j + p
            a(f"""
            v_lshlrev_b32 v{b+8+2*p}, 16, v{at}
            v_and_b32 v{b+9+2*p}, 0xffff0000, v{at}
            v_lshlrev_b32 v{b+24+2*p}, 16, v{x0}
            v_and_b32 v{b+25+2*p}, 0xffff0000, v{x0}
            """)
        for e in range(8):
            a(f"v_add_f32 v{b+e}, v{b+e}, v{b+16+e}")
            a(f"v_add_f32 v{b+8+e}, v{b+8+e}, v{b+24+e}")
        for e in range(8):
            a(f"v_cvt_pk_bf16_f32 v{b+e}, 0, v{b+e}")
            a(f"v_cvt_pk_bf16_f32 v{b+8+e}, 0, v{b+8+e}")
        for e in range(8):
            a(f"v_add_f32 v{b+e}, v{b+e}, v{b+8+e}")
        for p in range(4):
            a(f"v_cvt_pk_bf16_f32 v{b+16+p}, v{b+2*p}, v{b+2*p+1}")
        a(f"buffer_store_dwordx4 v[{b+16}:{b+19}], v13, s[52:55], 0 offen offset:{64*j}")
    if TSON: a("s_waitcnt vmcnt(0)")
    TS(a, 11)
    TSDUMP(a, 12, "g")
    a("s_endpgm")

SLOW = []
MAP0 = """
    s_lshr_b32 s12, s2, 3
    s_mul_i32 s13, s12, 37
    s_lshr_b32 s13, s13, 8          ; q/7
    s_mul_i32 s14, s13, 7
    s_sub_u32 s14, s12, s14         ; q%7
    s_and_b32 s15, s2, 3
    s_mov_b32 s97, s15              ; ct/7
    s_mul_i32 s15, s15, 7
    s_add_u32 s10, s15, s14         ; ct
    s_bfe_u32 s15, s2, 0x10002
    s_lshl_b32 s15, s15, 2
    s_add_u32 s11, s15, s13         ; rt
"""
def gemm1(a):
    TS(a, 0)
    if E("PRIO"): a(f"s_setprio {E('PRIO')}")
    srd(a, 20, 16, 17, XN, 64*XRS)
    a(f"""
    s_cmp_ge_u32 s3, 2
    s_cselect_b32 s24, s6, s4
    s_cselect_b32 s25, s7, s5
    s_and_b32 s25, s25, 0xffff
    s_mov_b32 s26, 0x1c0000
    s_mov_b32 s27, 0x20000
    {MAP0}
    s_lshl_b32 s12, s11, 3
    s_lshl_b32 s13, s3, 1
    s_add_u32 s12, s12, s13
    s_mul_i32 s12, s12, {XRS}
    v_lshlrev_b32 v1, 4, v0
    v_add_u32 v1, s12, v1
    v_lshrrev_b32 v5, 3, v0         ; row8
    v_and_b32 v6, 7, v0             ; c'
    v_and_b32 v7, 3, v5
    v_lshlrev_b32 v7, 1, v7
    v_xor_b32 v6, v6, v7
    v_mul_u32_u24 v2, 3584, v5
    s_lshl_b32 s13, s10, 7
    v_add_u32 v2, s13, v2
    v_lshl_add_u32 v2, v6, 4, v2
    s_and_b32 s14, s3, 1
    s_mul_i32 s40, s14, {16*3584}
    s_lshr_b32 s15, s3, 1
    s_lshl_b32 s42, s15, 12
    s_lshl_b32 s14, s14, 11
    s_add_u32 s42, s42, s14
    s_add_u32 s42, s42, 8192
    """)
    sx = [32,33,34,35,36,37,38,39,48,49,50,51,52,53,54,55]
    for rb in range(2):
        for h in range(8):
            a(f"s_mov_b32 s{sx[rb*8+h]}, {rb*XRS+h*4096}")
    ACC = 16
    def acc(mat, cb, rb): return ACC + ((cb*2+rb)*2+mat)*16
    NS, NSL = 16, 7
    KT = int(E("KT", "24"))
    assert KT % 2 == 0 and 22 <= KT <= 30
    FR = []
    for ks in range(KT): FR += [(ks,0,0),(ks,0,1),(ks,1,0),(ks,1,1)]
    for ks in range(KT, 32): FR += [(ks,0,0),(ks,0,1)]
    NB1 = len(FR)
    for ks in range(KT, 32): FR += [(ks,1,0),(ks,1,1)]
    NF = len(FR)
    last_use = {}
    first_use = {}
    for n, (ks, cb, mat) in enumerate(FR):
        last_use[ks] = n
        first_use.setdefault(ks, n)
    q = []
    def wait_for(tag):
        idx = max(i for i, t in enumerate(q) if t == tag)
        n = len(q) - 1 - idx
        assert n <= 63
        a(f"s_waitcnt vmcnt({n})")
    lq = []
    def wait_l(tag):
        idx = max(i for i, t in enumerate(lq) if t == tag)
        n = len(lq) - 1 - idx
        a(f"s_waitcnt lgkmcnt({min(n, 15)})")
    def xr(ks, rb): return 168 + (ks % XS)*8 + rb*4
    WFr, NR = 144, 6
    barr = -1
    def do_barrier(s):
        nonlocal barr
        wait_for(("w", s))
        a("s_barrier")
        barr = s
    def trread(n):
        ks, cb, mat = FR[n]
        if ks//2 > barr: do_barrier(ks//2)
        b = WFr + (n % NR)*4
        base = 8192 + ((ks//2) % NSL)*8192 + mat*4096 + (ks & 1)*2048
        a(f"ds_read_b64_tr_b16 v[{b}:{b+1}], v{8+cb} offset:{base}")
        a(f"ds_read_b64_tr_b16 v[{b+2}:{b+3}], v{8+cb} offset:{base+512}")
        lq.append(("f", n)); lq.append(("f", n))
    pend = []
    for s in range(NS):
        pend += [("w", s, 0), ("w", s, 1)] + [("x", 2*s+j, rb) for j in range(2) for rb in range(2)]
        if s == 3: pend += [("t", s, i) for i in range(4)]
    for j in range(11): pend += [("b", j, 0), ("b", j, 1)]
    def issue1(t):
        k, s, i = t
        if k == "w":
            a(f"s_add_u32 s41, s40, {(32*s+8*i)*3584}")
            a(f"s_add_u32 m0, s42, {(s%NSL)*8192+i*1024}")
            a("s_nop 0")
            a(f"buffer_load_dwordx4 v2, s[24:27], s41 offen lds")
        elif k == "x":
            r = xr(s, i)
            a(f"buffer_load_dwordx4 v[{r}:{r+3}], v1, s[20:23], s{sx[i*8+(s>>2)]} offen offset:{(s&3)*1024}")
        elif k == "t":
            a(f"s_mov_b32 m0, s63")
            a("s_nop 0")
            a(f"buffer_load_dwordx4 v4, s[80:83], s62 offen offset:{i*1024} lds")
        else:
            g2_b1(a, s, i)
        q.append((k, s))
    PRO = int(E("PRO", "3"))
    def allowed(t, n):
        k, s, i = t
        ahead = (first_use[2*s if k == "w" else s] - n) if k in "wx" else 0
        if k == "w": return (s < NSL or barr >= s-(NSL-2)) and ahead <= 8*PRO+8
        if k == "x": return (s < XS or last_use[s-XS] <= n) and ahead <= 8*PRO+8
        if k == "t": return True
        return last_use[21+s] <= n
    for _ in range(6*min(PRO, 3)): issue1(pend.pop(0))
    a("""
    v_bfe_u32 v7, v0, 2, 2          ; r
    v_lshrrev_b32 v6, 5, v0
    v_lshl_add_u32 v6, v6, 3, v7    ; row_l
    v_bfe_u32 v10, v0, 4, 1
    v_bfe_u32 v11, v0, 1, 1
    v_lshl_add_u32 v10, v10, 1, v11 ; gc0
    v_lshlrev_b32 v7, 1, v7
    v_xor_b32 v10, v10, v7          ; pc
    v_lshlrev_b32 v8, 7, v6
    v_lshl_add_u32 v8, v10, 4, v8
    v_and_b32 v11, 1, v0
    v_lshl_add_u32 v8, v11, 3, v8
    v_xor_b32 v9, 64, v8
    """)
    g2_early(a)
    srd(a, 80, 16, 17, TB, 16384)
    a(f"""
    s_lshl_b32 s62, s3, 12
    s_and_b32 s63, s3, 1
    s_lshl_b32 s63, s63, 12
    s_lshr_b32 s14, s3, 1
    s_lshl_b32 s14, s14, 16
    s_add_u32 s63, s63, s14
    s_lshl_b32 s12, s11, 3
    s_lshl_b32 s13, s3, 1
    s_add_u32 s12, s12, s13
    s_mul_i32 s12, s12, {RSH}
    s_lshl_b32 s13, s10, 2
    s_mul_i32 s14, s97, {SKEW}
    s_add_u32 s13, s13, s14
    s_lshl_b32 s13, s13, 10
    s_add_u32 s12, s12, s13
    s_add_u32 s13, s12, {RSH}
    s_mov_b32 s46, 0x{TLO*0x10001:x}
    s_mov_b32 s47, {f32(KB)}
    s_mov_b32 s98, 0x8fff8fff
    v_mov_b32 v10, {f32(KA)}
    s_lshl_b32 s60, s11, 2
    s_add_u32 s60, s60, s3
    s_lshl_b32 s60, s60, 2
    s_add_u32 s60, s60, s97
    s_lshl_b32 s60, s60, 8
    """)
    TS(a, 1)
    PD = int(E("PD", "4"))
    assert PD < NR
    PT = [[12, 13, 14, 15], [1, 2, 3, 6]]
    units = [(cb, rb, sp) for cb in range(2) for rb in range(2) for sp in range(2)]
    def EA(k):
        cb, rb, sp = units[k]
        g = acc(0, cb, rb) + 8*sp; P = PT[k % 2]; S = 90 + 2*(k % 2)
        o = []
        for i in range(4): o.append(f"v_cvt_pk_bf16_f32 v{P[i]}, v{g+2*i}, v{g+2*i+1}")
        for i in range(4): o.append(f"v_subrev_u32 v{P[i]}, s46, v{P[i]}")
        o.append(f"v_or3_b32 v11, v{P[0]}, v{P[1]}, v{P[2]}")
        o.append(f"v_or_b32 v11, v11, v{P[3]}")
        o.append(f"v_and_b32 v11, 0x70007000, v11")
        o.append(f"v_cmp_ne_u32_e64 s[{S}:{S+1}], 0, v11")
        for i in range(4):
            o.append(f"v_and_b32 v7, s98, v{P[i]}")
            for h in range(2):
                o.append(f"v_lshlrev_b32_sdwa v{g+2*i+h}, 1, v7 dst_sel:DWORD dst_unused:UNUSED_PAD src0_sel:DWORD src1_sel:WORD_{h}")
        for j in range(8):
            def f(j=j):
                a(f"ds_read_u16_d16_hi v{g+j}, v{g+j}")
                lq.append(("g", k))
            o.append(f)
        SLOW.append((k, g, P))
        return o
    def EB(k):
        cb, rb, sp = units[k]
        g = acc(0, cb, rb) + 8*sp; u = acc(1, cb, rb) + 8*sp; S = 90 + 2*(k % 2)
        o = []
        for j in range(8): o.append(f"v_cvt_pk_bf16_f32 v{u+j}, 0, v{u+j}")
        def f():
            wait_l(("g", k))
            a(f"s_cmp_lg_u64 s[{S}:{S+1}], 0")
            a(f"s_cbranch_scc1 Lslow_{k}")
            a(f"Lback_{k}:")
        o.append(f)
        for j in range(8): o.append(f"v_mul_f32_e32 v{u+j}, v{g+j}, v{u+j}")
        for i in range(4): o.append(f"v_cvt_pk_bf16_f32 v{g+i}, v{u+2*i}, v{u+2*i+1}")
        def s():
            a(f"buffer_store_dwordx4 v[{g}:{g+3}], v4, s[28:31], s{12+rb} offen offset:{(cb*2+sp)*1024} sc1")
            q.append(("h", cb))
        o.append(s)
        return o
    def stream(k0):
        return EA(k0) + EA(k0+1) + EB(k0) + EA(k0+2) + EB(k0+1) + EA(k0+3) + EB(k0+2) + EB(k0+3)
    def emit(o):
        if callable(o): o()
        else: a(o)
    ES = stream(0)
    per = -(-len(ES)//(2*(NF-NB1-int(E("EFL", "2")))))
    for n in range(PD): trread(n)
    for n in range(NF):
        ks, cb, mat = FR[n]
        if n == 0: TS(a, 2)
        if n == 64: TS(a, 3)
        if n == NB1:
            TS(a, 4)
            assert all(t[0] == "b" for t in pend)
        if n+PD < NF: trread(n+PD)
        if n == first_use[ks]: wait_for(("x", ks))
        wait_l(("f", n))
        b = WFr + (n % NR)*4
        for rb in range(2):
            c = acc(mat, cb, rb)
            cin = "0" if ks == 0 else f"v[{c}:{c+15}]"
            a(f"v_mfma_f32_32x32x16_bf16 v[{c}:{c+15}], v[{b}:{b+3}], v[{xr(ks,rb)}:{xr(ks,rb)+3}], {cin}")
            if n > NB1:
                for _ in range(per):
                    if ES: emit(ES.pop(0))
        for _ in range(2 if n >= 4*KT - 16 else 1):
            if pend and allowed(pend[0], n): issue1(pend.pop(0))
    while ES: emit(ES.pop(0))
    while pend: issue1(pend.pop(0))
    TS(a, 6)
    g2_late(a)
    a("s_barrier")
    BL = []
    def mkb(cb):
        def f():
            a(f"s_add_u32 s14, s19, {kk(11)*1024}")
            r = breg(11) + cb*4
            a(f"buffer_load_dwordx4 v[{r}:{r+3}], v{4+cb}, s[84:87], s14 offen")
            q.append(("b", 11))
        return f
    def mkl(j, cb):
        def f():
            st = NBR + j; c = j*2+cb
            a(f"s_add_u32 s14, s19, {kk(st)*1024}")
            a(f"s_add_u32 m0, s{61 if c < 8 else 8}, {(c%8)*1024}")
            a("s_nop 0")
            a(f"buffer_load_dwordx4 v{4+cb}, s[84:87], s14 offen lds")
            q.append(("bl", st))
        return f
    BL = [mkb(0), mkb(1)] + [mkl(j, cb) for j in range(NBL) for cb in range(2)]
    def flag(cb):
        wait_for(("h", cb))
        a(f"""
        v_mov_b32 v8, 0
        v_mov_b32 v9, 1
        s_mov_b64 exec, 1
        buffer_atomic_add v9, v8, s[32:35], s60 offen offset:{128*cb}
        s_mov_b64 exec, -1
        """)
        q.append(("fl", cb))
    ES = stream(4)
    FAP = int(len(ES)*float(E("FAP", "1.0")))
    BSP = float(E("BSP", "0"))
    nb = len(BL); done = 0
    for i, o in enumerate(ES):
        if i == FAP:
            flag(0); TS(a, 5)
        want = nb if BSP <= 0 else min(nb, int(nb*(i+1)/(BSP*len(ES)))+1)
        if BSP <= 1.0:
            while done < want:
                BL[done](); done += 1
        emit(o)
    TS(a, 7)
    if FAP >= len(ES):
        flag(0); TS(a, 5)
    while done < nb:
        BL[done](); done += 1
    flag(1)
    TS(a, 8)

def slowpaths(a):
    for (k, g, P) in SLOW:
        a(f"Lslow_{k}:")
        a("s_waitcnt lgkmcnt(0)")
        for i in range(4):
            a(f"""
            v_add_u32 v{P[i]}, s46, v{P[i]}
            v_lshlrev_b32 v7, 16, v{P[i]}
            v_and_b32 v{P[i]}, 0xffff0000, v{P[i]}
            """)
            for (G, S) in ((7, g+2*i), (P[i], g+2*i+1)):
                a(f"""
                v_mul_f32_e32 v{S}, v{G}, v{G}
                v_fma_f32 v{S}, v{S}, s47, v10
                v_mul_f32_e32 v{S}, v{S}, v{G}
                v_exp_f32_e32 v{S}, v{S}
                s_nop 0
                v_add_f32_e32 v{S}, 1.0, v{S}
                v_rcp_f32_e32 v{S}, v{S}
                s_nop 0
                v_mul_f32_e32 v{S}, v{S}, v{G}
                v_cvt_pk_bf16_f32 v{S}, 0, v{S}
                """)
        a(f"s_branch Lback_{k}")

def k1(a):
    header(a, "main_kernel")
    a(f"""
    s_cmp_ge_u32 s2, 512
    s_cbranch_scc1 L1_exit
    s_load_dwordx4 s[4:7], s[0:1], 64
    s_load_dwordx2 s[8:9], s[0:1], 48
    s_load_dwordx2 s[16:17], s[0:1], 104
    s_load_dwordx2 s[56:57], s[0:1], 0
    s_load_dwordx2 s[58:59], s[0:1], 88
    v_lshrrev_b32 v5, 6, v0
    v_mov_b32 v15, v0
    v_readfirstlane_b32 s3, v5      ; wave
    v_and_b32 v0, 63, v0
    s_mov_b32 s96, s2
    {"s_memrealtime s[98:99]" if TSALL else ""}
    s_waitcnt lgkmcnt(0)
    {"s_mov_b32 s99, s98" if TSALL else ""}
    s_cmp_lt_u32 s2, 256
    s_cbranch_scc1 {"L1_exit" if E("NOC") else "L1_conv"}
    {"s_endpgm" if E("NOG") else ""}
    s_sub_u32 s2, s2, 256
    """)
    srd(a, 28, 16, 17, HB, HSZ)
    a("""
    s_cmp_ge_u32 s2, 224
    s_cbranch_scc1 L1_h
    """)
    gemm1(a)
    gemm2(a)
    slowpaths(a)
    a("L1_h:")
    TS(a, 0)
    g2_early(a)
    g2_late(a)
    for _ in range(int(E("HSLP", "12"))): a("s_sleep 10")
    for st in range(NBR):
        g2_b1(a, st, 0); g2_b1(a, st, 1)
    g2_bpre_lds(a)
    a("s_branch L1_g2")
    a("L1_conv:")
    cpath(a)
    a("""
    L1_exit:
    s_endpgm
    """)

def build():
    launches = [f"; @launch kernel=prep_kernel grid=({NK0},1,1) block=(256,1,1) lds=16384",
                "; @launch kernel=main_kernel grid=(512,1,1) block=(256,1,1) lds=81920"]
    descs = [desc("prep_kernel", 72), desc("main_kernel", 256, acc=256)]
    body = A()
    k0(body)
    k1(body)
    txt = "\n".join(launches) + "\n"
    txt += '.amdgcn_target "amdgcn-amd-amdhsa--gfx950"\n.text\n'
    txt += body.text()
    txt += '.section .rodata,"a"\n' + "".join(descs)
    return txt

if __name__ == "__main__":
    out = sys.argv[1]
    open(out, "w").write(build())
    print("wrote", out)
```

```python
import sys, struct, math, os
OUT = "parallel_sum__ssm_conv_s4d__glu_gated_geglu__prompt.s"

class A:
    def __init__(self): self.l = []
    def __call__(self, s):
        for ln in s.strip("\n").split("\n"):
            self.l.append("    " + ln.strip() if not ln.strip().endswith(":") else ln.strip())
    def raw(self, s): self.l.append(s)
    def text(self): return "\n".join(self.l) + "\n"

def f32(x): return "0x%08x" % struct.unpack("<I", struct.pack("<f", x))[0]
LOG2E = 1.4426950408889634

XN, XNT, HB, AT, WF, FLG, TB = 0, 4<<20, 8<<20, 16<<20, 18<<20, 20<<20, 22<<20
SKEW = int(os.environ.get("SKEW", "1"))
WS_ = 29 if SKEW else 28
RSH = 4*WS_*1024 + (768 if SKEW else 0)
XRS = 32768 + (256 if SKEW else 0)
TLO = 0x3100
C0 = math.sqrt(2.0/math.pi)
KA = -2.0*LOG2E*C0
KB = KA*0.044715
SZ2M = 2<<20
HSZ = 64*RSH
WSZ = 16*RSH
POLL_LIMIT = 60000

def srd(a, s, lo, hi, off, size):
    if off:
        a(f"s_add_u32 s{s}, s{lo}, 0x{off:x}")
        a(f"s_addc_u32 s{s+1}, s{hi}, 0")
        a(f"s_and_b32 s{s+1}, s{s+1}, 0xffff")
    else:
        a(f"s_mov_b32 s{s}, s{lo}")
        a(f"s_and_b32 s{s+1}, s{hi}, 0xffff")
    a(f"s_mov_b32 s{s+2}, 0x{size:x}")
    a(f"s_mov_b32 s{s+3}, 0x20000")

def srd_dyn(a, s, lo, hi, off, sx, size):
    a(f"s_add_u32 s{s}, s{lo}, 0x{off:x}")
    a(f"s_addc_u32 s{s+1}, s{hi}, 0")
    a(f"s_add_u32 s{s}, s{s}, s{sx}")
    a(f"s_addc_u32 s{s+1}, s{s+1}, 0")
    a(f"s_and_b32 s{s+1}, s{s+1}, 0xffff")
    a(f"s_mov_b32 s{s+2}, 0x{size:x}")
    a(f"s_mov_b32 s{s+3}, 0x20000")

def header(a, name):
    a.raw(f".globl {name}")
    a.raw(".p2align 8")
    a.raw(f".type {name},@function")
    a.raw(f"{name}:")

def desc(name, vgpr, sgpr=100, acc=None):
    if acc is None: acc = (vgpr + 3)//4*4
    return f""".p2align 6
.amdhsa_kernel {name}
  .amdhsa_next_free_vgpr {vgpr}
  .amdhsa_next_free_sgpr {sgpr}
  .amdhsa_accum_offset {acc}
  .amdhsa_group_segment_fixed_size 0
  .amdhsa_kernarg_size 112
  .amdhsa_user_sgpr_count 2
  .amdhsa_user_sgpr_kernarg_segment_ptr 1
  .amdhsa_system_sgpr_workgroup_id_x 1
.end_amdhsa_kernel
"""

TSON = os.environ.get("TS", "") != ""
TSALL = os.environ.get("TS", "") == "all"
TSWG = 0 if TSALL else int(os.environ.get("TS", "0") or 0)
def TS(a, i):
    if not TSON: return
    a("s_memtime s[94:95]")
    a("s_waitcnt lgkmcnt(0)")
    a(f"s_mov_b32 s{64+i}, s94")
def TR(a, i):
    if not TSON: return
    a("s_memrealtime s[94:95]")
    a("s_waitcnt lgkmcnt(0)")
    a(f"s_mov_b32 s{64+i}, s94")
def TSDUMP(a, n, tag):
    if not TSON: return
    if TSALL:
        a(f"""
        s_cmp_lg_u32 s3, 0
        s_cbranch_scc1 Lts_{tag}
        s_memrealtime s[94:95]
        s_getreg_b32 s76, hwreg(HW_REG_HW_ID)
        s_getreg_b32 s77, hwreg(HW_REG_XCC_ID)
        s_lshl_b32 s92, s96, 7
        v_mov_b32 v1, s92
        s_waitcnt lgkmcnt(0)
        s_mov_b32 s78, s99
        s_mov_b32 s79, s94
        """)
        srd(a, 88, 16, 17, 24 << 20, 65536)
        for i in range(16):
            a(f"v_mov_b32 v2, s{64+i}")
            a(f"buffer_store_dword v2, v1, s[88:91], 0 offen offset:{4*i}")
        a(f"Lts_{tag}:")
        return
    a(f"""
    s_cmp_lg_u32 s96, {TSWG}
    s_cbranch_scc1 Lts_{tag}
    s_cmp_lg_u32 s3, 0
    s_cbranch_scc1 Lts_{tag}
    s_load_dwordx2 s[92:93], s[0:1], 96
    s_waitcnt lgkmcnt(0)
    """)
    srd(a, 88, 92, 93, 0, 256)
    a("v_mov_b32 v1, 0")
    for i in range(n):
        a(f"v_mov_b32 v2, s{64+i}")
        a(f"buffer_store_dword v2, v1, s[88:91], 0 offen offset:{4*i}")
    a(f"Lts_{tag}:")

PFN = int(os.environ.get("PFN", "0"))
HSW = int(os.environ.get("HSW", "1"))
NK0 = 245 + (128 if PFN else 0) - (112 if HSW else 0)
def k0(a):
    n0 = len(a.l)
    k0_(a)
    PSC = os.environ.get("PSC", "")
    if PSC:
        for i in range(n0, len(a.l)):
            if "buffer_store" in a.l[i] and "s[88:91]" not in a.l[i]:
                a.l[i] = a.l[i].split(";")[0].rstrip() + " " + PSC
def k0_(a):
    header(a, "prep_kernel")
    a(f"""
    s_cmp_ge_u32 s2, {NK0}
    s_cbranch_scc1 L0_exit
    s_load_dwordx2 s[4:5], s[0:1], 0
    s_load_dwordx2 s[18:19], s[0:1], 80
    s_load_dwordx2 s[16:17], s[0:1], 104
    {"s_memrealtime s[98:99]" if TSALL else ""}
    s_waitcnt lgkmcnt(0)
    s_cmp_ge_u32 s2, 128
    s_cbranch_scc1 L0_swz
    """)
    if os.environ.get("LNMAP"):
        a("""
        s_and_b32 s3, s2, 7
        s_lshl_b32 s3, s3, 4
        s_lshr_b32 s2, s2, 3
        s_add_u32 s2, s2, s3
        """)
    srd(a, 20, 4, 5, 0, SZ2M)
    srd(a, 24, 16, 17, XN, 64*XRS)
    srd(a, 28, 16, 17, XNT, SZ2M)
    a("""
    s_lshl_b32 s3, s2, 4            ; r0
    v_lshrrev_b32 v1, 4, v0
    v_and_b32 v2, 15, v0            ; j
    v_add_u32 v3, s3, v1            ; row
    v_lshlrev_b32 v3, 10, v3
    v_lshl_add_u32 v3, v2, 4, v3    ; voffset
    """)
    for c in range(4):
        a(f"buffer_load_dwordx4 v[{8+4*c}:{11+4*c}], v3, s[20:23], 0 offen offset:{c*256}")
    srd(a, 40, 16, 17, AT, SZ2M)
    a("""
    v_mov_b32 v32, -1
    v_mov_b32 v33, -1
    v_mov_b32 v34, -1
    v_mov_b32 v35, -1
    v_lshlrev_b32 v36, 4, v0
    s_lshl_b32 s32, s2, 14
    """)
    for c in range(4):
        a(f"s_add_u32 s33, s32, {c*4096}")
        a(f"buffer_store_dwordx4 v[32:35], v36, s[40:43], s33 offen {os.environ.get('PSCA', '')}")
    a("s_waitcnt vmcnt(4)")
    for i in range(16):
        a(f"v_lshlrev_b32 v{32+2*i}, 16, v{8+i}")
        a(f"v_and_b32 v{33+2*i}, 0xffff0000, v{8+i}")
    a("v_add_f32 v4, v32, v33")
    a("v_add_f32 v5, v34, v35")
    for i in range(36, 64, 2):
        a(f"v_add_f32 v4, v4, v{i}")
        a(f"v_add_f32 v5, v5, v{i+1}")
    a("v_add_f32 v4, v4, v5")
    def rowsum(r):
        for ror in (8, 4, 2, 1):
            a("s_nop 1")
            a(f"v_add_f32_dpp v{r}, v{r}, v{r} row_ror:{ror} row_mask:0xf bank_mask:0xf")
    rowsum(4)
    a(f"v_mul_f32 v4, {f32(1.0/512)}, v4")
    a("v_sub_f32 v6, v32, v4")
    a("v_mul_f32 v5, v6, v6")
    a("v_sub_f32 v6, v33, v4")
    a("v_mul_f32 v7, v6, v6")
    for i in range(34, 64, 2):
        a(f"v_sub_f32 v6, v{i}, v4")
        a(f"v_fma_f32 v5, v6, v6, v5")
        a(f"v_sub_f32 v64, v{i+1}, v4")
        a(f"v_fma_f32 v7, v64, v64, v7")
    a("v_add_f32 v5, v5, v7")
    rowsum(5)
    a(f"""
    v_mul_f32 v5, {f32(1.0/512)}, v5
    v_cvt_pk_bf16_f32 v4, v4, v5
    v_and_b32 v5, 0xffff0000, v4
    v_lshlrev_b32 v4, 16, v4
    v_add_f32 v5, {f32(1e-5)}, v5
    v_cvt_pk_bf16_f32 v5, v5, v5
    v_lshlrev_b32 v5, 16, v5
    v_sqrt_f32 v5, v5
    s_nop 0
    v_cvt_pk_bf16_f32 v5, v5, v5
    v_lshlrev_b32 v5, 16, v5         ; s (bf16)
    v_rcp_f32 v6, v5
    s_nop 0
    """)
    for i in range(16):
        x0, x1 = 32+2*i, 33+2*i
        a(f"""
        v_sub_f32 v{x0}, v{x0}, v4
        v_sub_f32 v{x1}, v{x1}, v4
        v_cvt_pk_bf16_f32 v7, v{x0}, v{x1}
        v_lshlrev_b32 v{x0}, 16, v7
        v_and_b32 v{x1}, 0xffff0000, v7
        v_mul_f32 v64, v{x0}, v6
        v_mul_f32 v65, v{x1}, v6
        v_fma_f32 v66, -v64, v5, v{x0}
        v_fma_f32 v67, -v65, v5, v{x1}
        v_fma_f32 v64, v66, v6, v64
        v_fma_f32 v65, v67, v6, v65
        v_cvt_pk_bf16_f32 v{8+i}, v64, v65
        """)
    a(f"""
    v_lshlrev_b32 v7, 10, v1
    v_lshl_add_u32 v7, v2, 4, v7
    v_lshrrev_b32 v64, 1, v2
    v_lshlrev_b32 v64, 10, v64
    v_and_b32 v65, 1, v2
    v_lshl_add_u32 v64, v65, 9, v64
    v_lshl_add_u32 v64, v1, 4, v64
    s_lshr_b32 s34, s2, 1
    s_mul_i32 s34, s34, {XRS}
    s_and_b32 s35, s2, 1
    s_lshl_b32 s35, s35, 8
    s_add_u32 s34, s34, s35
    s_add_u32 s35, s34, 0x2000
    s_add_u32 s36, s34, 0x4000
    s_add_u32 s37, s34, 0x6000
    """)
    for c in range(4):
        a(f"buffer_store_dwordx4 v[{8+4*c}:{11+4*c}], v64, s[24:27], s{34+c} offen {os.environ.get('PSCX', '')}")
        a(f"ds_write_b128 v7, v[{8+4*c}:{11+4*c}] offset:{c*256}")
    a("""
    s_waitcnt lgkmcnt(0)
    s_barrier
    v_lshlrev_b32 v7, 2, v0
    """)
    for r in range(16):
        a(f"ds_read_b32 v{32+r}, v7 offset:{r*1024}")
    a("""
    s_mov_b32 s32, 0x05040100
    s_mov_b32 s33, 0x07060302
    v_lshlrev_b32 v3, 13, v0        ; d=2*tid -> d*4096
    s_lshl_b32 s3, s3, 1            ; r0*2 bytes
    v_add_u32 v3, s3, v3
    s_waitcnt lgkmcnt(0)
    """)
    for q in range(8):
        a(f"v_perm_b32 v{48+q}, v{33+2*q}, v{32+2*q}, s32")
        a(f"v_perm_b32 v{56+q}, v{33+2*q}, v{32+2*q}, s33")
    PT_ = os.environ.get('PSCT', '')
    a(f"""
    buffer_store_dwordx4 v[48:51], v3, s[28:31], 0 offen {PT_}
    buffer_store_dwordx4 v[52:55], v3, s[28:31], 0 offen offset:16 {PT_}
    v_add_u32 v3, 0x1000, v3
    buffer_store_dwordx4 v[56:59], v3, s[28:31], 0 offen {PT_}
    buffer_store_dwordx4 v[60:63], v3, s[28:31], 0 offen offset:16 {PT_}
    s_branch L0_fin
    """)
    a(f"""
    L0_swz:
    {"s_add_u32 s2, s2, 112" if HSW else ""}
    s_cmp_ge_u32 s2, 240
    s_cbranch_scc1 L0_zero
    """)
    srd(a, 24, 16, 17, WF, WSZ)
    srd(a, 20, 18, 19, 0, 1792*1024)
    a("""
    s_sub_u32 s3, s2, 128
    s_lshl_b32 s32, s3, 14
    v_lshlrev_b32 v1, 2, v0
    s_add_u32 s33, s32, 0x1000
    s_add_u32 s34, s32, 0x2000
    s_add_u32 s35, s32, 0x3000
    """)
    for e in range(16):
        a(f"buffer_load_dword v{8+e}, v1, s[20:23], s{32+e//4} offen offset:{(e%4)*1024}")
    a(f"""
    v_lshrrev_b32 v2, 4, v0
    v_mul_u32_u24 v2, {RSH}, v2
    v_and_b32 v3, 15, v0
    v_lshl_add_u32 v2, v3, 5, v2
    s_mul_i32 s36, s3, {147*SKEW}
    s_lshr_b32 s36, s36, 12
    s_add_u32 s36, s36, s3
    s_lshl_b32 s36, s36, 10
    s_mov_b32 s37, 0x05040100
    s_mov_b32 s38, 0x07060302
    """)
    for h in range(2):
        a(f"s_waitcnt vmcnt({4*(1-h)})")
        Rr = [4*h, 4*h+1, 4*h+2, 4*h+3, 8+4*h, 9+4*h, 10+4*h, 11+4*h]
        for p in range(4):
            a(f"v_perm_b32 v{32+8*h+p}, v{8+Rr[2*p+1]}, v{8+Rr[2*p]}, s37")
            a(f"v_perm_b32 v{36+8*h+p}, v{8+Rr[2*p+1]}, v{8+Rr[2*p]}, s38")
    for h in range(2):
        a(f"buffer_store_dwordx4 v[{32+8*h}:{35+8*h}], v2, s[24:27], s36 offen offset:{512*h} {os.environ.get('PSCW', '')}")
        a(f"buffer_store_dwordx4 v[{36+8*h}:{39+8*h}], v2, s[24:27], s36 offen offset:{512*h+16} {os.environ.get('PSCW', '')}")
    a("s_branch L0_fin")
    a("L0_zero:")
    a("""
    s_cmp_ge_u32 s2, 241
    s_cbranch_scc1 L0_tab
    """)
    srd(a, 24, 16, 17, FLG, 98304)
    a("""
    v_lshlrev_b32 v1, 4, v0
    v_mov_b32 v4, 0
    v_mov_b32 v5, 0
    v_mov_b32 v6, 0
    v_mov_b32 v7, 0
    """)
    for i in range(24):
        a(f"s_mov_b32 s32, {i*4096}")
        a("buffer_store_dwordx4 v[4:7], v1, s[24:27], s32 offen")
    a("""
    s_branch L0_fin
    L0_tab:
    """)
    if PFN:
        a("""
        s_cmp_ge_u32 s2, 245
        s_cbranch_scc1 L0_pf
        """)
    srd(a, 24, 16, 17, TB, 16384)
    a(f"""
    s_sub_u32 s3, s2, 241
    s_lshl_b32 s32, s3, 11
    v_lshl_add_u32 v1, v0, 3, s32   ; idx
    v_lshrrev_b32 v2, 12, v1        ; sign
    v_and_b32 v3, 4095, v1
    v_lshl_add_u32 v3, v2, 15, v3
    v_add_u32 v3, 0x{TLO:x}, v3
    v_lshlrev_b32 v3, 16, v3
    v_lshlrev_b32 v1, 1, v1
    s_mov_b32 s47, {f32(KB)}
    v_mov_b32 v10, {f32(KA)}
    """)
    for e in range(8): a(f"v_add_u32 v{16+e}, 0x{e<<16:x}, v3")
    gelu8(a, 16, 24)
    for i in range(4): a(f"v_cvt_pk_bf16_f32 v{32+i}, v{24+2*i}, v{25+2*i}")
    a("""
    buffer_store_dwordx4 v[32:35], v1, s[24:27], 0 offen
    L0_fin:
    """)
    if TSALL:
        a("""
        s_waitcnt vmcnt(0)
        s_memrealtime s[96:97]
        s_lshl_b32 s92, s2, 3
        v_mov_b32 v1, s92
        s_waitcnt lgkmcnt(0)
        v_mov_b32 v2, s98
        v_mov_b32 v3, s96
        """)
        srd(a, 88, 16, 17, 25 << 20, 65536)
        a("buffer_store_dwordx2 v[2:3], v1, s[88:91], 0 offen")
    a("""
    L0_exit:
    s_endpgm
    """)
    if PFN:
        a("""
        L0_pf:
        s_load_dwordx4 s[40:43], s[0:1], 64
        s_load_dwordx8 s[48:55], s[0:1], 8
        s_load_dwordx2 s[56:57], s[0:1], 88
        s_sub_u32 s3, s2, 245
        v_lshlrev_b32 v1, 4, v0
        s_waitcnt lgkmcnt(0)
        s_cmp_ge_u32 s3, 112
        s_cbranch_scc1 L0_pf2
        """)
        srd(a, 20, 40, 41, 0, 1792*1024)
        srd(a, 24, 42, 43, 0, 1792*1024)
        a("s_lshl_b32 s32, s3, 14")
        for c in range(4):
            a(f"s_add_u32 s33, s32, {c*4096}")
            a(f"buffer_load_dwordx4 v[{8+8*c}:{11+8*c}], v1, s[20:23], s33 offen")
            a(f"buffer_load_dwordx4 v[{12+8*c}:{15+8*c}], v1, s[24:27], s33 offen")
        if os.environ.get("PFD"):
            srd(a, 28, 18, 19, 0, 1792*1024)
            a("""
            s_add_u32 s34, s3, 5
            s_and_b32 s34, s34, 7           ; xcd
            s_lshr_b32 s35, s3, 4           ; j>>1
            s_lshl_b32 s35, s35, 3
            s_add_u32 s34, s34, s35         ; hw
            s_cmp_ge_u32 s34, 28
            s_cbranch_scc1 L0_pfd
            s_lshl_b32 s34, s34, 16
            s_bfe_u32 s35, s3, 0x10003
            s_lshl_b32 s35, s35, 15
            s_add_u32 s34, s34, s35
            """)
            for c in range(8):
                a(f"s_add_u32 s33, s34, {c*4096}")
                a(f"buffer_load_dwordx4 v[{40+4*c}:{43+4*c}], v1, s[28:31], s33 offen")
            a("L0_pfd:")
        if PFN >= 2:
            srd(a, 28, 16, 17, HB, 8<<20)
            srd(a, 36, 56, 57, 0, SZ2M)
            a("""
            v_lshlrev_b32 v2, 15, v0
            v_lshlrev_b32 v3, 13, v0
            buffer_load_dword v40, v2, s[28:31], 0 offen
            buffer_load_dword v41, v3, s[36:39], 0 offen
            """)
        a("""
        s_waitcnt vmcnt(0)
        s_branch L0_fin
        L0_pf2:
        s_sub_u32 s3, s3, 112
        s_lshl_b32 s60, s3, 13
        """)
        for q in range(4):
            srd(a, 20+4*q, 48+2*q, 49+2*q, 0, 131072)
        for q in range(4):
            for c in range(2):
                a(f"s_add_u32 s61, s60, {c*4096}")
                a(f"buffer_load_dwordx4 v[{8+8*q+4*c}:{11+8*q+4*c}], v1, s[{20+4*q}:{23+4*q}], s61 offen")
        a("""
        s_waitcnt vmcnt(0)
        s_branch L0_fin
        """)

def gelu8(a, G, S):
    for j in range(8): a(f"v_mul_f32_e32 v{S+j}, v{G+j}, v{G+j}")
    for j in range(8): a(f"v_fma_f32 v{S+j}, v{S+j}, s47, v10")
    for j in range(8): a(f"v_mul_f32_e32 v{S+j}, v{S+j}, v{G+j}")
    for j in range(8): a(f"v_exp_f32_e32 v{S+j}, v{S+j}")
    a("s_nop 0")
    for j in range(8): a(f"v_add_f32_e32 v{S+j}, 1.0, v{S+j}")
    for j in range(8): a(f"v_rcp_f32_e32 v{S+j}, v{S+j}")
    a("s_nop 0")
    for j in range(8): a(f"v_mul_f32_e32 v{S+j}, v{S+j}, v{G+j}")

def cpath(a):
    RS = 528
    WB = 16*RS
    TRS = 208
    KH, KL, UB = 0, 7680, 15360
    CB = 32768
    TS(a, 0)
    TR(a, 7)
    if os.environ.get("CPRIO"): a(f"s_setprio {os.environ['CPRIO']}")
    a("""
    s_load_dwordx8 s[72:79], s[0:1], 8
    s_load_dwordx2 s[80:81], s[0:1], 40
    s_lshl_b32 s10, s2, 1           ; channel c0
    s_lshl_b32 s11, s10, 12
    """)
    srd_dyn(a, 20, 16, 17, XNT, 11, 8192)
    srd_dyn(a, 32, 16, 17, AT, 11, 8192)
    srd(a, 36, 8, 9, 0, 1024)
    a("s_waitcnt lgkmcnt(0)")
    srd(a, 24, 72, 73, 0, 131072)
    srd(a, 28, 74, 75, 0, 131072)
    srd(a, 48, 76, 77, 0, 131072)
    srd(a, 52, 78, 79, 0, 131072)
    srd(a, 56, 80, 81, 0, 1024)
    a(f"""
    s_lshl_b32 s12, s2, 9           ; c0*256 bytes
    v_lshl_add_u32 v2, v15, 1, s12
    s_lshl_b32 s12, s2, 2
    v_lshrrev_b32 v3, 7, v15
    v_lshl_add_u32 v3, v3, 1, s12
    buffer_load_ushort v16, v2, s[24:27], 0 offen
    buffer_load_ushort v17, v2, s[28:31], 0 offen
    buffer_load_ushort v18, v2, s[48:51], 0 offen
    buffer_load_ushort v19, v2, s[52:55], 0 offen
    buffer_load_ushort v20, v3, s[56:59], 0 offen
    s_lshr_b32 s14, s3, 1
    s_lshl_b32 s14, s14, 15
    s_and_b32 s15, s3, 1
    s_mul_i32 s15, s15, {WB}
    s_add_u32 s14, s14, s15
    s_add_u32 s14, s14, {UB}
    v_lshl_add_u32 v2, v0, 3, s14
    v_and_b32 v4, 15, v0            ; r / j
    v_lshrrev_b32 v5, 4, v0         ; q
    v_mul_u32_u24 v3, {RS}, v4
    v_lshl_add_u32 v3, v5, 4, v3
    v_add_u32 v3, s14, v3
    v_mul_u32_u24 v60, {4*TRS}, v5
    v_lshl_add_u32 v60, v4, 2, v60
    v_add_u32 v60, s14, v60
    v_mov_b32 v6, 0
    v_cmp_le_u32 vcc, 32, v15
    s_nop 1
    v_addc_co_u32 v6, vcc, 0, v6, vcc
    v_cmp_le_u32 vcc, 64, v15
    s_nop 1
    v_addc_co_u32 v6, vcc, 0, v6, vcc
    v_cmp_le_u32 vcc, 128, v15
    s_nop 1
    v_addc_co_u32 v6, vcc, 0, v6, vcc     ; s
    v_lshlrev_b32 v7, v6, 1
    v_lshrrev_b32 v7, 1, v7
    v_add_u32 v7, -1, v7                  ; half-1
    v_lshlrev_b32 v8, 3, v15              ; l0
    v_lshlrev_b32 v9, 3, v6               ; 8s
    v_lshrrev_b32 v12, v6, 16             ; 16>>s
    v_cmp_eq_u32 vcc, 0, v6
    """)
    for e in range(8):
        a(f"""
        v_add_u32 v10, {e}, v8
        v_lshrrev_b32 v11, v6, v10
        v_and_b32 v11, 1, v11
        v_add3_u32 v11, v10, v7, v11
        v_lshrrev_b32 v11, v6, v11
        v_cndmask_b32 v11, v11, v10, vcc      ; m
        v_lshlrev_b32 v11, v6, v11            ; p
        v_lshrrev_b32 v10, 8, v11
        v_mad_u32_u24 v10, v10, v12, v9       ; 8s + (p>>8)*(16>>s)
        v_and_b32 v13, 15, v11
        v_lshrrev_b32 v13, v6, v13
        v_add_u32 v10, v10, v13               ; col
        v_bfe_u32 v11, v11, 4, 4              ; row
        v_mul_u32_u24 v11, {TRS}, v11
        v_lshl_add_u32 v{52+e}, v10, 2, v11
        """)
    a("s_waitcnt vmcnt(0)")
    TS(a, 1)
    a(f"""
    v_lshlrev_b32 v16, 16, v16
    v_lshlrev_b32 v17, 16, v17
    v_lshlrev_b32 v18, 16, v18
    v_lshlrev_b32 v19, 16, v19
    v_lshlrev_b32 v20, 16, v20
    v_mul_f32 v16, {f32(LOG2E)}, v16
    v_mul_f32 v20, {f32(LOG2E)}, v20
    v_exp_f32 v16, v16
    v_exp_f32 v20, v20
    s_nop 0
    v_cvt_pk_bf16_f32 v16, v16, v20
    v_and_b32 v20, 0xffff0000, v16    ; dt
    v_lshlrev_b32 v16, 16, v16
    v_mul_f32 v16, v16, v20
    v_mul_f32 v17, v17, v20
    v_mul_f32 v18, v18, v20
    v_mul_f32 v19, v19, v20
    v_mul_f32 v16, {f32(-LOG2E)}, v16
    v_mul_f32 v17, {f32(1.0/(2*math.pi))}, v17
    v_add_f32 v18, v18, v18
    v_mul_f32 v19, -2.0, v19
    """)
    regs = {"C": 18}
    nxt = [184]
    def R(name):
        if name not in regs:
            regs[name] = nxt[0]; nxt[0] += 2
            assert nxt[0] <= 250
        return regs[name]
    def pr(r): return f"v[{r}:{r+1}]"
    anch = [("W16", 16, 1), ("W64", 64, 1), ("W128", 128, 1), ("Z1", 1, 0), ("Z4", 4, 0), ("Z8", 8, 0), ("Z256", 256, 0), ("Z512", 512, 0), ("Z1024", 1024, 0)]
    for k, (nm, p, cj) in enumerate(anch):
        d = R(nm); t = 20 + 2*k
        a(f"v_mul_f32 v{t}, {f32(float(p))}, v16")
        a(f"v_mul_f32 v{t+1}, {f32(float(p))}, v17")
        a(f"v_exp_f32 v{t}, v{t}")
        a(f"v_cos_f32 v{d}, v{t+1}")
        a(f"v_sin_f32 v{d+1}, {'-' if cj else ''}v{t+1}")
    a("s_nop 0")
    for k, (nm, p, cj) in enumerate(anch):
        d = R(nm); t = 20 + 2*k
        a(f"v_mul_f32_e32 v{d}, v{d}, v{t}")
        a(f"v_mul_f32_e32 v{d+1}, v{d+1}, v{t}")
    tcnt = [0]
    def cmul(d, x, y):
        d, x, y = R(d), R(x), R(y)
        assert d != x and d != y
        a(f"v_mul_f32_e32 v{d}, v{x+1}, v{y+1}")
        a(f"v_mul_f32_e32 v{d+1}, v{x}, v{y+1}")
        a(f"v_fma_f32 v{d}, v{x}, v{y}, -v{d}")
        a(f"v_fmac_f32_e32 v{d+1}, v{x+1}, v{y}")
    scnt = [0]
    nds = [0]
    def put(nm, row):
        v = R(nm)
        h = 44 + 2*(scnt[0] % 2); u = 48 + 2*(scnt[0] % 2); scnt[0] += 1
        a(f"""
        v_cvt_pk_bf16_f32 v{h}, v{v}, v{v+1}
        v_lshlrev_b32 v{u}, 16, v{h}
        v_and_b32 v{u+1}, 0xffff0000, v{h}
        v_sub_f32_e32 v{u}, v{v}, v{u}
        v_sub_f32_e32 v{u+1}, v{v+1}, v{u+1}
        v_cvt_pk_bf16_f32 v{h+1}, v{u}, v{u+1}
        ds_write_b64 v2, {pr(h)} offset:{row*RS}
        """)
        nds[0] += 1
    A1, A2, BO, ACC = 64, 96, 128, 160
    cmul("w2", "W16", "W16"); cmul("w3", "w2", "W16"); cmul("W192", "W128", "W64")
    regs["w1"] = regs["W16"]
    for aa in range(4):
        if aa == 0: regs["CW"] = regs["C"]
        else:
            regs["CW"] = R("CWt"); cmul("CWt", "C", f"W{64*aa}")
        put("CW", 4*aa)
        for b in range(1, 4):
            nm = f"T{b%2}"
            cmul(nm, "CW", f"w{b}"); put(nm, 4*aa+b)
    for ks in range(8):
        a(f"ds_read_b128 v[{A1+4*ks}:{A1+4*ks+3}], v3 offset:{ks*64}")
        a(f"ds_read2_b32 v[{A2+4*ks}:{A2+4*ks+1}], v3 offset0:{ks*16+1} offset1:{ks*16}")
        a(f"ds_read2_b32 v[{A2+4*ks+2}:{A2+4*ks+3}], v3 offset0:{ks*16+3} offset1:{ks*16+2}")
        nds[0] += 3
    def breads():
        for ks in range(8):
            a(f"ds_read_b128 v[{BO+4*ks}:{BO+4*ks+3}], v3 offset:{ks*64}")
            nds[0] += 1
        return nds[0]
    def mfmas(tau, mark):
        n = nds[0] - mark
        assert n <= 15
        a(f"s_waitcnt lgkmcnt({n})")
        for ks in range(8):
            for h, A_ in enumerate((A1, A2)):
                c = ACC + tau*8 + h*4
                cin = "0" if ks == 0 else f"v[{c}:{c+3}]"
                a(f"v_mfma_f32_16x16x32_bf16 v[{c}:{c+3}], v[{A_+4*ks}:{A_+4*ks+3}], v[{BO+4*ks}:{BO+4*ks+3}], {cin}")
    a(f"v_mov_b32 v{R('Z0')}, 1.0")
    a(f"v_mov_b32 v{R('Z0')+1}, 0")
    cmul("Z2", "Z1", "Z1"); cmul("Z3", "Z2", "Z1"); cmul("Z12", "Z8", "Z4")
    for aa in range(4):
        put(f"Z{4*aa}", 4*aa)
        for b in range(1, 4):
            j = 4*aa+b
            if aa > 0:
                nm = f"Z{j}" if j % 2 == 0 else f"T{(j//2)%2}"
                cmul(nm, f"Z{4*aa}", f"Z{b}")
            else: nm = f"Z{j}"
            put(nm, j)
    mark = breads()
    cmul("Z768", "Z512", "Z256")
    vals = [("Z256", 2*j) for j in range(8)] + [("Z512", 4*r) for r in range(4)] + [("Z768", 4*r) for r in range(4)]
    for j, (bs, e) in enumerate(vals):
        if e == 0: nm = bs
        else:
            nm = f"T{j%2}"; cmul(nm, bs, f"Z{e}")
        put(nm, j)
        if j == 3: mfmas(0, mark)
    mark = breads()
    cmul("Z1280", "Z1024", "Z256"); cmul("Z1536", "Z1024", "Z512"); cmul("Z1792", "Z1024", "Z768"); cmul("Z2048", "Z1024", "Z1024")
    vals = [(f"Z{1024+256*c}", 8*e) for c in range(4) for e in range(2)] + [("Z2048", 0)]
    for j, (bs, e) in enumerate(vals):
        if e == 0: nm = bs
        else:
            nm = f"T{j%2}"; cmul(nm, bs, f"Z{e}")
        put(nm, j)
        if j == 3: mfmas(1, mark)
    mark = breads()
    LR = [dict(U=184, Um=188, D=190, Ue=192), dict(U=200, Um=204, D=206, Ue=208)]
    a(f"""
    v_lshlrev_b32 v1, 4, v15
    v_add_u32 v4, -8, v1
    s_lshl_b32 s12, s10, 1
    v_mov_b32 v8, s12
    s_mov_b32 s43, 0
    s_mov_b32 s44, 4096
    v_and_b32 v5, 31, v0
    v_lshrrev_b32 v6, 5, v0
    s_lshr_b32 s13, s3, 1
    s_lshl_b32 s13, s13, 11
    s_and_b32 s14, s3, 1
    s_lshl_b32 s14, s14, 5
    s_add_u32 s13, s13, s14
    v_lshlrev_b32 v13, 6, v5
    v_lshl_add_u32 v13, v6, 4, v13
    v_add_u32 v13, s13, v13
    """)
    for c in range(2):
        R_ = LR[c]
        a(f"""
        buffer_load_dwordx4 v[{R_['U']}:{R_['U']+3}], v1, s[20:23], s{43+c} offen
        buffer_load_dwordx2 v[{R_['Um']}:{R_['Um']+1}], v4, s[20:23], s{43+c} offen
        """)
    for c in range(2):
        R_ = LR[c]
        a(f"""
        buffer_load_ushort v{R_['D']}, v8, s[36:39], 0 offen offset:{2*c}
        buffer_load_dwordx4 v[{R_['Ue']}:{R_['Ue']+3}], v13, s[20:23], s{43+c} offen
        """)
    mfmas(2, mark)
    TS(a, 2)
    if os.environ.get("CPRIOI"): a(f"s_setprio {os.environ['CPRIOI']}")
    a(f"""
    v_mov_b32 v40, 0
    v_mov_b32 v41, 0
    v_mov_b32 v42, 0
    v_mov_b32 v43, 0
    v_cmp_gt_u32 vcc, 160, v15
    s_and_saveexec_b64 s[40:41], vcc
    ds_write_b128 v1, v[40:43] offset:{KH}
    ds_write_b128 v1, v[40:43] offset:{KL}
    ds_write_b128 v1, v[40:43] offset:{CB+KH}
    ds_write_b128 v1, v[40:43] offset:{CB+KL}
    s_mov_b64 exec, s[40:41]
    s_nop 3
    """)
    for tau in range(3):
        for r in range(4):
            c = ACC + tau*8 + r
            a(f"v_add_f32 v{c}, v{c}, v{c+4}")
            a(f"ds_write_b32 v60, v{c} offset:{r*TRS+tau*64}")
    a(f"""
    v_lshrrev_b32 v7, 2, v15
    v_mul_u32_u24 v7, 80, v7
    v_and_b32 v12, 3, v15
    v_lshl_add_u32 v7, v12, 4, v7
    v_lshrrev_b32 v9, 2, v15
    v_mul_u32_u24 v9, 4160, v9
    v_lshl_add_u32 v9, v12, 4, v9
    v_sub_u32 v12, 255, v15
    v_lshlrev_b32 v12, 4, v12
    s_mov_b32 s42, 0xffff
    ; A base
    v_sub_u32 v3, 3, v5
    v_and_b32 v3, 3, v3             ; r
    v_mul_u32_u24 v1, 4160, v3
    v_add_u32 v3, v3, v5            ; b+r
    v_lshlrev_b32 v3, 1, v3
    v_sub_u32 v1, v1, v3
    v_lshl_add_u32 v1, v6, 4, v1
    s_lshl_b32 s14, s3, 6
    s_sub_u32 s15, {UB+4094-3840}, s14
    v_add_u32 v1, s15, v1
    ; B base
    v_mul_u32_u24 v2, 80, v5
    v_lshl_add_u32 v2, v6, 4, v2
    s_sub_u32 s14, 3, s3
    s_mul_i32 s14, s14, 80
    v_add_u32 v2, s14, v2
    s_waitcnt lgkmcnt(0)
    s_barrier
    """)
    for c in range(2):
        for e in range(8):
            a(f"ds_read2st64_b32 v[{64+c*16+2*e}:{65+c*16+2*e}], v{52+e} offset0:{128*c+60} offset1:{128*c+93}")
    for c in range(2):
        a(f"s_waitcnt lgkmcnt({8*(1-c)})")
        for e in range(8):
            a(f"v_add_f32 v{64+c*16+2*e}, v{64+c*16+2*e}, v{65+c*16+2*e}")
        if c == 1:
            a("s_barrier")
        for i in range(4):
            k0_, k1_ = 64+c*16+4*i, 66+c*16+4*i
            a(f"""
            v_cvt_pk_bf16_f32 v{32+8*c+i}, v{k0_}, v{k1_}
            v_lshlrev_b32 v20, 16, v{32+8*c+i}
            v_and_b32 v21, 0xffff0000, v{32+8*c+i}
            v_sub_f32 v20, v{k0_}, v20
            v_sub_f32 v21, v{k1_}, v21
            v_cvt_pk_bf16_f32 v{36+8*c+i}, v20, v21
            """)
        a(f"ds_write_b128 v7, v[{32+8*c}:{35+8*c}] offset:{c*CB+KH+32*80}")
        a(f"ds_write_b128 v7, v[{36+8*c}:{39+8*c}] offset:{c*CB+KL+32*80}")
    a(f"""
    v_mov_b32 v16, 0
    v_mov_b32 v17, 0
    v_mov_b32 v18, 0
    v_mov_b32 v19, 0
    v_cmp_gt_u32 vcc, 16, v15
    s_and_saveexec_b64 s[40:41], vcc
    ds_write_b128 v9, v[16:19] offset:{UB+4096}
    ds_write_b128 v9, v[16:19] offset:{CB+UB+4096}
    s_mov_b64 exec, s[40:41]
    v_cmp_eq_u32 vcc, 0, v15
    """)
    for c in range(2):
        R_ = LR[c]
        a(f"s_waitcnt vmcnt({4+2*(1-c)})")
        if c == 1:
            a(f"v_cndmask_b32_e64 v{R_['Um']}, v{R_['Um']}, 0, vcc")
            a(f"v_cndmask_b32_e64 v{R_['Um']+1}, v{R_['Um']+1}, 0, vcc")
        S = {-2: R_['Um'], -1: R_['Um']+1, 0: R_['U'], 1: R_['U']+1, 2: R_['U']+2, 3: R_['U']+3}
        for r in range(4):
            d = 96 + 16*c + 4*r
            for j in range(4):
                if r % 2 == 0:
                    p = 3 - r//2 - j
                    a(f"v_alignbit_b32 v{d+j}, v{S[p]}, v{S[p]}, 16")
                else:
                    p = (7-r)//2 - j
                    a(f"v_bfi_b32 v{d+j}, s42, v{S[p]}, v{S[p-1]}")
            a(f"ds_write_b128 v12, v[{d}:{d+3}] offset:{c*CB+UB+r*4160}")
    a("s_waitcnt lgkmcnt(0)")
    a("s_barrier")
    TS(a, 3)
    if os.environ.get("CPRIO2"): a(f"s_setprio {os.environ['CPRIO2']}")
    steps = [(c, i, ks) for c in range(2) for i in range(8) for ks in range(2)]
    def loads(n):
        c, i, ks = steps[n]
        af = 16 + (n % 2)*24; bf_ = af + 8
        for z in range(2):
            off = c*CB + 64*(60-4*(i+8*z)) + 32*ks
            a(f"ds_read_b64 v[{af+4*z}:{af+4*z+1}], v1 offset:{off}")
            a(f"ds_read_b64 v[{af+4*z+2}:{af+4*z+3}], v1 offset:{off+8}")
            for blk in ([0] if z == 0 else [1]):
                for hl in range(2):
                    img = KH if hl == 0 else KL
                    o = c*CB + img + (32+32*blk-4*i)*80 + 32*ks - 240
                    r_ = bf_ + (blk*2+hl)*4
                    a(f"ds_read_b128 v[{r_}:{r_+3}], v2 offset:{o}")
        return 8
    loads(0)
    NST = len(steps)
    for n in range(NST):
        c, i, ks = steps[n]
        if n+1 < NST:
            cn = loads(n+1)
            a(f"s_waitcnt lgkmcnt({cn})")
        else:
            a("s_waitcnt lgkmcnt(0)")
        af = 16 + (n % 2)*24; bf_ = af + 8
        first = (i == 0 and ks == 0)
        a0, a1 = 64 + c*32, 80 + c*32
        for j, (ac, z, blk, hl) in enumerate([(a0,0,0,0), (a1,1,0,0), (a0,0,0,1), (a1,0,1,0), (a1,1,0,1), (a1,0,1,1)]):
            r_ = bf_ + (blk*2+hl)*4
            cin = "0" if (first and j < 2) else f"v[{ac}:{ac+15}]"
            a(f"v_mfma_f32_32x32x16_bf16 v[{ac}:{ac+15}], v[{af+4*z}:{af+4*z+3}], v[{r_}:{r_+3}], {cin}")
    TS(a, 4)
    if os.environ.get("CPRIO3"): a(f"s_setprio {os.environ['CPRIO3']}")
    srd(a, 24, 16, 17, FLG, 98304)
    a("""
    s_nop 7
    s_barrier
    s_lshl_b32 s14, s3, 13
    v_lshlrev_b32 v1, 4, v0
    v_add_u32 v2, s14, v1
    """)
    for c in range(2):
        for qq in range(8):
            a(f"ds_write_b128 v2, v[{64+32*c+4*qq}:{67+32*c+4*qq}] offset:{c*CB+qq*1024}")
    a("""
    s_lshl_b32 s14, s3, 11
    v_lshlrev_b32 v1, 4, v5
    v_lshl_add_u32 v1, v6, 10, v1
    v_add_u32 v1, s14, v1
    s_lshr_b32 s45, s2, 5
    s_lshr_b32 s14, s3, 1
    s_lshl_b32 s14, s14, 7
    s_add_u32 s45, s45, s14
    s_add_u32 s45, s45, 128
    s_lshl_b32 s45, s45, 8
    s_and_b32 s14, s2, 31
    s_lshl_b32 s14, s14, 1
    s_and_b32 s15, s3, 1
    s_add_u32 s14, s14, s15
    s_lshl_b32 s14, s14, 2
    s_add_u32 s45, s45, s14
    s_waitcnt lgkmcnt(0)
    s_barrier
    """)
    for c in range(2):
        for ww in range(4):
            for e in range(2):
                r_ = 64 + c*32 + (ww*2+e)*4
                a(f"ds_read_b128 v[{r_}:{r_+3}], v1 offset:{c*CB+ww*8192+e*512}")
    a("s_waitcnt lgkmcnt(0) vmcnt(0)")
    for c in range(2):
        R_ = LR[c]
        a(f"v_lshlrev_b32 v{R_['D']}, 16, v{R_['D']}")
        o = 56 + 4*c
        for e in range(2):
            for j in range(4):
                r_ = 64 + c*32 + e*4 + j
                a(f"v_add_f32 v{r_}, v{r_}, v{r_+8}")
                a(f"v_add_f32 v{r_+16}, v{r_+16}, v{r_+24}")
                a(f"v_add_f32 v{r_}, v{r_}, v{r_+16}")
            y = 64 + c*32 + e*4
            for p in range(2):
                uu = R_['Ue'] + 2*e + p
                a(f"""
                v_cvt_pk_bf16_f32 v48, v{y+2*p}, v{y+2*p+1}
                v_lshlrev_b32 v49, 16, v48
                v_and_b32 v50, 0xffff0000, v48
                v_lshlrev_b32 v51, 16, v{uu}
                v_and_b32 v52, 0xffff0000, v{uu}
                v_mul_f32 v51, v51, v{R_['D']}
                v_mul_f32 v52, v52, v{R_['D']}
                v_cvt_pk_bf16_f32 v48, v51, v52
                v_lshlrev_b32 v51, 16, v48
                v_and_b32 v52, 0xffff0000, v48
                v_add_f32 v49, v49, v51
                v_add_f32 v50, v50, v52
                v_cvt_pk_bf16_f32 v{o+2*e+p}, v49, v50
                """)
        a(f"buffer_store_dwordx4 v[{o}:{o+3}], v13, s[32:35], s{43+c} offen sc1")
    TS(a, 5)
    a(f"""
    {"s_waitcnt vmcnt(0)" if TSON else ""}
    """)
    TS(a, 6)
    TR(a, 9)
    TSDUMP(a, 10, "c")
    a("s_endpgm")

E = os.environ.get
NBR, NBL = 12, 8
XS = 11
def breg(j): return 160 if j == 11 else 168 + ((j + 10) % 11)*8
def kk(j): return (j//2)*4 + (j % 2) if j < 14 else ((j-14)//2)*4 + 2 + (j % 2)
def g2_early(a):
    srd(a, 84, 16, 17, WF, (FLG - WF + 98304) if HSW else WSZ)
    a(f"""
    s_and_b32 s44, s2, 7
    s_lshl_b32 s44, s44, 2
    s_bfe_u32 s45, s2, 0x20003
    s_add_u32 s44, s44, s45         ; tt
    s_lshr_b32 s45, s2, 5           ; dt
    s_mul_i32 s14, s3, {WS_*1024}
    s_mul_i32 s18, s44, {2*RSH}
    s_add_u32 s18, s18, s14
    s_mul_i32 s19, s45, {2*RSH}
    s_add_u32 s19, s19, s14
    s_lshl_b32 s43, s44, 2
    s_add_u32 s43, s43, s3
    s_lshl_b32 s43, s43, 8
    s_lshl_b32 s61, s3, 14
    s_add_u32 s8, s61, 8192
    s_cmp_eq_u32 s3, 0
    s_cselect_b32 s61, 73728, s61
    v_lshlrev_b32 v4, 4, v0         ; lane*16
    v_add_u32 v5, {RSH}, v4
    s_lshr_b32 s4, s2, 3
    s_lshl_b32 s14, s3, 5
    s_add_u32 s4, s4, s14
    s_lshl_b32 s4, s4, 8
    s_add_u32 s4, s4, {FLG - WF + 32768}
    """)
FST = int(E("FST", "1"))
WFCHK = """v_cmp_ne_u32_e64 s[14:15], 0, v{vr}
    s_cmp_eq_u32 s14, 0x0fffffff""" if FST else """v_readfirstlane_b32 s14, v{vr}
    s_cmp_ge_u32 s14, 28"""
WFV3 = "v_lshlrev_b32 v3, 2, v0" if FST else "v_mov_b32 v3, 0"
def wfpoll(a, tag, vr, vz):
    a(f"""
    s_mov_b32 s9, 0
    Lp_{tag}:
    buffer_load_dword v{vr}, v{vz}, s[84:87], s4 offen sc1
    s_waitcnt vmcnt(0)
    {WFCHK.format(vr=vr)}
    s_cbranch_scc1 Lpd_{tag}
    s_add_u32 s9, s9, 1
    s_cmp_ge_u32 s9, {POLL_LIMIT}
    s_cbranch_scc1 Lpd_{tag}
    s_sleep 4
    s_branch Lp_{tag}
    Lpd_{tag}:
    """)
def g2_late(a):
    srd(a, 32, 16, 17, FLG, 98304)
    srd(a, 36, 16, 17, AT, SZ2M)
    srd(a, 48, 56, 57, 0, SZ2M)
    srd(a, 52, 58, 59, 0, SZ2M)
def g2_b1(a, st, cb):
    r = breg(st) + cb*4
    if cb == 0: a(f"s_add_u32 s14, s19, {kk(st)*1024}")
    a(f"buffer_load_dwordx4 v[{r}:{r+3}], v{4+cb}, s[84:87], s14 offen")
def g2_bpre_lds(a, q=None):
    for j in range(NBL):
        st = NBR + j
        a(f"s_add_u32 s14, s19, {kk(st)*1024}")
        for cb in range(2):
            c = j*2+cb
            a(f"s_add_u32 m0, s{61 if c < 8 else 8}, {(c%8)*1024}")
            a("s_nop 0")
            a(f"buffer_load_dwordx4 v{4+cb}, s[84:87], s14 offen lds")
            if q is not None: q.append(("bl", st))

def poll(a, tag, soff, target, off=0, slp=2):
    a(f"""
    s_mov_b32 s9, 0
    Lp_{tag}:
    buffer_load_dword v7, v6, s[32:35], s{soff} offen offset:{off} sc1
    s_waitcnt vmcnt(0)
    v_readfirstlane_b32 s14, v7
    s_add_u32 s9, s9, 1
    s_cmp_ge_u32 s14, {target}
    s_cbranch_scc1 Lpd_{tag}
    s_cmp_ge_u32 s9, {POLL_LIMIT}
    s_cbranch_scc1 Lpd_{tag}
    s_sleep {slp}
    s_branch Lp_{tag}
    Lpd_{tag}:
    """)

def gemm2(a):
    a("L1_g2:")
    if E("PRIO2"): a(f"s_setprio {E('PRIO2')}")
    a("v_mov_b32 v6, 0")
    a("s_barrier")
    poll(a, "h", 43, 7)
    TS(a, 9)
    NS = 28
    q = []
    def wait_for(tags):
        idx = max(i for i, t in enumerate(q) if t in tags)
        n = len(q) - 1 - idx
        assert n <= 63
        a(f"s_waitcnt vmcnt({n})")
    free = [96 + 8*i for i in range(8)]
    pend = []
    for st in range(NS):
        pend.append(("A", st))
        if st >= NBR + NBL: pend.append(("B", st))
    loc = {}
    for st in range(NBR): loc[("B", st)] = breg(st)
    fb = [False]
    def issue():
        while pend and free:
            k, st = pend[0]
            if k == "A" and st >= 14 and not fb[0]:
                fb[0] = True
                wait_for([("F", 1)])
                a(f"""
                v_readfirstlane_b32 s14, v7
                s_cmp_ge_u32 s14, 7
                s_cbranch_scc1 Lpd_hb
                """)
                poll(a, "hb", 43, 7, off=128)
            pend.pop(0)
            r = free.pop(0)
            loc[(k, st)] = r
            a(f"s_add_u32 s41, s{18 if k == 'A' else 19}, {kk(st)*1024}")
            for j in range(2):
                a(f"buffer_load_dwordx4 v[{r+4*j}:{r+4*j+3}], v{4+j}, s[{28 if k == 'A' else 84}:{31 if k == 'A' else 87}], s41 offen")
                q.append((k, st))
    issue()
    FBI = int(E("FBI", "-1"))
    def fbload():
        a("buffer_load_dword v7, v6, s[32:35], s43 offen offset:128 sc1")
        q.append(("F", 1))
    if FBI < 0: fbload()
    a(f"""
    v_and_b32 v8, 15, v0
    v_lshrrev_b32 v9, 4, v0         ; dg
    s_lshl_b32 s62, s44, 6
    s_lshl_b32 s63, s45, 6
    s_lshl_b32 s14, s3, 4
    v_add_u32 v10, s14, v8          ; t local
    v_add_u32 v11, s62, v10
    v_lshlrev_b32 v13, 10, v11
    v_lshl_add_u32 v13, v9, 4, v13
    s_lshl_b32 s15, s63, 1
    v_add_u32 v13, s15, v13
    v_lshrrev_b32 v12, 3, v0
    v_add_u32 v12, s14, v12
    v_add_u32 v12, s63, v12
    v_lshlrev_b32 v12, 12, v12
    v_and_b32 v11, 7, v0
    v_lshl_add_u32 v12, v11, 4, v12
    s_lshl_b32 s15, s62, 1
    v_add_u32 v12, s15, v12
    s_lshl_b32 s20, s3, 11
    s_add_u32 s20, s20, 65536
    s_mov_b32 s21, 32768
    s_lshl_b32 s14, s44, 3
    s_add_u32 s45, s45, s14
    s_add_u32 s45, s45, 128
    s_lshl_b32 s45, s45, 8
    v_and_b32 v11, 31, v0
    v_lshrrev_b32 v14, 5, v0
    v_xor_b32 v14, v14, v8
    v_lshlrev_b32 v14, 4, v14
    v_lshl_add_u32 v14, v11, 8, v14
    s_lshl_b32 s14, s3, 14
    v_add_u32 v14, s14, v14
    v_lshlrev_b32 v15, 1, v9
    v_xor_b32 v15, v15, v8
    v_lshlrev_b32 v15, 4, v15
    v_lshl_add_u32 v15, v10, 8, v15
    v_lshrrev_b32 v1, 2, v8
    v_lshl_add_u32 v1, v9, 3, v1
    v_lshlrev_b32 v1, 7, v1
    v_and_b32 v11, 3, v0
    v_lshl_add_u32 v1, v11, 3, v1
    s_lshl_b32 s14, s3, 5
    s_add_u32 s14, s14, 65536
    v_add_u32 v1, s14, v1
    v_add_u32 v2, s61, v4
    v_add_u32 v3, s8, v4
    """)
    ACC = 16
    X_R = 248
    def acc(cb, rb): return ACC + (cb*2+rb)*16
    def ldsb(st):
        j = st - NBR
        r = 80 + 8*(st % 2)
        loc[("B", st)] = r
        vb = 2 if j < 4 else 3
        a(f"ds_read_b128 v[{r}:{r+3}], v{vb} offset:{((2*j)%8)*1024}")
        a(f"ds_read_b128 v[{r+4}:{r+7}], v{vb} offset:{((2*j+1)%8)*1024}")
    def atload(r):
        for j in range(2):
            a(f"buffer_load_dwordx4 v[{r+4*j}:{r+4*j+3}], v12, s[36:39], {'0' if j == 0 else 's21'} offen sc1")
            q.append(("T", 0))
    def atchk(r):
        a(f"""
        v_max3_u32 v11, v{r}, v{r+1}, v{r+2}
        v_max3_u32 v7, v{r+3}, v{r+4}, v{r+5}
        v_max3_u32 v11, v11, v{r+6}, v{r+7}
        v_max_u32 v11, v11, v7
        v_cmp_eq_u32 vcc, {'-1' if not E("NOC") else '0x12345'}, v11
        s_nop 1
        s_cmp_eq_u64 vcc, 0
        """)
    FPOLL, FCHK = int(E("FPOLL", "18")), int(E("FCHK", "25"))
    TR_ = [None]
    for st in range(NS):
        lds_next = NBR <= st+1 < NBR+NBL
        if lds_next: ldsb(st+1)
        tags = [("A", st)] + ([("B", st)] if st >= NBR+NBL else [])
        wait_for(tags)
        if NBR <= st < NBR+NBL: a(f"s_waitcnt lgkmcnt({2 if lds_next else 0})")
        for rb in range(2):
            for cb in range(2):
                c = acc(cb, rb); x = loc[("A", st)] + 4*rb; y = loc[("B", st)] + 4*cb
                cin = "0" if st == 0 else f"v[{c}:{c+15}]"
                a(f"v_mfma_f32_32x32x16_bf16 v[{c}:{c+15}], v[{y}:{y+3}], v[{x}:{x+3}], {cin}")
        free.append(loc[("A", st)])
        if (st < NBR and loc[("B", st)] < X_R) or st >= NBR+NBL: free.append(loc[("B", st)])
        if st == FBI: fbload()
        issue()
        if st == FPOLL:
            assert fb[0] and not pend
            TR_[0] = free.pop(0)
            for j in range(2):
                a(f"buffer_load_dwordx4 v[{X_R+4*j}:{X_R+4*j+3}], v13, s[48:51], 0 offen offset:{64*j}")
                q.append(("X", 0))
            atload(TR_[0])
        if st == FCHK:
            wait_for([("T", 0)])
            atchk(TR_[0])
            a("s_cselect_b32 s22, 0, 1")
    assert not pend
    TS(a, 10)
    a("s_nop 15")
    for cb in range(2):
        for rb in range(2):
            for i in range(4):
                c = acc(cb, rb) + 4*i
                dq = cb*8 + 2*i
                if dq == 0: vv = 14
                else:
                    vv = 11
                    a(f"v_xor_b32 v11, {dq*16}, v14")
                a(f"ds_write_b128 v{vv}, v[{c}:{c+3}] offset:{rb*8192}")
    a(f"""
    s_cmp_eq_u32 s22, 0
    s_cbranch_scc1 La_ok
    s_mov_b32 s9, 0
    Lp_a:
    """)
    atload(TR_[0])
    a("s_waitcnt vmcnt(0)")
    atchk(TR_[0])
    a(f"""
    s_cbranch_scc1 La_ok
    s_add_u32 s9, s9, 1
    s_cmp_ge_u32 s9, {POLL_LIMIT}
    s_cbranch_scc1 La_ok
    s_sleep {E("ASLP", "1")}
    s_branch Lp_a
    """)
    a("La_ok:")
    a("v_add_u32 v11, s20, v4")
    for j in range(2):
        a(f"ds_write_b128 v11, v[{TR_[0]+4*j}:{TR_[0]+4*j+3}] offset:{j*1024}")
    a("""
    v_xor_b32 v11, 16, v15
    v_xor_b32 v10, 128, v15
    v_xor_b32 v9, 144, v15
    s_waitcnt vmcnt(0) lgkmcnt(0)
    s_barrier
    """)
    AT_R = 80
    va = [15, 11, 10, 9]
    for j in range(2):
        for ww in range(4):
            for hh in range(2):
                r = 16 + j*32 + ww*8 + hh*4
                a(f"ds_read_b128 v[{r}:{r+3}], v{va[j*2+hh]} offset:{ww*16384}")
        for hh in range(2):
            a(f"ds_read_b64_tr_b16 v[{AT_R+4*j+2*hh}:{AT_R+4*j+2*hh+1}], v1 offset:{(32*j+4*hh)*128}")
    for j in range(2):
        a(f"s_waitcnt lgkmcnt({10*(1-j)})")
        b = 16 + j*32
        for e in range(8):
            a(f"v_add_f32 v{b+e}, v{b+e}, v{b+8+e}")
            a(f"v_add_f32 v{b+16+e}, v{b+16+e}, v{b+24+e}")
        for p in range(4):
            at = AT_R + 4*j + p; x0 = X_R + 4*j + p
            a(f"""
            v_lshlrev_b32 v{b+8+2*p}, 16, v{at}
            v_and_b32 v{b+9+2*p}, 0xffff0000, v{at}
            v_lshlrev_b32 v{b+24+2*p}, 16, v{x0}
            v_and_b32 v{b+25+2*p}, 0xffff0000, v{x0}
            """)
        for e in range(8):
            a(f"v_add_f32 v{b+e}, v{b+e}, v{b+16+e}")
            a(f"v_add_f32 v{b+8+e}, v{b+8+e}, v{b+24+e}")
        for e in range(8):
            a(f"v_cvt_pk_bf16_f32 v{b+e}, 0, v{b+e}")
            a(f"v_cvt_pk_bf16_f32 v{b+8+e}, 0, v{b+8+e}")
        for e in range(8):
            a(f"v_add_f32 v{b+e}, v{b+e}, v{b+8+e}")
        for p in range(4):
            a(f"v_cvt_pk_bf16_f32 v{b+16+p}, v{b+2*p}, v{b+2*p+1}")
        a(f"buffer_store_dwordx4 v[{b+16}:{b+19}], v13, s[52:55], 0 offen offset:{64*j}")
    if TSON: a("s_waitcnt vmcnt(0)")
    TS(a, 11)
    TSDUMP(a, 12, "g")
    a("s_endpgm")

SLOW = []
MAP0 = """
    s_lshr_b32 s12, s2, 3
    s_mul_i32 s13, s12, 37
    s_lshr_b32 s13, s13, 8          ; q/7
    s_mul_i32 s14, s13, 7
    s_sub_u32 s14, s12, s14         ; q%7
    s_and_b32 s15, s2, 3
    s_mov_b32 s97, s15              ; ct/7
    s_mul_i32 s15, s15, 7
    s_add_u32 s10, s15, s14         ; ct
    s_bfe_u32 s15, s2, 0x10002
    s_lshl_b32 s15, s15, 2
    s_add_u32 s11, s15, s13         ; rt
"""
def gemm1(a):
    TS(a, 0)
    if E("PRIO"): a(f"s_setprio {E('PRIO')}")
    srd(a, 20, 16, 17, XN, 64*XRS)
    a(f"""
    s_cmp_ge_u32 s3, 2
    s_cselect_b32 s24, s6, s4
    s_cselect_b32 s25, s7, s5
    s_and_b32 s25, s25, 0xffff
    s_mov_b32 s26, 0x1c0000
    s_mov_b32 s27, 0x20000
    {MAP0}
    s_lshl_b32 s12, s11, 3
    s_lshl_b32 s13, s3, 1
    s_add_u32 s12, s12, s13
    s_mul_i32 s12, s12, {XRS}
    v_lshlrev_b32 v1, 4, v0
    v_add_u32 v1, s12, v1
    v_lshrrev_b32 v5, 3, v0         ; row8
    v_and_b32 v6, 7, v0             ; c'
    v_and_b32 v7, 3, v5
    v_lshlrev_b32 v7, 1, v7
    v_xor_b32 v6, v6, v7
    v_mul_u32_u24 v2, 3584, v5
    s_lshl_b32 s13, s10, 7
    v_add_u32 v2, s13, v2
    v_lshl_add_u32 v2, v6, 4, v2
    s_and_b32 s14, s3, 1
    s_mul_i32 s40, s14, {16*3584}
    s_lshr_b32 s15, s3, 1
    s_lshl_b32 s42, s15, 12
    s_lshl_b32 s14, s14, 11
    s_add_u32 s42, s42, s14
    s_add_u32 s42, s42, 8192
    """)
    sx = [32,33,34,35,36,37,38,39,48,49,50,51,52,53,54,55]
    for rb in range(2):
        for h in range(8):
            a(f"s_mov_b32 s{sx[rb*8+h]}, {rb*XRS+h*4096}")
    ACC = 16
    def acc(mat, cb, rb): return ACC + ((cb*2+rb)*2+mat)*16
    NS, NSL = 16, 7
    KT = int(E("KT", "24"))
    assert KT % 2 == 0 and 22 <= KT <= 30
    FR = []
    for ks in range(KT): FR += [(ks,0,0),(ks,0,1),(ks,1,0),(ks,1,1)]
    for ks in range(KT, 32): FR += [(ks,0,0),(ks,0,1)]
    NB1 = len(FR)
    for ks in range(KT, 32): FR += [(ks,1,0),(ks,1,1)]
    NF = len(FR)
    last_use = {}
    first_use = {}
    for n, (ks, cb, mat) in enumerate(FR):
        last_use[ks] = n
        first_use.setdefault(ks, n)
    q = []
    def wait_for(tag):
        idx = max(i for i, t in enumerate(q) if t == tag)
        n = len(q) - 1 - idx
        assert n <= 63
        a(f"s_waitcnt vmcnt({n})")
    lq = []
    def wait_l(tag):
        idx = max(i for i, t in enumerate(lq) if t == tag)
        n = len(lq) - 1 - idx
        a(f"s_waitcnt lgkmcnt({min(n, 15)})")
    def xr(ks, rb): return 168 + (ks % XS)*8 + rb*4
    WFr, NR = 144, 6
    barr = -1
    def do_barrier(s):
        nonlocal barr
        wait_for(("w", s))
        a("s_barrier")
        barr = s
    def trread(n):
        ks, cb, mat = FR[n]
        if ks//2 > barr: do_barrier(ks//2)
        b = WFr + (n % NR)*4
        base = 8192 + ((ks//2) % NSL)*8192 + mat*4096 + (ks & 1)*2048
        a(f"ds_read_b64_tr_b16 v[{b}:{b+1}], v{8+cb} offset:{base}")
        a(f"ds_read_b64_tr_b16 v[{b+2}:{b+3}], v{8+cb} offset:{base+512}")
        lq.append(("f", n)); lq.append(("f", n))
    pend = []
    for s in range(NS):
        pend += [("w", s, 0), ("w", s, 1)] + [("x", 2*s+j, rb) for j in range(2) for rb in range(2)]
        if s == 3: pend += [("t", s, i) for i in range(4)]
    WFP = int(E("WFP", "11"))
    ZN = int(E("ZN", "104")); BN0 = int(E("BN0", "113"))
    assert ZN >= 92
    if HSW: pend.append(("z", 0, 0))
    for j in range(11): pend += [("b", j, 0), ("b", j, 1)]
    def issue1(t):
        k, s, i = t
        if k == "w":
            a(f"s_add_u32 s41, s40, {(32*s+8*i)*3584}")
            a(f"s_add_u32 m0, s42, {(s%NSL)*8192+i*1024}")
            a("s_nop 0")
            a(f"buffer_load_dwordx4 v2, s[24:27], s41 offen lds")
        elif k == "x":
            r = xr(s, i)
            a(f"buffer_load_dwordx4 v[{r}:{r+3}], v1, s[20:23], s{sx[i*8+(s>>2)]} offen offset:{(s&3)*1024}")
        elif k == "t":
            a(f"s_mov_b32 m0, s63")
            a("s_nop 0")
            a(f"buffer_load_dwordx4 v4, s[80:83], s62 offen offset:{i*1024} lds")
        elif k == "z":
            a(WFV3.replace("v3,", "v249,"))
            a("s_nop 0")
            a("buffer_load_dword v248, v249, s[84:87], s4 offen sc1")
        else:
            if HSW and s == 0 and i == 0:
                wait_for(("z", 0))
                a(WFCHK.format(vr=248))
                a("s_cbranch_scc1 Lpd_wf")
                wfpoll(a, "wf", 248, 249)
            g2_b1(a, s, i)
        q.append((k, s))
    PRO = int(E("PRO", "3"))
    def allowed(t, n):
        k, s, i = t
        ahead = (first_use[2*s if k == "w" else s] - n) if k in "wx" else 0
        if k == "w": return (s < NSL or barr >= s-(NSL-2)) and ahead <= 8*PRO+8
        if k == "x": return (s < XS or last_use[s-XS] <= n) and ahead <= 8*PRO+8
        if k == "t": return True
        if k == "z": return n >= ZN
        return last_use[21+s] <= n and (n >= BN0 or not HSW)
    for _ in range(6*min(PRO, 3)): issue1(pend.pop(0))
    a("""
    v_bfe_u32 v7, v0, 2, 2          ; r
    v_lshrrev_b32 v6, 5, v0
    v_lshl_add_u32 v6, v6, 3, v7    ; row_l
    v_bfe_u32 v10, v0, 4, 1
    v_bfe_u32 v11, v0, 1, 1
    v_lshl_add_u32 v10, v10, 1, v11 ; gc0
    v_lshlrev_b32 v7, 1, v7
    v_xor_b32 v10, v10, v7          ; pc
    v_lshlrev_b32 v8, 7, v6
    v_lshl_add_u32 v8, v10, 4, v8
    v_and_b32 v11, 1, v0
    v_lshl_add_u32 v8, v11, 3, v8
    v_xor_b32 v9, 64, v8
    """)
    g2_early(a)
    srd(a, 80, 16, 17, TB, 16384)
    a(f"""
    s_lshl_b32 s62, s3, 12
    s_and_b32 s63, s3, 1
    s_lshl_b32 s63, s63, 12
    s_lshr_b32 s14, s3, 1
    s_lshl_b32 s14, s14, 16
    s_add_u32 s63, s63, s14
    s_lshl_b32 s12, s11, 3
    s_lshl_b32 s13, s3, 1
    s_add_u32 s12, s12, s13
    s_mul_i32 s12, s12, {RSH}
    s_lshl_b32 s13, s10, 2
    s_mul_i32 s14, s97, {SKEW}
    s_add_u32 s13, s13, s14
    s_lshl_b32 s13, s13, 10
    s_add_u32 s12, s12, s13
    s_add_u32 s13, s12, {RSH}
    s_mov_b32 s46, 0x{TLO*0x10001:x}
    s_mov_b32 s47, {f32(KB)}
    s_mov_b32 s98, 0x8fff8fff
    v_mov_b32 v10, {f32(KA)}
    s_lshl_b32 s60, s11, 2
    s_add_u32 s60, s60, s3
    s_lshl_b32 s60, s60, 2
    s_add_u32 s60, s60, s97
    s_lshl_b32 s60, s60, 8
    """)
    TS(a, 1)
    PD = int(E("PD", "4"))
    assert PD < NR
    PT = [[12, 13, 14, 15], [1, 2, 3, 6]]
    units = [(cb, rb, sp) for cb in range(2) for rb in range(2) for sp in range(2)]
    def EA(k):
        cb, rb, sp = units[k]
        g = acc(0, cb, rb) + 8*sp; P = PT[k % 2]; S = 90 + 2*(k % 2)
        o = []
        for i in range(4): o.append(f"v_cvt_pk_bf16_f32 v{P[i]}, v{g+2*i}, v{g+2*i+1}")
        for i in range(4): o.append(f"v_subrev_u32 v{P[i]}, s46, v{P[i]}")
        o.append(f"v_or3_b32 v11, v{P[0]}, v{P[1]}, v{P[2]}")
        o.append(f"v_or_b32 v11, v11, v{P[3]}")
        o.append(f"v_and_b32 v11, 0x70007000, v11")
        o.append(f"v_cmp_ne_u32_e64 s[{S}:{S+1}], 0, v11")
        for i in range(4):
            o.append(f"v_and_b32 v7, s98, v{P[i]}")
            for h in range(2):
                o.append(f"v_lshlrev_b32_sdwa v{g+2*i+h}, 1, v7 dst_sel:DWORD dst_unused:UNUSED_PAD src0_sel:DWORD src1_sel:WORD_{h}")
        for j in range(8):
            def f(j=j):
                a(f"ds_read_u16_d16_hi v{g+j}, v{g+j}")
                lq.append(("g", k))
            o.append(f)
        SLOW.append((k, g, P))
        return o
    def EB(k):
        cb, rb, sp = units[k]
        g = acc(0, cb, rb) + 8*sp; u = acc(1, cb, rb) + 8*sp; S = 90 + 2*(k % 2)
        o = []
        for j in range(8): o.append(f"v_cvt_pk_bf16_f32 v{u+j}, 0, v{u+j}")
        def f():
            wait_l(("g", k))
            a(f"s_cmp_lg_u64 s[{S}:{S+1}], 0")
            a(f"s_cbranch_scc1 Lslow_{k}")
            a(f"Lback_{k}:")
        o.append(f)
        for j in range(8): o.append(f"v_mul_f32_e32 v{u+j}, v{g+j}, v{u+j}")
        for i in range(4): o.append(f"v_cvt_pk_bf16_f32 v{g+i}, v{u+2*i}, v{u+2*i+1}")
        def s():
            a(f"buffer_store_dwordx4 v[{g}:{g+3}], v4, s[28:31], s{12+rb} offen offset:{(cb*2+sp)*1024} sc1")
            q.append(("h", cb))
        o.append(s)
        return o
    def stream(k0):
        return EA(k0) + EA(k0+1) + EB(k0) + EA(k0+2) + EB(k0+1) + EA(k0+3) + EB(k0+2) + EB(k0+3)
    def emit(o):
        if callable(o): o()
        else: a(o)
    ES = stream(0)
    per = -(-len(ES)//(2*(NF-NB1-int(E("EFL", "2")))))
    for n in range(PD): trread(n)
    for n in range(NF):
        ks, cb, mat = FR[n]
        if n == 0: TS(a, 2)
        if n == 64: TS(a, 3)
        if n == NB1:
            TS(a, 4)
            assert all(t[0] in "bz" for t in pend)
        if n+PD < NF: trread(n+PD)
        if n == first_use[ks]: wait_for(("x", ks))
        wait_l(("f", n))
        b = WFr + (n % NR)*4
        for rb in range(2):
            c = acc(mat, cb, rb)
            cin = "0" if ks == 0 else f"v[{c}:{c+15}]"
            a(f"v_mfma_f32_32x32x16_bf16 v[{c}:{c+15}], v[{b}:{b+3}], v[{xr(ks,rb)}:{xr(ks,rb)+3}], {cin}")
            if n > NB1:
                for _ in range(per):
                    if ES: emit(ES.pop(0))
        for _ in range(2 if n >= 4*KT - 16 else 1):
            if pend and allowed(pend[0], n): issue1(pend.pop(0))
    while ES: emit(ES.pop(0))
    while pend: issue1(pend.pop(0))
    TS(a, 6)
    g2_late(a)
    a("s_barrier")
    BL = []
    def mkb(cb):
        def f():
            a(f"s_add_u32 s14, s19, {kk(11)*1024}")
            r = breg(11) + cb*4
            a(f"buffer_load_dwordx4 v[{r}:{r+3}], v{4+cb}, s[84:87], s14 offen")
            q.append(("b", 11))
        return f
    def mkl(j, cb):
        def f():
            st = NBR + j; c = j*2+cb
            a(f"s_add_u32 s14, s19, {kk(st)*1024}")
            a(f"s_add_u32 m0, s{61 if c < 8 else 8}, {(c%8)*1024}")
            a("s_nop 0")
            a(f"buffer_load_dwordx4 v{4+cb}, s[84:87], s14 offen lds")
            q.append(("bl", st))
        return f
    BL = [mkb(0), mkb(1)] + [mkl(j, cb) for j in range(NBL) for cb in range(2)]
    def flag(cb):
        wait_for(("h", cb))
        a(f"""
        v_mov_b32 v8, 0
        v_mov_b32 v9, 1
        s_mov_b64 exec, 1
        buffer_atomic_add v9, v8, s[32:35], s60 offen offset:{128*cb}
        s_mov_b64 exec, -1
        """)
        q.append(("fl", cb))
    ES = stream(4)
    FAP = int(len(ES)*float(E("FAP", "1.0")))
    BSP = float(E("BSP", "0"))
    nb = len(BL); done = 0
    for i, o in enumerate(ES):
        if i == FAP:
            flag(0); TS(a, 5)
        want = nb if BSP <= 0 else min(nb, int(nb*(i+1)/(BSP*len(ES)))+1)
        if BSP <= 1.0:
            while done < want:
                BL[done](); done += 1
        emit(o)
    TS(a, 7)
    if FAP >= len(ES):
        flag(0); TS(a, 5)
    while done < nb:
        BL[done](); done += 1
    flag(1)
    TS(a, 8)

def slowpaths(a):
    for (k, g, P) in SLOW:
        a(f"Lslow_{k}:")
        a("s_waitcnt lgkmcnt(0)")
        for i in range(4):
            a(f"""
            v_add_u32 v{P[i]}, s46, v{P[i]}
            v_lshlrev_b32 v7, 16, v{P[i]}
            v_and_b32 v{P[i]}, 0xffff0000, v{P[i]}
            """)
            for (G, S) in ((7, g+2*i), (P[i], g+2*i+1)):
                a(f"""
                v_mul_f32_e32 v{S}, v{G}, v{G}
                v_fma_f32 v{S}, v{S}, s47, v10
                v_mul_f32_e32 v{S}, v{S}, v{G}
                v_exp_f32_e32 v{S}, v{S}
                s_nop 0
                v_add_f32_e32 v{S}, 1.0, v{S}
                v_rcp_f32_e32 v{S}, v{S}
                s_nop 0
                v_mul_f32_e32 v{S}, v{S}, v{G}
                v_cvt_pk_bf16_f32 v{S}, 0, v{S}
                """)
        a(f"s_branch Lback_{k}")

def k1(a):
    header(a, "main_kernel")
    a(f"""
    s_cmp_ge_u32 s2, 512
    s_cbranch_scc1 L1_exit
    s_load_dwordx4 s[4:7], s[0:1], 64
    s_load_dwordx2 s[8:9], s[0:1], 48
    s_load_dwordx2 s[16:17], s[0:1], 104
    s_load_dwordx2 s[56:57], s[0:1], 0
    s_load_dwordx2 s[58:59], s[0:1], 88
    v_lshrrev_b32 v5, 6, v0
    v_mov_b32 v15, v0
    v_readfirstlane_b32 s3, v5      ; wave
    v_and_b32 v0, 63, v0
    s_mov_b32 s96, s2
    {"s_memrealtime s[98:99]" if TSALL else ""}
    s_waitcnt lgkmcnt(0)
    {"s_mov_b32 s99, s98" if TSALL else ""}
    s_cmp_lt_u32 s2, 256
    s_cbranch_scc1 {"L1_exit" if E("NOC") else "L1_conv"}
    {"s_endpgm" if E("NOG") else ""}
    s_sub_u32 s2, s2, 256
    """)
    srd(a, 28, 16, 17, HB, HSZ)
    a("""
    s_cmp_ge_u32 s2, 224
    s_cbranch_scc1 L1_h
    """)
    gemm1(a)
    gemm2(a)
    slowpaths(a)
    a("L1_h:")
    TS(a, 0)
    g2_early(a)
    g2_late(a)
    if HSW:
        if E("HPRIO"): a(f"s_setprio {E('HPRIO')}")
        a(f"""
        s_sub_u32 s20, s2, 224
        s_cmp_ge_u32 s20, 28
        s_cbranch_scc1 Lh_nosw
        s_load_dwordx2 s[22:23], s[0:1], 80
        s_lshl_b32 s21, s20, 16
        s_lshl_b32 s14, s3, 12
        s_add_u32 s21, s21, s14
        s_mul_i32 s40, s20, 37
        s_lshr_b32 s40, s40, 8
        s_lshl_b32 s41, s20, 2
        s_mul_i32 s42, s40, {SKEW}
        s_add_u32 s41, s41, s42
        s_lshl_b32 s41, s41, 10
        s_mul_i32 s42, s3, {4*RSH}
        s_add_u32 s41, s41, s42         ; + 4w blocks
        v_lshrrev_b32 v1, 5, v0
        v_bfe_u32 v2, v0, 2, 2
        v_lshl_add_u32 v1, v1, 2, v2
        v_lshlrev_b32 v1, 10, v1
        v_bfe_u32 v2, v0, 4, 1
        v_lshl_add_u32 v1, v2, 5, v1
        v_and_b32 v2, 3, v0
        v_lshl_add_u32 v1, v2, 3, v1
        s_lshl_b32 s42, s3, 8
        v_add_u32 v1, s42, v1           ; + 4w blocks*64B
        s_waitcnt lgkmcnt(0)
        """)
        srd(a, 24, 22, 23, 0, 1792*1024)
        for u in range(4):
            a(f"s_add_u32 s15, s21, {u*16384}")
            a(f"s_add_u32 m0, s14, {u*16384}")
            a("s_nop 0")
            for e in range(4):
                a(f"buffer_load_dwordx4 v4, s[24:27], s15 offen offset:{e*1024} lds")
        for u in range(4):
            a(f"s_waitcnt vmcnt({12 - 4*u}) lgkmcnt(0)")
            a("s_barrier")
            for b in range(4):
                r = 16 + 16*u + 4*b
                a(f"ds_read_b64_tr_b16 v[{r}:{r+1}], v1 offset:{u*16384 + b*64}")
                a(f"ds_read_b64_tr_b16 v[{r+2}:{r+3}], v1 offset:{u*16384 + b*64 + 8192}")
        for u in range(4):
            for b in range(4):
                r = 16 + 16*u + 4*b
                if u == 3: a(f"s_waitcnt lgkmcnt({6 - 2*b})")
                a(f"s_add_u32 s15, s41, {b*RSH + u*1024}")
                a(f"buffer_store_dwordx4 v[{r}:{r+3}], v4, s[84:87], s15 offen sc1")
        TS(a, 1)
        a(f"""
        s_mul_i32 s42, s40, 7
        s_sub_u32 s42, s20, s42
        s_lshl_b32 s42, s42, 2
        s_add_u32 s42, s42, s3
        s_lshl_b32 s42, s42, 2
        s_lshl_b32 s40, s40, 13
        s_add_u32 s40, s40, {FLG - WF + 32768}
        {"s_add_u32 s40, s40, s42" if FST else ""}
        v_lshlrev_b32 v8, 8, v0
        v_mov_b32 v9, 1
        s_waitcnt vmcnt(0)
        s_mov_b32 exec_hi, 0
        {"buffer_store_dword v9, v8, s[84:87], s40 offen sc1" if FST else "buffer_atomic_add v9, v8, s[84:87], s40 offen"}
        s_mov_b64 exec, -1
        s_barrier
        """)
        TS(a, 2)
        a("Lh_nosw:")
        if E("HPRIO"): a(f"s_setprio 0")
    for _ in range(int(E("HSLP", "12" if not HSW else "6"))): a("s_sleep 10")
    if HSW:
        a(WFV3)
        wfpoll(a, "wfh", 7, 3)
        TS(a, 3)
    for st in range(NBR):
        g2_b1(a, st, 0); g2_b1(a, st, 1)
    g2_bpre_lds(a)
    a("s_branch L1_g2")
    a("L1_conv:")
    cpath(a)
    a("""
    L1_exit:
    s_endpgm
    """)

def build():
    launches = [f"; @launch kernel=prep_kernel grid=({NK0},1,1) block=(256,1,1) lds=16384",
                "; @launch kernel=main_kernel grid=(512,1,1) block=(256,1,1) lds=81920"]
    descs = [desc("prep_kernel", 72), desc("main_kernel", 256, acc=256)]
    body = A()
    k0(body)
    k1(body)
    txt = "\n".join(launches) + "\n"
    txt += '.amdgcn_target "amdgcn-amd-amdhsa--gfx950"\n.text\n'
    txt += body.text()
    txt += '.section .rodata,"a"\n' + "".join(descs)
    return txt

if __name__ == "__main__":
    out = sys.argv[1]
    open(out, "w").write(build())
    print("wrote", out)
```

```python
import sys, struct, math, os
OUT = "parallel_sum__ssm_conv_s4d__glu_gated_geglu__prompt.s"

class A:
    def __init__(self): self.l = []
    def __call__(self, s):
        for ln in s.strip("\n").split("\n"):
            self.l.append("    " + ln.strip() if not ln.strip().endswith(":") else ln.strip())
    def raw(self, s): self.l.append(s)
    def text(self): return "\n".join(self.l) + "\n"

def f32(x): return "0x%08x" % struct.unpack("<I", struct.pack("<f", x))[0]
LOG2E = 1.4426950408889634

XN, XNT, HB, AT, WF, FLG, TB = 0, 4<<20, 8<<20, 16<<20, 18<<20, 20<<20, 22<<20
SKEW = int(os.environ.get("SKEW", "1"))
WS_ = 29 if SKEW else 28
RSH = 4*WS_*1024 + (768 if SKEW else 0)
XRS = 32768 + (256 if SKEW else 0)
TLO = 0x3100
C0 = math.sqrt(2.0/math.pi)
KA = -2.0*LOG2E*C0
KB = KA*0.044715
SZ2M = 2<<20
HSZ = 64*RSH
WSZ = 16*RSH
POLL_LIMIT = 60000

def srd(a, s, lo, hi, off, size):
    if off:
        a(f"s_add_u32 s{s}, s{lo}, 0x{off:x}")
        a(f"s_addc_u32 s{s+1}, s{hi}, 0")
        a(f"s_and_b32 s{s+1}, s{s+1}, 0xffff")
    else:
        a(f"s_mov_b32 s{s}, s{lo}")
        a(f"s_and_b32 s{s+1}, s{hi}, 0xffff")
    a(f"s_mov_b32 s{s+2}, 0x{size:x}")
    a(f"s_mov_b32 s{s+3}, 0x20000")

def srd_dyn(a, s, lo, hi, off, sx, size):
    a(f"s_add_u32 s{s}, s{lo}, 0x{off:x}")
    a(f"s_addc_u32 s{s+1}, s{hi}, 0")
    a(f"s_add_u32 s{s}, s{s}, s{sx}")
    a(f"s_addc_u32 s{s+1}, s{s+1}, 0")
    a(f"s_and_b32 s{s+1}, s{s+1}, 0xffff")
    a(f"s_mov_b32 s{s+2}, 0x{size:x}")
    a(f"s_mov_b32 s{s+3}, 0x20000")

def header(a, name):
    a.raw(f".globl {name}")
    a.raw(".p2align 8")
    a.raw(f".type {name},@function")
    a.raw(f"{name}:")

def desc(name, vgpr, sgpr=100, acc=None):
    if acc is None: acc = (vgpr + 3)//4*4
    return f""".p2align 6
.amdhsa_kernel {name}
  .amdhsa_next_free_vgpr {vgpr}
  .amdhsa_next_free_sgpr {sgpr}
  .amdhsa_accum_offset {acc}
  .amdhsa_group_segment_fixed_size 0
  .amdhsa_kernarg_size 112
  .amdhsa_user_sgpr_count 2
  .amdhsa_user_sgpr_kernarg_segment_ptr 1
  .amdhsa_system_sgpr_workgroup_id_x 1
.end_amdhsa_kernel
"""

TSON = os.environ.get("TS", "") != ""
TSALL = os.environ.get("TS", "") == "all"
TSWG = 0 if TSALL else int(os.environ.get("TS", "0") or 0)
def TS(a, i):
    if not TSON: return
    a("s_memtime s[94:95]")
    a("s_waitcnt lgkmcnt(0)")
    a(f"s_mov_b32 s{64+i}, s94")
def TR(a, i):
    if not TSON: return
    a("s_memrealtime s[94:95]")
    a("s_waitcnt lgkmcnt(0)")
    a(f"s_mov_b32 s{64+i}, s94")
def TSDUMP(a, n, tag):
    if not TSON: return
    if TSALL:
        a(f"""
        s_cmp_lg_u32 s3, 0
        s_cbranch_scc1 Lts_{tag}
        s_memrealtime s[94:95]
        s_getreg_b32 s76, hwreg(HW_REG_HW_ID)
        s_getreg_b32 s77, hwreg(HW_REG_XCC_ID)
        s_lshl_b32 s92, s96, 7
        v_mov_b32 v1, s92
        s_waitcnt lgkmcnt(0)
        s_mov_b32 s78, s99
        s_mov_b32 s79, s94
        """)
        srd(a, 88, 16, 17, 24 << 20, 65536)
        for i in range(16):
            a(f"v_mov_b32 v2, s{64+i}")
            a(f"buffer_store_dword v2, v1, s[88:91], 0 offen offset:{4*i}")
        a(f"Lts_{tag}:")
        return
    a(f"""
    s_cmp_lg_u32 s96, {TSWG}
    s_cbranch_scc1 Lts_{tag}
    s_cmp_lg_u32 s3, 0
    s_cbranch_scc1 Lts_{tag}
    s_load_dwordx2 s[92:93], s[0:1], 96
    s_waitcnt lgkmcnt(0)
    """)
    srd(a, 88, 92, 93, 0, 256)
    a("v_mov_b32 v1, 0")
    for i in range(n):
        a(f"v_mov_b32 v2, s{64+i}")
        a(f"buffer_store_dword v2, v1, s[88:91], 0 offen offset:{4*i}")
    a(f"Lts_{tag}:")

PFN = int(os.environ.get("PFN", "0"))
HSW = int(os.environ.get("HSW", "1"))
NXT = int(os.environ.get("NXT", "0"))
CAF = int(os.environ.get("CAF", "0"))
XLP = int(os.environ.get("XLP", "1"))
CFP = int(os.environ.get("CFP", "0"))
NK0 = 245 + (128 if PFN else 0) - (112 if HSW else 0)
def k0(a):
    n0 = len(a.l)
    k0_(a)
    PSC = os.environ.get("PSC", "")
    if PSC:
        for i in range(n0, len(a.l)):
            if "buffer_store" in a.l[i] and "s[88:91]" not in a.l[i]:
                a.l[i] = a.l[i].split(";")[0].rstrip() + " " + PSC
def k0_(a):
    header(a, "prep_kernel")
    a(f"""
    s_cmp_ge_u32 s2, {NK0}
    s_cbranch_scc1 L0_exit
    s_load_dwordx2 s[4:5], s[0:1], 0
    s_load_dwordx2 s[18:19], s[0:1], 80
    s_load_dwordx2 s[16:17], s[0:1], 104
    {"s_memrealtime s[98:99]" if TSALL else ""}
    s_waitcnt lgkmcnt(0)
    s_cmp_ge_u32 s2, 128
    s_cbranch_scc1 L0_swz
    """)
    if os.environ.get("LNMAP"):
        a("""
        s_and_b32 s3, s2, 7
        s_lshl_b32 s3, s3, 4
        s_lshr_b32 s2, s2, 3
        s_add_u32 s2, s2, s3
        """)
    srd(a, 20, 4, 5, 0, SZ2M)
    srd(a, 24, 16, 17, XN, 64*XRS)
    srd(a, 28, 16, 17, XNT, SZ2M)
    a("""
    s_lshl_b32 s3, s2, 4            ; r0
    v_lshrrev_b32 v1, 4, v0
    v_and_b32 v2, 15, v0            ; j
    v_add_u32 v3, s3, v1            ; row
    v_lshlrev_b32 v3, 10, v3
    v_lshl_add_u32 v3, v2, 4, v3    ; voffset
    """)
    for c in range(4):
        a(f"buffer_load_dwordx4 v[{8+4*c}:{11+4*c}], v3, s[20:23], 0 offen offset:{c*256}")
    srd(a, 40, 16, 17, AT, SZ2M)
    a("""
    v_mov_b32 v32, -1
    v_mov_b32 v33, -1
    v_mov_b32 v34, -1
    v_mov_b32 v35, -1
    v_lshlrev_b32 v36, 4, v0
    s_lshl_b32 s32, s2, 14
    """)
    for c in range(0 if CAF else 4):
        a(f"s_add_u32 s33, s32, {c*4096}")
        a(f"buffer_store_dwordx4 v[32:35], v36, s[40:43], s33 offen {os.environ.get('PSCA', '')}")
    a(f"s_waitcnt vmcnt({0 if CAF else 4})")
    for i in range(16):
        a(f"v_lshlrev_b32 v{32+2*i}, 16, v{8+i}")
        a(f"v_and_b32 v{33+2*i}, 0xffff0000, v{8+i}")
    a("v_add_f32 v4, v32, v33")
    a("v_add_f32 v5, v34, v35")
    for i in range(36, 64, 2):
        a(f"v_add_f32 v4, v4, v{i}")
        a(f"v_add_f32 v5, v5, v{i+1}")
    a("v_add_f32 v4, v4, v5")
    def rowsum(r):
        for ror in (8, 4, 2, 1):
            a("s_nop 1")
            a(f"v_add_f32_dpp v{r}, v{r}, v{r} row_ror:{ror} row_mask:0xf bank_mask:0xf")
    rowsum(4)
    a(f"v_mul_f32 v4, {f32(1.0/512)}, v4")
    a("v_sub_f32 v6, v32, v4")
    a("v_mul_f32 v5, v6, v6")
    a("v_sub_f32 v6, v33, v4")
    a("v_mul_f32 v7, v6, v6")
    for i in range(34, 64, 2):
        a(f"v_sub_f32 v6, v{i}, v4")
        a(f"v_fma_f32 v5, v6, v6, v5")
        a(f"v_sub_f32 v64, v{i+1}, v4")
        a(f"v_fma_f32 v7, v64, v64, v7")
    a("v_add_f32 v5, v5, v7")
    rowsum(5)
    a(f"""
    v_mul_f32 v5, {f32(1.0/512)}, v5
    v_cvt_pk_bf16_f32 v4, v4, v5
    v_and_b32 v5, 0xffff0000, v4
    v_lshlrev_b32 v4, 16, v4
    v_add_f32 v5, {f32(1e-5)}, v5
    v_cvt_pk_bf16_f32 v5, v5, v5
    v_lshlrev_b32 v5, 16, v5
    v_sqrt_f32 v5, v5
    s_nop 0
    v_cvt_pk_bf16_f32 v5, v5, v5
    v_lshlrev_b32 v5, 16, v5         ; s (bf16)
    v_rcp_f32 v6, v5
    s_nop 0
    """)
    for i in range(16):
        x0, x1 = 32+2*i, 33+2*i
        a(f"""
        v_sub_f32 v{x0}, v{x0}, v4
        v_sub_f32 v{x1}, v{x1}, v4
        v_cvt_pk_bf16_f32 v7, v{x0}, v{x1}
        v_lshlrev_b32 v{x0}, 16, v7
        v_and_b32 v{x1}, 0xffff0000, v7
        v_mul_f32 v64, v{x0}, v6
        v_mul_f32 v65, v{x1}, v6
        v_fma_f32 v66, -v64, v5, v{x0}
        v_fma_f32 v67, -v65, v5, v{x1}
        v_fma_f32 v64, v66, v6, v64
        v_fma_f32 v65, v67, v6, v65
        v_cvt_pk_bf16_f32 v{8+i}, v64, v65
        """)
    a(f"""
    v_lshlrev_b32 v7, 10, v1
    v_lshl_add_u32 v7, v2, 4, v7
    v_lshrrev_b32 v64, 1, v2
    v_lshlrev_b32 v64, 10, v64
    v_and_b32 v65, 1, v2
    v_lshl_add_u32 v64, v65, 9, v64
    v_lshl_add_u32 v64, v1, 4, v64
    s_lshr_b32 s34, s2, 1
    s_mul_i32 s34, s34, {XRS}
    s_and_b32 s35, s2, 1
    s_lshl_b32 s35, s35, 8
    s_add_u32 s34, s34, s35
    s_add_u32 s35, s34, 0x2000
    s_add_u32 s36, s34, 0x4000
    s_add_u32 s37, s34, 0x6000
    """)
    for c in range(4):
        a(f"buffer_store_dwordx4 v[{8+4*c}:{11+4*c}], v64, s[24:27], s{34+c} offen {os.environ.get('PSCX', '')}")
        if not NXT: a(f"ds_write_b128 v7, v[{8+4*c}:{11+4*c}] offset:{c*256}")
    if NXT: a("s_branch L0_fin")
    a("""
    s_waitcnt lgkmcnt(0)
    s_barrier
    v_lshlrev_b32 v7, 2, v0
    """)
    for r in range(16):
        a(f"ds_read_b32 v{32+r}, v7 offset:{r*1024}")
    a("""
    s_mov_b32 s32, 0x05040100
    s_mov_b32 s33, 0x07060302
    v_lshlrev_b32 v3, 13, v0        ; d=2*tid -> d*4096
    s_lshl_b32 s3, s3, 1            ; r0*2 bytes
    v_add_u32 v3, s3, v3
    s_waitcnt lgkmcnt(0)
    """)
    for q in range(8):
        a(f"v_perm_b32 v{48+q}, v{33+2*q}, v{32+2*q}, s32")
        a(f"v_perm_b32 v{56+q}, v{33+2*q}, v{32+2*q}, s33")
    PT_ = os.environ.get('PSCT', '')
    a(f"""
    buffer_store_dwordx4 v[48:51], v3, s[28:31], 0 offen {PT_}
    buffer_store_dwordx4 v[52:55], v3, s[28:31], 0 offen offset:16 {PT_}
    v_add_u32 v3, 0x1000, v3
    buffer_store_dwordx4 v[56:59], v3, s[28:31], 0 offen {PT_}
    buffer_store_dwordx4 v[60:63], v3, s[28:31], 0 offen offset:16 {PT_}
    s_branch L0_fin
    """)
    a(f"""
    L0_swz:
    {"s_add_u32 s2, s2, 112" if HSW else ""}
    s_cmp_ge_u32 s2, 240
    s_cbranch_scc1 L0_zero
    """)
    srd(a, 24, 16, 17, WF, WSZ)
    srd(a, 20, 18, 19, 0, 1792*1024)
    a("""
    s_sub_u32 s3, s2, 128
    s_lshl_b32 s32, s3, 14
    v_lshlrev_b32 v1, 2, v0
    s_add_u32 s33, s32, 0x1000
    s_add_u32 s34, s32, 0x2000
    s_add_u32 s35, s32, 0x3000
    """)
    for e in range(16):
        a(f"buffer_load_dword v{8+e}, v1, s[20:23], s{32+e//4} offen offset:{(e%4)*1024}")
    a(f"""
    v_lshrrev_b32 v2, 4, v0
    v_mul_u32_u24 v2, {RSH}, v2
    v_and_b32 v3, 15, v0
    v_lshl_add_u32 v2, v3, 5, v2
    s_mul_i32 s36, s3, {147*SKEW}
    s_lshr_b32 s36, s36, 12
    s_add_u32 s36, s36, s3
    s_lshl_b32 s36, s36, 10
    s_mov_b32 s37, 0x05040100
    s_mov_b32 s38, 0x07060302
    """)
    for h in range(2):
        a(f"s_waitcnt vmcnt({4*(1-h)})")
        Rr = [4*h, 4*h+1, 4*h+2, 4*h+3, 8+4*h, 9+4*h, 10+4*h, 11+4*h]
        for p in range(4):
            a(f"v_perm_b32 v{32+8*h+p}, v{8+Rr[2*p+1]}, v{8+Rr[2*p]}, s37")
            a(f"v_perm_b32 v{36+8*h+p}, v{8+Rr[2*p+1]}, v{8+Rr[2*p]}, s38")
    for h in range(2):
        a(f"buffer_store_dwordx4 v[{32+8*h}:{35+8*h}], v2, s[24:27], s36 offen offset:{512*h} {os.environ.get('PSCW', '')}")
        a(f"buffer_store_dwordx4 v[{36+8*h}:{39+8*h}], v2, s[24:27], s36 offen offset:{512*h+16} {os.environ.get('PSCW', '')}")
    a("s_branch L0_fin")
    a("L0_zero:")
    a("""
    s_cmp_ge_u32 s2, 241
    s_cbranch_scc1 L0_tab
    """)
    srd(a, 24, 16, 17, FLG, 98304)
    a("""
    v_lshlrev_b32 v1, 4, v0
    v_mov_b32 v4, 0
    v_mov_b32 v5, 0
    v_mov_b32 v6, 0
    v_mov_b32 v7, 0
    """)
    for i in range(24):
        a(f"s_mov_b32 s32, {i*4096}")
        a("buffer_store_dwordx4 v[4:7], v1, s[24:27], s32 offen")
    a("""
    s_branch L0_fin
    L0_tab:
    """)
    if PFN:
        a("""
        s_cmp_ge_u32 s2, 245
        s_cbranch_scc1 L0_pf
        """)
    srd(a, 24, 16, 17, TB, 16384)
    a(f"""
    s_sub_u32 s3, s2, 241
    s_lshl_b32 s32, s3, 11
    v_lshl_add_u32 v1, v0, 3, s32   ; idx
    v_lshrrev_b32 v2, 12, v1        ; sign
    v_and_b32 v3, 4095, v1
    v_lshl_add_u32 v3, v2, 15, v3
    v_add_u32 v3, 0x{TLO:x}, v3
    v_lshlrev_b32 v3, 16, v3
    v_lshlrev_b32 v1, 1, v1
    s_mov_b32 s47, {f32(KB)}
    v_mov_b32 v10, {f32(KA)}
    """)
    for e in range(8): a(f"v_add_u32 v{16+e}, 0x{e<<16:x}, v3")
    gelu8(a, 16, 24)
    for i in range(4): a(f"v_cvt_pk_bf16_f32 v{32+i}, v{24+2*i}, v{25+2*i}")
    a("""
    buffer_store_dwordx4 v[32:35], v1, s[24:27], 0 offen
    L0_fin:
    """)
    if TSALL:
        a("""
        s_waitcnt vmcnt(0)
        s_memrealtime s[96:97]
        s_lshl_b32 s92, s2, 3
        v_mov_b32 v1, s92
        s_waitcnt lgkmcnt(0)
        v_mov_b32 v2, s98
        v_mov_b32 v3, s96
        """)
        srd(a, 88, 16, 17, 25 << 20, 65536)
        a("buffer_store_dwordx2 v[2:3], v1, s[88:91], 0 offen")
    a("""
    L0_exit:
    s_endpgm
    """)
    if PFN:
        a("""
        L0_pf:
        s_load_dwordx4 s[40:43], s[0:1], 64
        s_load_dwordx8 s[48:55], s[0:1], 8
        s_load_dwordx2 s[56:57], s[0:1], 88
        s_sub_u32 s3, s2, 245
        v_lshlrev_b32 v1, 4, v0
        s_waitcnt lgkmcnt(0)
        s_cmp_ge_u32 s3, 112
        s_cbranch_scc1 L0_pf2
        """)
        srd(a, 20, 40, 41, 0, 1792*1024)
        srd(a, 24, 42, 43, 0, 1792*1024)
        a("s_lshl_b32 s32, s3, 14")
        for c in range(4):
            a(f"s_add_u32 s33, s32, {c*4096}")
            a(f"buffer_load_dwordx4 v[{8+8*c}:{11+8*c}], v1, s[20:23], s33 offen")
            a(f"buffer_load_dwordx4 v[{12+8*c}:{15+8*c}], v1, s[24:27], s33 offen")
        if os.environ.get("PFD"):
            srd(a, 28, 18, 19, 0, 1792*1024)
            a("""
            s_add_u32 s34, s3, 5
            s_and_b32 s34, s34, 7           ; xcd
            s_lshr_b32 s35, s3, 4           ; j>>1
            s_lshl_b32 s35, s35, 3
            s_add_u32 s34, s34, s35         ; hw
            s_cmp_ge_u32 s34, 28
            s_cbranch_scc1 L0_pfd
            s_lshl_b32 s34, s34, 16
            s_bfe_u32 s35, s3, 0x10003
            s_lshl_b32 s35, s35, 15
            s_add_u32 s34, s34, s35
            """)
            for c in range(8):
                a(f"s_add_u32 s33, s34, {c*4096}")
                a(f"buffer_load_dwordx4 v[{40+4*c}:{43+4*c}], v1, s[28:31], s33 offen")
            a("L0_pfd:")
        if PFN >= 2:
            srd(a, 28, 16, 17, HB, 8<<20)
            srd(a, 36, 56, 57, 0, SZ2M)
            a("""
            v_lshlrev_b32 v2, 15, v0
            v_lshlrev_b32 v3, 13, v0
            buffer_load_dword v40, v2, s[28:31], 0 offen
            buffer_load_dword v41, v3, s[36:39], 0 offen
            """)
        a("""
        s_waitcnt vmcnt(0)
        s_branch L0_fin
        L0_pf2:
        s_sub_u32 s3, s3, 112
        s_lshl_b32 s60, s3, 13
        """)
        for q in range(4):
            srd(a, 20+4*q, 48+2*q, 49+2*q, 0, 131072)
        for q in range(4):
            for c in range(2):
                a(f"s_add_u32 s61, s60, {c*4096}")
                a(f"buffer_load_dwordx4 v[{8+8*q+4*c}:{11+8*q+4*c}], v1, s[{20+4*q}:{23+4*q}], s61 offen")
        a("""
        s_waitcnt vmcnt(0)
        s_branch L0_fin
        """)

def gelu8(a, G, S):
    for j in range(8): a(f"v_mul_f32_e32 v{S+j}, v{G+j}, v{G+j}")
    for j in range(8): a(f"v_fma_f32 v{S+j}, v{S+j}, s47, v10")
    for j in range(8): a(f"v_mul_f32_e32 v{S+j}, v{S+j}, v{G+j}")
    for j in range(8): a(f"v_exp_f32_e32 v{S+j}, v{S+j}")
    a("s_nop 0")
    for j in range(8): a(f"v_add_f32_e32 v{S+j}, 1.0, v{S+j}")
    for j in range(8): a(f"v_rcp_f32_e32 v{S+j}, v{S+j}")
    a("s_nop 0")
    for j in range(8): a(f"v_mul_f32_e32 v{S+j}, v{S+j}, v{G+j}")

def cpath(a):
    RS = 528
    WB = 16*RS
    TRS = 208
    KH, KL, UB = 0, 7680, 15360
    CB = 32768
    TS(a, 0)
    TR(a, 7)
    if os.environ.get("CPRIO"): a(f"s_setprio {os.environ['CPRIO']}")
    if os.environ.get("CRM"):
        a("""
        s_and_b32 s10, s2, 7
        s_lshl_b32 s10, s10, 3
        s_lshr_b32 s11, s2, 5
        s_add_u32 s10, s10, s11
        s_lshl_b32 s10, s10, 2
        s_bfe_u32 s11, s2, 0x20003
        s_add_u32 s2, s10, s11
        """)
    a("""
    s_load_dwordx8 s[72:79], s[0:1], 8
    s_load_dwordx2 s[80:81], s[0:1], 40
    s_lshl_b32 s10, s2, 1           ; channel c0
    s_lshl_b32 s11, s10, 12
    """)
    if NXT: srd(a, 20, 16, 17, XN, 64*XRS)
    else: srd_dyn(a, 20, 16, 17, XNT, 11, 8192)
    srd_dyn(a, 32, 16, 17, AT, 11, 8192)
    srd(a, 36, 8, 9, 0, 1024)
    a("s_waitcnt lgkmcnt(0)")
    srd(a, 24, 72, 73, 0, 131072)
    srd(a, 28, 74, 75, 0, 131072)
    srd(a, 48, 76, 77, 0, 131072)
    srd(a, 52, 78, 79, 0, 131072)
    srd(a, 56, 80, 81, 0, 1024)
    a(f"""
    s_lshl_b32 s12, s2, 9           ; c0*256 bytes
    v_lshl_add_u32 v2, v15, 1, s12
    s_lshl_b32 s12, s2, 2
    v_lshrrev_b32 v3, 7, v15
    v_lshl_add_u32 v3, v3, 1, s12
    buffer_load_ushort v16, v2, s[24:27], 0 offen
    buffer_load_ushort v17, v2, s[28:31], 0 offen
    buffer_load_ushort v18, v2, s[48:51], 0 offen
    buffer_load_ushort v19, v2, s[52:55], 0 offen
    buffer_load_ushort v20, v3, s[56:59], 0 offen
    """)
    XT0 = 65536 + 16
    def afill():
        a("""
        v_mov_b32 v248, -1
        v_mov_b32 v249, -1
        v_mov_b32 v250, -1
        v_mov_b32 v251, -1
        v_lshlrev_b32 v252, 4, v15
        s_mov_b32 s44, 4096
        buffer_store_dwordx4 v[248:251], v252, s[32:35], 0 offen sc1
        buffer_store_dwordx4 v[248:251], v252, s[32:35], s44 offen sc1
        """)
    if CAF and CFP == 0: afill()
    def xload():
        a(f"""
        v_lshrrev_b32 v238, 5, v15
        v_mul_u32_u24 v238, {XRS}, v238
        v_and_b32 v239, 31, v15
        v_lshl_add_u32 v238, v239, 4, v238
        s_lshr_b32 s46, s2, 2
        s_lshl_b32 s46, s46, 9
        s_and_b32 s47, s2, 3
        s_lshl_b32 s47, s47, 2
        s_add_u32 s46, s46, s47
        s_lshl_b32 s47, s10, 1
        v_mov_b32 v239, s47
        """)
        for i in range(8):
            a(f"s_add_u32 s47, s46, {i*8*XRS}")
            a(f"buffer_load_dword v{240+i}, v238, s[20:23], s47 offen")
        a("buffer_load_ushort v253, v239, s[36:39], 0 offen")
        a("buffer_load_ushort v254, v239, s[36:39], 0 offen offset:2")
    a(f"""
    s_lshr_b32 s14, s3, 1
    s_lshl_b32 s14, s14, 15
    s_and_b32 s15, s3, 1
    s_mul_i32 s15, s15, {WB}
    s_add_u32 s14, s14, s15
    s_add_u32 s14, s14, {UB}
    v_lshl_add_u32 v2, v0, 3, s14
    v_and_b32 v4, 15, v0            ; r / j
    v_lshrrev_b32 v5, 4, v0         ; q
    v_mul_u32_u24 v3, {RS}, v4
    v_lshl_add_u32 v3, v5, 4, v3
    v_add_u32 v3, s14, v3
    v_mul_u32_u24 v60, {4*TRS}, v5
    v_lshl_add_u32 v60, v4, 2, v60
    v_add_u32 v60, s14, v60
    v_mov_b32 v6, 0
    v_cmp_le_u32 vcc, 32, v15
    s_nop 1
    v_addc_co_u32 v6, vcc, 0, v6, vcc
    v_cmp_le_u32 vcc, 64, v15
    s_nop 1
    v_addc_co_u32 v6, vcc, 0, v6, vcc
    v_cmp_le_u32 vcc, 128, v15
    s_nop 1
    v_addc_co_u32 v6, vcc, 0, v6, vcc     ; s
    v_lshlrev_b32 v7, v6, 1
    v_lshrrev_b32 v7, 1, v7
    v_add_u32 v7, -1, v7                  ; half-1
    v_lshlrev_b32 v8, 3, v15              ; l0
    v_lshlrev_b32 v9, 3, v6               ; 8s
    v_lshrrev_b32 v12, v6, 16             ; 16>>s
    v_cmp_eq_u32 vcc, 0, v6
    """)
    for e in range(8):
        a(f"""
        v_add_u32 v10, {e}, v8
        v_lshrrev_b32 v11, v6, v10
        v_and_b32 v11, 1, v11
        v_add3_u32 v11, v10, v7, v11
        v_lshrrev_b32 v11, v6, v11
        v_cndmask_b32 v11, v11, v10, vcc      ; m
        v_lshlrev_b32 v11, v6, v11            ; p
        v_lshrrev_b32 v10, 8, v11
        v_mad_u32_u24 v10, v10, v12, v9       ; 8s + (p>>8)*(16>>s)
        v_and_b32 v13, 15, v11
        v_lshrrev_b32 v13, v6, v13
        v_add_u32 v10, v10, v13               ; col
        v_bfe_u32 v11, v11, 4, 4              ; row
        v_mul_u32_u24 v11, {TRS}, v11
        v_lshl_add_u32 v{52+e}, v10, 2, v11
        """)
    a(f"s_waitcnt vmcnt({2 if CAF and CFP == 0 else 0})")
    TS(a, 1)
    if NXT and XLP == 0: xload()
    a(f"""
    v_lshlrev_b32 v16, 16, v16
    v_lshlrev_b32 v17, 16, v17
    v_lshlrev_b32 v18, 16, v18
    v_lshlrev_b32 v19, 16, v19
    v_lshlrev_b32 v20, 16, v20
    v_mul_f32 v16, {f32(LOG2E)}, v16
    v_mul_f32 v20, {f32(LOG2E)}, v20
    v_exp_f32 v16, v16
    v_exp_f32 v20, v20
    s_nop 0
    v_cvt_pk_bf16_f32 v16, v16, v20
    v_and_b32 v20, 0xffff0000, v16    ; dt
    v_lshlrev_b32 v16, 16, v16
    v_mul_f32 v16, v16, v20
    v_mul_f32 v17, v17, v20
    v_mul_f32 v18, v18, v20
    v_mul_f32 v19, v19, v20
    v_mul_f32 v16, {f32(-LOG2E)}, v16
    v_mul_f32 v17, {f32(1.0/(2*math.pi))}, v17
    v_add_f32 v18, v18, v18
    v_mul_f32 v19, -2.0, v19
    """)
    regs = {"C": 18}
    nxt = [184]
    def R(name):
        if name not in regs:
            regs[name] = nxt[0]; nxt[0] += 2
            assert nxt[0] <= 250
        return regs[name]
    def pr(r): return f"v[{r}:{r+1}]"
    anch = [("W16", 16, 1), ("W64", 64, 1), ("W128", 128, 1), ("Z1", 1, 0), ("Z4", 4, 0), ("Z8", 8, 0), ("Z256", 256, 0), ("Z512", 512, 0), ("Z1024", 1024, 0)]
    for k, (nm, p, cj) in enumerate(anch):
        d = R(nm); t = 20 + 2*k
        a(f"v_mul_f32 v{t}, {f32(float(p))}, v16")
        a(f"v_mul_f32 v{t+1}, {f32(float(p))}, v17")
        a(f"v_exp_f32 v{t}, v{t}")
        a(f"v_cos_f32 v{d}, v{t+1}")
        a(f"v_sin_f32 v{d+1}, {'-' if cj else ''}v{t+1}")
    a("s_nop 0")
    for k, (nm, p, cj) in enumerate(anch):
        d = R(nm); t = 20 + 2*k
        a(f"v_mul_f32_e32 v{d}, v{d}, v{t}")
        a(f"v_mul_f32_e32 v{d+1}, v{d+1}, v{t}")
    tcnt = [0]
    def cmul(d, x, y):
        d, x, y = R(d), R(x), R(y)
        assert d != x and d != y
        a(f"v_mul_f32_e32 v{d}, v{x+1}, v{y+1}")
        a(f"v_mul_f32_e32 v{d+1}, v{x}, v{y+1}")
        a(f"v_fma_f32 v{d}, v{x}, v{y}, -v{d}")
        a(f"v_fmac_f32_e32 v{d+1}, v{x+1}, v{y}")
    scnt = [0]
    nds = [0]
    def put(nm, row):
        v = R(nm)
        h = 44 + 2*(scnt[0] % 2); u = 48 + 2*(scnt[0] % 2); scnt[0] += 1
        a(f"""
        v_cvt_pk_bf16_f32 v{h}, v{v}, v{v+1}
        v_lshlrev_b32 v{u}, 16, v{h}
        v_and_b32 v{u+1}, 0xffff0000, v{h}
        v_sub_f32_e32 v{u}, v{v}, v{u}
        v_sub_f32_e32 v{u+1}, v{v+1}, v{u+1}
        v_cvt_pk_bf16_f32 v{h+1}, v{u}, v{u+1}
        ds_write_b64 v2, {pr(h)} offset:{row*RS}
        """)
        nds[0] += 1
    A1, A2, BO, ACC = 64, 96, 128, 160
    cmul("w2", "W16", "W16"); cmul("w3", "w2", "W16"); cmul("W192", "W128", "W64")
    regs["w1"] = regs["W16"]
    for aa in range(4):
        if aa == 0: regs["CW"] = regs["C"]
        else:
            regs["CW"] = R("CWt"); cmul("CWt", "C", f"W{64*aa}")
        put("CW", 4*aa)
        for b in range(1, 4):
            nm = f"T{b%2}"
            cmul(nm, "CW", f"w{b}"); put(nm, 4*aa+b)
    for ks in range(8):
        a(f"ds_read_b128 v[{A1+4*ks}:{A1+4*ks+3}], v3 offset:{ks*64}")
        a(f"ds_read2_b32 v[{A2+4*ks}:{A2+4*ks+1}], v3 offset0:{ks*16+1} offset1:{ks*16}")
        a(f"ds_read2_b32 v[{A2+4*ks+2}:{A2+4*ks+3}], v3 offset0:{ks*16+3} offset1:{ks*16+2}")
        nds[0] += 3
    def breads():
        for ks in range(8):
            a(f"ds_read_b128 v[{BO+4*ks}:{BO+4*ks+3}], v3 offset:{ks*64}")
            nds[0] += 1
        return nds[0]
    def mfmas(tau, mark):
        n = nds[0] - mark
        assert n <= 15
        a(f"s_waitcnt lgkmcnt({n})")
        for ks in range(8):
            for h, A_ in enumerate((A1, A2)):
                c = ACC + tau*8 + h*4
                cin = "0" if ks == 0 else f"v[{c}:{c+3}]"
                a(f"v_mfma_f32_16x16x32_bf16 v[{c}:{c+3}], v[{A_+4*ks}:{A_+4*ks+3}], v[{BO+4*ks}:{BO+4*ks+3}], {cin}")
    a(f"v_mov_b32 v{R('Z0')}, 1.0")
    a(f"v_mov_b32 v{R('Z0')+1}, 0")
    cmul("Z2", "Z1", "Z1"); cmul("Z3", "Z2", "Z1"); cmul("Z12", "Z8", "Z4")
    for aa in range(4):
        put(f"Z{4*aa}", 4*aa)
        for b in range(1, 4):
            j = 4*aa+b
            if aa > 0:
                nm = f"Z{j}" if j % 2 == 0 else f"T{(j//2)%2}"
                cmul(nm, f"Z{4*aa}", f"Z{b}")
            else: nm = f"Z{j}"
            put(nm, j)
    mark = breads()
    if CAF and CFP == 1: afill()
    if NXT and XLP == 1: xload()
    cmul("Z768", "Z512", "Z256")
    vals = [("Z256", 2*j) for j in range(8)] + [("Z512", 4*r) for r in range(4)] + [("Z768", 4*r) for r in range(4)]
    for j, (bs, e) in enumerate(vals):
        if e == 0: nm = bs
        else:
            nm = f"T{j%2}"; cmul(nm, bs, f"Z{e}")
        put(nm, j)
        if j == 3: mfmas(0, mark)
    mark = breads()
    if NXT and XLP == 2: xload()
    cmul("Z1280", "Z1024", "Z256"); cmul("Z1536", "Z1024", "Z512"); cmul("Z1792", "Z1024", "Z768"); cmul("Z2048", "Z1024", "Z1024")
    vals = [(f"Z{1024+256*c}", 8*e) for c in range(4) for e in range(2)] + [("Z2048", 0)]
    for j, (bs, e) in enumerate(vals):
        if e == 0: nm = bs
        else:
            nm = f"T{j%2}"; cmul(nm, bs, f"Z{e}")
        put(nm, j)
        if j == 3: mfmas(1, mark)
    mark = breads()
    LR = [dict(U=184, Um=188, D=253 if NXT else 190, Ue=192), dict(U=200, Um=204, D=254 if NXT else 206, Ue=208)]
    if CAF and not NXT: a("s_waitcnt vmcnt(0)")
    a(f"""
    v_lshlrev_b32 v1, 4, v15
    v_add_u32 v4, -8, v1
    s_lshl_b32 s12, s10, 1
    v_mov_b32 v8, s12
    s_mov_b32 s43, 0
    s_mov_b32 s44, 4096
    v_and_b32 v5, 31, v0
    v_lshrrev_b32 v6, 5, v0
    s_lshr_b32 s13, s3, 1
    s_lshl_b32 s13, s13, 11
    s_and_b32 s14, s3, 1
    s_lshl_b32 s14, s14, 5
    s_add_u32 s13, s13, s14
    v_lshlrev_b32 v13, 6, v5
    v_lshl_add_u32 v13, v6, 4, v13
    v_add_u32 v13, s13, v13
    """)
    for c in range(0 if NXT else 2):
        R_ = LR[c]
        a(f"""
        buffer_load_dwordx4 v[{R_['U']}:{R_['U']+3}], v1, s[20:23], s{43+c} offen
        buffer_load_dwordx2 v[{R_['Um']}:{R_['Um']+1}], v4, s[20:23], s{43+c} offen
        """)
    for c in range(0 if NXT else 2):
        R_ = LR[c]
        a(f"""
        buffer_load_ushort v{R_['D']}, v8, s[36:39], 0 offen offset:{2*c}
        buffer_load_dwordx4 v[{R_['Ue']}:{R_['Ue']+3}], v13, s[20:23], s{43+c} offen
        """)
    mfmas(2, mark)
    TS(a, 2)
    if os.environ.get("CPRIOI"): a(f"s_setprio {os.environ['CPRIOI']}")
    if NXT:
        a(f"""
        s_waitcnt vmcnt(0)
        v_lshlrev_b32 v239, 1, v15
        v_add_u32 v239, {XT0}, v239
        v_add_u32 v252, {XT0-8}, v1
        v_add_u32 v255, {XT0}, v13
        """)
        for i in range(8):
            a(f"ds_write_b16 v239, v{240+i} offset:{i*512}")
            a(f"ds_write_b16_d16_hi v239, v{240+i} offset:{i*512+4112}")
    a(f"""
    v_mov_b32 v40, 0
    v_mov_b32 v41, 0
    v_mov_b32 v42, 0
    v_mov_b32 v43, 0
    v_cmp_gt_u32 vcc, 160, v15
    s_and_saveexec_b64 s[40:41], vcc
    ds_write_b128 v1, v[40:43] offset:{KH}
    ds_write_b128 v1, v[40:43] offset:{KL}
    ds_write_b128 v1, v[40:43] offset:{CB+KH}
    ds_write_b128 v1, v[40:43] offset:{CB+KL}
    s_mov_b64 exec, s[40:41]
    s_nop 3
    """)
    for tau in range(3):
        for r in range(4):
            c = ACC + tau*8 + r
            a(f"v_add_f32 v{c}, v{c}, v{c+4}")
            a(f"ds_write_b32 v60, v{c} offset:{r*TRS+tau*64}")
    a(f"""
    v_lshrrev_b32 v7, 2, v15
    v_mul_u32_u24 v7, 80, v7
    v_and_b32 v12, 3, v15
    v_lshl_add_u32 v7, v12, 4, v7
    v_lshrrev_b32 v9, 2, v15
    v_mul_u32_u24 v9, 4160, v9
    v_lshl_add_u32 v9, v12, 4, v9
    v_sub_u32 v12, 255, v15
    v_lshlrev_b32 v12, 4, v12
    s_mov_b32 s42, 0xffff
    ; A base
    v_sub_u32 v3, 3, v5
    v_and_b32 v3, 3, v3             ; r
    v_mul_u32_u24 v1, 4160, v3
    v_add_u32 v3, v3, v5            ; b+r
    v_lshlrev_b32 v3, 1, v3
    v_sub_u32 v1, v1, v3
    v_lshl_add_u32 v1, v6, 4, v1
    s_lshl_b32 s14, s3, 6
    s_sub_u32 s15, {UB+4094-3840}, s14
    v_add_u32 v1, s15, v1
    ; B base
    v_mul_u32_u24 v2, 80, v5
    v_lshl_add_u32 v2, v6, 4, v2
    s_sub_u32 s14, 3, s3
    s_mul_i32 s14, s14, 80
    v_add_u32 v2, s14, v2
    s_waitcnt lgkmcnt(0)
    s_barrier
    """)
    if NXT:
        for c in range(2):
            R_ = LR[c]
            a(f"""
            ds_read_b128 v[{R_['U']}:{R_['U']+3}], v252 offset:{8+4112*c}
            ds_read_b64 v[{R_['Um']}:{R_['Um']+1}], v252 offset:{4112*c}
            ds_read_b128 v[{R_['Ue']}:{R_['Ue']+3}], v255 offset:{4112*c}
            """)
    if CAF:
        a("""
        s_cmp_lg_u32 s3, 0
        s_cbranch_scc1 Lc_nf
        """)
        srd(a, 24, 16, 17, FLG, 98304)
        a("""
        s_lshr_b32 s14, s2, 5
        s_lshl_b32 s14, s14, 8
        s_and_b32 s15, s2, 31
        s_lshl_b32 s15, s15, 2
        s_add_u32 s14, s14, s15
        s_add_u32 s14, s14, 65536
        v_mov_b32 v248, 1
        v_mov_b32 v249, 0
        s_mov_b64 exec, 1
        buffer_store_dword v248, v249, s[24:27], s14 offen sc1
        s_mov_b64 exec, -1
        Lc_nf:
        """)
    for c in range(2):
        for e in range(8):
            a(f"ds_read2st64_b32 v[{64+c*16+2*e}:{65+c*16+2*e}], v{52+e} offset0:{128*c+60} offset1:{128*c+93}")
    for c in range(2):
        a(f"s_waitcnt lgkmcnt({8*(1-c)})")
        for e in range(8):
            a(f"v_add_f32 v{64+c*16+2*e}, v{64+c*16+2*e}, v{65+c*16+2*e}")
        if c == 1:
            a("s_barrier")
        for i in range(4):
            k0_, k1_ = 64+c*16+4*i, 66+c*16+4*i
            a(f"""
            v_cvt_pk_bf16_f32 v{32+8*c+i}, v{k0_}, v{k1_}
            v_lshlrev_b32 v20, 16, v{32+8*c+i}
            v_and_b32 v21, 0xffff0000, v{32+8*c+i}
            v_sub_f32 v20, v{k0_}, v20
            v_sub_f32 v21, v{k1_}, v21
            v_cvt_pk_bf16_f32 v{36+8*c+i}, v20, v21
            """)
        a(f"ds_write_b128 v7, v[{32+8*c}:{35+8*c}] offset:{c*CB+KH+32*80}")
        a(f"ds_write_b128 v7, v[{36+8*c}:{39+8*c}] offset:{c*CB+KL+32*80}")
    a(f"""
    v_mov_b32 v16, 0
    v_mov_b32 v17, 0
    v_mov_b32 v18, 0
    v_mov_b32 v19, 0
    v_cmp_gt_u32 vcc, 16, v15
    s_and_saveexec_b64 s[40:41], vcc
    ds_write_b128 v9, v[16:19] offset:{UB+4096}
    ds_write_b128 v9, v[16:19] offset:{CB+UB+4096}
    s_mov_b64 exec, s[40:41]
    v_cmp_eq_u32 vcc, 0, v15
    """)
    for c in range(2):
        R_ = LR[c]
        a(f"s_waitcnt vmcnt({4+2*(1-c)})" if not NXT else "s_nop 1")
        if c == 1 or NXT:
            a(f"v_cndmask_b32_e64 v{R_['Um']}, v{R_['Um']}, 0, vcc")
            a(f"v_cndmask_b32_e64 v{R_['Um']+1}, v{R_['Um']+1}, 0, vcc")
        S = {-2: R_['Um'], -1: R_['Um']+1, 0: R_['U'], 1: R_['U']+1, 2: R_['U']+2, 3: R_['U']+3}
        for r in range(4):
            d = 96 + 16*c + 4*r
            for j in range(4):
                if r % 2 == 0:
                    p = 3 - r//2 - j
                    a(f"v_alignbit_b32 v{d+j}, v{S[p]}, v{S[p]}, 16")
                else:
                    p = (7-r)//2 - j
                    a(f"v_bfi_b32 v{d+j}, s42, v{S[p]}, v{S[p-1]}")
            a(f"ds_write_b128 v12, v[{d}:{d+3}] offset:{c*CB+UB+r*4160}")
    a("s_waitcnt lgkmcnt(0)")
    a("s_barrier")
    TS(a, 3)
    if os.environ.get("CPRIO2"): a(f"s_setprio {os.environ['CPRIO2']}")
    steps = [(c, i, ks) for c in range(2) for i in range(8) for ks in range(2)]
    def loads(n):
        c, i, ks = steps[n]
        af = 16 + (n % 2)*24; bf_ = af + 8
        for z in range(2):
            off = c*CB + 64*(60-4*(i+8*z)) + 32*ks
            a(f"ds_read_b64 v[{af+4*z}:{af+4*z+1}], v1 offset:{off}")
            a(f"ds_read_b64 v[{af+4*z+2}:{af+4*z+3}], v1 offset:{off+8}")
            for blk in ([0] if z == 0 else [1]):
                for hl in range(2):
                    img = KH if hl == 0 else KL
                    o = c*CB + img + (32+32*blk-4*i)*80 + 32*ks - 240
                    r_ = bf_ + (blk*2+hl)*4
                    a(f"ds_read_b128 v[{r_}:{r_+3}], v2 offset:{o}")
        return 8
    loads(0)
    NST = len(steps)
    for n in range(NST):
        c, i, ks = steps[n]
        if n+1 < NST:
            cn = loads(n+1)
            a(f"s_waitcnt lgkmcnt({cn})")
        else:
            a("s_waitcnt lgkmcnt(0)")
        af = 16 + (n % 2)*24; bf_ = af + 8
        first = (i == 0 and ks == 0)
        a0, a1 = 64 + c*32, 80 + c*32
        for j, (ac, z, blk, hl) in enumerate([(a0,0,0,0), (a1,1,0,0), (a0,0,0,1), (a1,0,1,0), (a1,1,0,1), (a1,0,1,1)]):
            r_ = bf_ + (blk*2+hl)*4
            cin = "0" if (first and j < 2) else f"v[{ac}:{ac+15}]"
            a(f"v_mfma_f32_32x32x16_bf16 v[{ac}:{ac+15}], v[{af+4*z}:{af+4*z+3}], v[{r_}:{r_+3}], {cin}")
    TS(a, 4)
    if os.environ.get("CPRIO3"): a(f"s_setprio {os.environ['CPRIO3']}")
    srd(a, 24, 16, 17, FLG, 98304)
    a("""
    s_nop 7
    s_barrier
    s_lshl_b32 s14, s3, 13
    v_lshlrev_b32 v1, 4, v0
    v_add_u32 v2, s14, v1
    """)
    for c in range(2):
        for qq in range(8):
            a(f"ds_write_b128 v2, v[{64+32*c+4*qq}:{67+32*c+4*qq}] offset:{c*CB+qq*1024}")
    a("""
    s_lshl_b32 s14, s3, 11
    v_lshlrev_b32 v1, 4, v5
    v_lshl_add_u32 v1, v6, 10, v1
    v_add_u32 v1, s14, v1
    s_lshr_b32 s45, s2, 5
    s_lshr_b32 s14, s3, 1
    s_lshl_b32 s14, s14, 7
    s_add_u32 s45, s45, s14
    s_add_u32 s45, s45, 128
    s_lshl_b32 s45, s45, 8
    s_and_b32 s14, s2, 31
    s_lshl_b32 s14, s14, 1
    s_and_b32 s15, s3, 1
    s_add_u32 s14, s14, s15
    s_lshl_b32 s14, s14, 2
    s_add_u32 s45, s45, s14
    s_waitcnt lgkmcnt(0)
    s_barrier
    """)
    for c in range(2):
        for ww in range(4):
            for e in range(2):
                r_ = 64 + c*32 + (ww*2+e)*4
                a(f"ds_read_b128 v[{r_}:{r_+3}], v1 offset:{c*CB+ww*8192+e*512}")
    a("s_waitcnt lgkmcnt(0) vmcnt(0)")
    for c in range(2):
        R_ = LR[c]
        a(f"v_lshlrev_b32 v{R_['D']}, 16, v{R_['D']}")
        o = 56 + 4*c
        for e in range(2):
            for j in range(4):
                r_ = 64 + c*32 + e*4 + j
                a(f"v_add_f32 v{r_}, v{r_}, v{r_+8}")
                a(f"v_add_f32 v{r_+16}, v{r_+16}, v{r_+24}")
                a(f"v_add_f32 v{r_}, v{r_}, v{r_+16}")
            y = 64 + c*32 + e*4
            for p in range(2):
                uu = R_['Ue'] + 2*e + p
                a(f"""
                v_cvt_pk_bf16_f32 v48, v{y+2*p}, v{y+2*p+1}
                v_lshlrev_b32 v49, 16, v48
                v_and_b32 v50, 0xffff0000, v48
                v_lshlrev_b32 v51, 16, v{uu}
                v_and_b32 v52, 0xffff0000, v{uu}
                v_mul_f32 v51, v51, v{R_['D']}
                v_mul_f32 v52, v52, v{R_['D']}
                v_cvt_pk_bf16_f32 v48, v51, v52
                v_lshlrev_b32 v51, 16, v48
                v_and_b32 v52, 0xffff0000, v48
                v_add_f32 v49, v49, v51
                v_add_f32 v50, v50, v52
                v_cvt_pk_bf16_f32 v{o+2*e+p}, v49, v50
                """)
        a(f"buffer_store_dwordx4 v[{o}:{o+3}], v13, s[32:35], s{43+c} offen sc1")
    TS(a, 5)
    a(f"""
    {"s_waitcnt vmcnt(0)" if TSON else ""}
    """)
    TS(a, 6)
    TR(a, 9)
    TSDUMP(a, 10, "c")
    a("s_endpgm")

E = os.environ.get
NBR, NBL = 12, 8
XS = 11
def breg(j): return 160 if j == 11 else 168 + ((j + 10) % 11)*8
def kk(j): return (j//2)*4 + (j % 2) if j < 14 else ((j-14)//2)*4 + 2 + (j % 2)
def g2_early(a):
    srd(a, 84, 16, 17, WF, (FLG - WF + 98304) if HSW else WSZ)
    a(f"""
    s_and_b32 s44, s2, 7
    s_lshl_b32 s44, s44, 2
    s_bfe_u32 s45, s2, 0x20003
    s_add_u32 s44, s44, s45         ; tt
    s_lshr_b32 s45, s2, 5           ; dt
    s_mul_i32 s14, s3, {WS_*1024}
    s_mul_i32 s18, s44, {2*RSH}
    s_add_u32 s18, s18, s14
    s_mul_i32 s19, s45, {2*RSH}
    s_add_u32 s19, s19, s14
    s_lshl_b32 s43, s44, 2
    s_add_u32 s43, s43, s3
    s_lshl_b32 s43, s43, 8
    s_lshl_b32 s61, s3, 14
    s_add_u32 s8, s61, 8192
    s_cmp_eq_u32 s3, 0
    s_cselect_b32 s61, 73728, s61
    v_lshlrev_b32 v4, 4, v0         ; lane*16
    v_add_u32 v5, {RSH}, v4
    s_lshr_b32 s4, s2, 3
    s_lshl_b32 s14, s3, 5
    s_add_u32 s4, s4, s14
    s_lshl_b32 s4, s4, 8
    s_add_u32 s4, s4, {FLG - WF + 32768}
    """)
FST = int(E("FST", "1"))
WFCHK = """v_cmp_ne_u32_e64 s[14:15], 0, v{vr}
    s_nop 1
    s_cmp_eq_u32 s14, 0x0fffffff""" if FST else """v_readfirstlane_b32 s14, v{vr}
    s_cmp_ge_u32 s14, 28"""
WFV3 = "v_lshlrev_b32 v3, 2, v0" if FST else "v_mov_b32 v3, 0"
def wfpoll(a, tag, vr, vz):
    a(f"""
    s_mov_b32 s9, 0
    Lp_{tag}:
    buffer_load_dword v{vr}, v{vz}, s[84:87], s4 offen sc1
    s_waitcnt vmcnt(0)
    {WFCHK.format(vr=vr)}
    s_cbranch_scc1 Lpd_{tag}
    s_add_u32 s9, s9, 1
    s_cmp_ge_u32 s9, {POLL_LIMIT}
    s_cbranch_scc1 Lpd_{tag}
    s_sleep 4
    s_branch Lp_{tag}
    Lpd_{tag}:
    """)
def g2_late(a):
    srd(a, 32, 16, 17, FLG, 98304)
    srd(a, 36, 16, 17, AT, SZ2M)
    srd(a, 48, 56, 57, 0, SZ2M)
    srd(a, 52, 58, 59, 0, SZ2M)
def g2_b1(a, st, cb):
    r = breg(st) + cb*4
    if cb == 0: a(f"s_add_u32 s14, s19, {kk(st)*1024}")
    a(f"buffer_load_dwordx4 v[{r}:{r+3}], v{4+cb}, s[84:87], s14 offen")
def g2_bpre_lds(a, q=None):
    for j in range(NBL):
        st = NBR + j
        a(f"s_add_u32 s14, s19, {kk(st)*1024}")
        for cb in range(2):
            c = j*2+cb
            a(f"s_add_u32 m0, s{61 if c < 8 else 8}, {(c%8)*1024}")
            a("s_nop 0")
            a(f"buffer_load_dwordx4 v{4+cb}, s[84:87], s14 offen lds")
            if q is not None: q.append(("bl", st))

def poll(a, tag, soff, target, off=0, slp=2):
    a(f"""
    s_mov_b32 s9, 0
    Lp_{tag}:
    buffer_load_dword v7, v6, s[32:35], s{soff} offen offset:{off} sc1
    s_waitcnt vmcnt(0)
    v_readfirstlane_b32 s14, v7
    s_add_u32 s9, s9, 1
    s_cmp_ge_u32 s14, {target}
    s_cbranch_scc1 Lpd_{tag}
    s_cmp_ge_u32 s9, {POLL_LIMIT}
    s_cbranch_scc1 Lpd_{tag}
    s_sleep {slp}
    s_branch Lp_{tag}
    Lpd_{tag}:
    """)

def gemm2(a):
    a("L1_g2:")
    if E("PRIO2"): a(f"s_setprio {E('PRIO2')}")
    a("v_mov_b32 v6, 0")
    a("s_barrier")
    poll(a, "h", 43, 7)
    TS(a, 9)
    NS = 28
    q = []
    def wait_for(tags):
        idx = max(i for i, t in enumerate(q) if t in tags)
        n = len(q) - 1 - idx
        assert n <= 63
        a(f"s_waitcnt vmcnt({n})")
    free = [96 + 8*i for i in range(8)]
    pend = []
    for st in range(NS):
        pend.append(("A", st))
        if st >= NBR + NBL: pend.append(("B", st))
    loc = {}
    for st in range(NBR): loc[("B", st)] = breg(st)
    fb = [False]
    def issue():
        while pend and free:
            k, st = pend[0]
            if k == "A" and st >= 14 and not fb[0]:
                fb[0] = True
                wait_for([("F", 1)])
                a(f"""
                v_readfirstlane_b32 s14, v7
                s_cmp_ge_u32 s14, 7
                s_cbranch_scc1 Lpd_hb
                """)
                poll(a, "hb", 43, 7, off=128)
            pend.pop(0)
            r = free.pop(0)
            loc[(k, st)] = r
            a(f"s_add_u32 s41, s{18 if k == 'A' else 19}, {kk(st)*1024}")
            for j in range(2):
                a(f"buffer_load_dwordx4 v[{r+4*j}:{r+4*j+3}], v{4+j}, s[{28 if k == 'A' else 84}:{31 if k == 'A' else 87}], s41 offen")
                q.append((k, st))
    issue()
    FBI = int(E("FBI", "-1"))
    def fbload():
        a("buffer_load_dword v7, v6, s[32:35], s43 offen offset:128 sc1")
        q.append(("F", 1))
    if FBI < 0: fbload()
    a(f"""
    v_and_b32 v8, 15, v0
    v_lshrrev_b32 v9, 4, v0         ; dg
    s_lshl_b32 s62, s44, 6
    s_lshl_b32 s63, s45, 6
    s_lshl_b32 s14, s3, 4
    v_add_u32 v10, s14, v8          ; t local
    v_add_u32 v11, s62, v10
    v_lshlrev_b32 v13, 10, v11
    v_lshl_add_u32 v13, v9, 4, v13
    s_lshl_b32 s15, s63, 1
    v_add_u32 v13, s15, v13
    v_lshrrev_b32 v12, 3, v0
    v_add_u32 v12, s14, v12
    v_add_u32 v12, s63, v12
    v_lshlrev_b32 v12, 12, v12
    v_and_b32 v11, 7, v0
    v_lshl_add_u32 v12, v11, 4, v12
    s_lshl_b32 s15, s62, 1
    v_add_u32 v12, s15, v12
    s_lshl_b32 s20, s3, 11
    s_add_u32 s20, s20, 65536
    s_mov_b32 s21, 32768
    s_lshl_b32 s14, s44, 3
    s_add_u32 s45, s45, s14
    s_add_u32 s45, s45, 128
    s_lshl_b32 s45, s45, 8
    v_and_b32 v11, 31, v0
    v_lshrrev_b32 v14, 5, v0
    v_xor_b32 v14, v14, v8
    v_lshlrev_b32 v14, 4, v14
    v_lshl_add_u32 v14, v11, 8, v14
    s_lshl_b32 s14, s3, 14
    v_add_u32 v14, s14, v14
    v_lshlrev_b32 v15, 1, v9
    v_xor_b32 v15, v15, v8
    v_lshlrev_b32 v15, 4, v15
    v_lshl_add_u32 v15, v10, 8, v15
    v_lshrrev_b32 v1, 2, v8
    v_lshl_add_u32 v1, v9, 3, v1
    v_lshlrev_b32 v1, 7, v1
    v_and_b32 v11, 3, v0
    v_lshl_add_u32 v1, v11, 3, v1
    s_lshl_b32 s14, s3, 5
    s_add_u32 s14, s14, 65536
    v_add_u32 v1, s14, v1
    v_add_u32 v2, s61, v4
    v_add_u32 v3, s8, v4
    """)
    if CAF:
        a("""
        s_lshl_b32 s45, s63, 2
        s_add_u32 s45, s45, 65536
        v_lshlrev_b32 v9, 2, v0
        buffer_load_dword v10, v9, s[32:35], s45 offen sc1
        """)
        q.append(("Z", 0))
    ACC = 16
    X_R = 248
    def acc(cb, rb): return ACC + (cb*2+rb)*16
    def ldsb(st):
        j = st - NBR
        r = 80 + 8*(st % 2)
        loc[("B", st)] = r
        vb = 2 if j < 4 else 3
        a(f"ds_read_b128 v[{r}:{r+3}], v{vb} offset:{((2*j)%8)*1024}")
        a(f"ds_read_b128 v[{r+4}:{r+7}], v{vb} offset:{((2*j+1)%8)*1024}")
    def atload(r):
        for j in range(2):
            a(f"buffer_load_dwordx4 v[{r+4*j}:{r+4*j+3}], v12, s[36:39], {'0' if j == 0 else 's21'} offen sc1")
            q.append(("T", 0))
    def atchk(r):
        a(f"""
        v_max3_u32 v11, v{r}, v{r+1}, v{r+2}
        v_max3_u32 v7, v{r+3}, v{r+4}, v{r+5}
        v_max3_u32 v11, v11, v{r+6}, v{r+7}
        v_max_u32 v11, v11, v7
        v_cmp_eq_u32 vcc, {'-1' if not E("NOC") else '0x12345'}, v11
        s_nop 1
        s_cmp_eq_u64 vcc, 0
        """)
    FPOLL, FCHK = int(E("FPOLL", "18")), int(E("FCHK", "25"))
    TR_ = [None]
    for st in range(NS):
        lds_next = NBR <= st+1 < NBR+NBL
        if lds_next: ldsb(st+1)
        tags = [("A", st)] + ([("B", st)] if st >= NBR+NBL else [])
        wait_for(tags)
        if NBR <= st < NBR+NBL: a(f"s_waitcnt lgkmcnt({2 if lds_next else 0})")
        for rb in range(2):
            for cb in range(2):
                c = acc(cb, rb); x = loc[("A", st)] + 4*rb; y = loc[("B", st)] + 4*cb
                cin = "0" if st == 0 else f"v[{c}:{c+15}]"
                a(f"v_mfma_f32_32x32x16_bf16 v[{c}:{c+15}], v[{y}:{y+3}], v[{x}:{x+3}], {cin}")
        free.append(loc[("A", st)])
        if (st < NBR and loc[("B", st)] < X_R) or st >= NBR+NBL: free.append(loc[("B", st)])
        if st == FBI: fbload()
        issue()
        if st == FPOLL:
            assert fb[0] and not pend
            TR_[0] = free.pop(0)
            for j in range(2):
                a(f"buffer_load_dwordx4 v[{X_R+4*j}:{X_R+4*j+3}], v13, s[48:51], 0 offen offset:{64*j}")
                q.append(("X", 0))
            if CAF:
                wait_for([("Z", 0)])
                a(f"""
                s_mov_b32 s9, 0
                Lp_af:
                v_cmp_ne_u32 vcc, 0, v10
                s_nop 1
                s_cmp_eq_u32 vcc_lo, -1
                s_cbranch_scc1 Lpd_af
                s_add_u32 s9, s9, 1
                s_cmp_ge_u32 s9, {POLL_LIMIT}
                s_cbranch_scc1 Lpd_af
                s_sleep 4
                buffer_load_dword v10, v9, s[32:35], s45 offen sc1
                s_waitcnt vmcnt(0)
                s_branch Lp_af
                Lpd_af:
                """)
            atload(TR_[0])
        if st == FCHK:
            wait_for([("T", 0)])
            atchk(TR_[0])
            a("s_cselect_b32 s22, 0, 1")
    assert not pend
    TS(a, 10)
    a("s_nop 15")
    for cb in range(2):
        for rb in range(2):
            for i in range(4):
                c = acc(cb, rb) + 4*i
                dq = cb*8 + 2*i
                if dq == 0: vv = 14
                else:
                    vv = 11
                    a(f"v_xor_b32 v11, {dq*16}, v14")
                a(f"ds_write_b128 v{vv}, v[{c}:{c+3}] offset:{rb*8192}")
    a(f"""
    s_cmp_eq_u32 s22, 0
    s_cbranch_scc1 La_ok
    s_mov_b32 s9, 0
    Lp_a:
    """)
    atload(TR_[0])
    a("s_waitcnt vmcnt(0)")
    atchk(TR_[0])
    a(f"""
    s_cbranch_scc1 La_ok
    s_add_u32 s9, s9, 1
    s_cmp_ge_u32 s9, {POLL_LIMIT}
    s_cbranch_scc1 La_ok
    s_sleep {E("ASLP", "1")}
    s_branch Lp_a
    """)
    a("La_ok:")
    a("v_add_u32 v11, s20, v4")
    for j in range(2):
        a(f"ds_write_b128 v11, v[{TR_[0]+4*j}:{TR_[0]+4*j+3}] offset:{j*1024}")
    a("""
    v_xor_b32 v11, 16, v15
    v_xor_b32 v10, 128, v15
    v_xor_b32 v9, 144, v15
    s_waitcnt vmcnt(0) lgkmcnt(0)
    s_barrier
    """)
    AT_R = 80
    va = [15, 11, 10, 9]
    for j in range(2):
        for ww in range(4):
            for hh in range(2):
                r = 16 + j*32 + ww*8 + hh*4
                a(f"ds_read_b128 v[{r}:{r+3}], v{va[j*2+hh]} offset:{ww*16384}")
        for hh in range(2):
            a(f"ds_read_b64_tr_b16 v[{AT_R+4*j+2*hh}:{AT_R+4*j+2*hh+1}], v1 offset:{(32*j+4*hh)*128}")
    for j in range(2):
        a(f"s_waitcnt lgkmcnt({10*(1-j)})")
        b = 16 + j*32
        for e in range(8):
            a(f"v_add_f32 v{b+e}, v{b+e}, v{b+8+e}")
            a(f"v_add_f32 v{b+16+e}, v{b+16+e}, v{b+24+e}")
        for p in range(4):
            at = AT_R + 4*j + p; x0 = X_R + 4*j + p
            a(f"""
            v_lshlrev_b32 v{b+8+2*p}, 16, v{at}
            v_and_b32 v{b+9+2*p}, 0xffff0000, v{at}
            v_lshlrev_b32 v{b+24+2*p}, 16, v{x0}
            v_and_b32 v{b+25+2*p}, 0xffff0000, v{x0}
            """)
        for e in range(8):
            a(f"v_add_f32 v{b+e}, v{b+e}, v{b+16+e}")
            a(f"v_add_f32 v{b+8+e}, v{b+8+e}, v{b+24+e}")
        for e in range(8):
            a(f"v_cvt_pk_bf16_f32 v{b+e}, 0, v{b+e}")
            a(f"v_cvt_pk_bf16_f32 v{b+8+e}, 0, v{b+8+e}")
        for e in range(8):
            a(f"v_add_f32 v{b+e}, v{b+e}, v{b+8+e}")
        for p in range(4):
            a(f"v_cvt_pk_bf16_f32 v{b+16+p}, v{b+2*p}, v{b+2*p+1}")
        a(f"buffer_store_dwordx4 v[{b+16}:{b+19}], v13, s[52:55], 0 offen offset:{64*j}")
    if TSON: a("s_waitcnt vmcnt(0)")
    TS(a, 11)
    TSDUMP(a, 12, "g")
    a("s_endpgm")

SLOW = []
MAP0 = """
    s_lshr_b32 s12, s2, 3
    s_mul_i32 s13, s12, 37
    s_lshr_b32 s13, s13, 8          ; q/7
    s_mul_i32 s14, s13, 7
    s_sub_u32 s14, s12, s14         ; q%7
    s_and_b32 s15, s2, 3
    s_mov_b32 s97, s15              ; ct/7
    s_mul_i32 s15, s15, 7
    s_add_u32 s10, s15, s14         ; ct
    s_bfe_u32 s15, s2, 0x10002
    s_lshl_b32 s15, s15, 2
    s_add_u32 s11, s15, s13         ; rt
"""
def gemm1(a):
    TS(a, 0)
    if E("PRIO"): a(f"s_setprio {E('PRIO')}")
    srd(a, 20, 16, 17, XN, 64*XRS)
    a(f"""
    s_cmp_ge_u32 s3, 2
    s_cselect_b32 s24, s6, s4
    s_cselect_b32 s25, s7, s5
    s_and_b32 s25, s25, 0xffff
    s_mov_b32 s26, 0x1c0000
    s_mov_b32 s27, 0x20000
    {MAP0}
    s_lshl_b32 s12, s11, 3
    s_lshl_b32 s13, s3, 1
    s_add_u32 s12, s12, s13
    s_mul_i32 s12, s12, {XRS}
    v_lshlrev_b32 v1, 4, v0
    v_add_u32 v1, s12, v1
    v_lshrrev_b32 v5, 3, v0         ; row8
    v_and_b32 v6, 7, v0             ; c'
    v_and_b32 v7, 3, v5
    v_lshlrev_b32 v7, 1, v7
    v_xor_b32 v6, v6, v7
    v_mul_u32_u24 v2, 3584, v5
    s_lshl_b32 s13, s10, 7
    v_add_u32 v2, s13, v2
    v_lshl_add_u32 v2, v6, 4, v2
    s_and_b32 s14, s3, 1
    s_mul_i32 s40, s14, {16*3584}
    s_lshr_b32 s15, s3, 1
    s_lshl_b32 s42, s15, 12
    s_lshl_b32 s14, s14, 11
    s_add_u32 s42, s42, s14
    s_add_u32 s42, s42, 8192
    """)
    sx = [32,33,34,35,36,37,38,39,48,49,50,51,52,53,54,55]
    for rb in range(2):
        for h in range(8):
            a(f"s_mov_b32 s{sx[rb*8+h]}, {rb*XRS+h*4096}")
    ACC = 16
    def acc(mat, cb, rb): return ACC + ((cb*2+rb)*2+mat)*16
    NS, NSL = 16, 7
    KT = int(E("KT", "24"))
    assert KT % 2 == 0 and 22 <= KT <= 30
    FR = []
    for ks in range(KT): FR += [(ks,0,0),(ks,0,1),(ks,1,0),(ks,1,1)]
    for ks in range(KT, 32): FR += [(ks,0,0),(ks,0,1)]
    NB1 = len(FR)
    for ks in range(KT, 32): FR += [(ks,1,0),(ks,1,1)]
    NF = len(FR)
    last_use = {}
    first_use = {}
    for n, (ks, cb, mat) in enumerate(FR):
        last_use[ks] = n
        first_use.setdefault(ks, n)
    q = []
    def wait_for(tag):
        idx = max(i for i, t in enumerate(q) if t == tag)
        n = len(q) - 1 - idx
        assert n <= 63
        a(f"s_waitcnt vmcnt({n})")
    lq = []
    def wait_l(tag):
        idx = max(i for i, t in enumerate(lq) if t == tag)
        n = len(lq) - 1 - idx
        a(f"s_waitcnt lgkmcnt({min(n, 15)})")
    def xr(ks, rb): return 168 + (ks % XS)*8 + rb*4
    WFr, NR = 144, 6
    barr = -1
    def do_barrier(s):
        nonlocal barr
        wait_for(("w", s))
        a("s_barrier")
        barr = s
    def trread(n):
        ks, cb, mat = FR[n]
        if ks//2 > barr: do_barrier(ks//2)
        b = WFr + (n % NR)*4
        base = 8192 + ((ks//2) % NSL)*8192 + mat*4096 + (ks & 1)*2048
        a(f"ds_read_b64_tr_b16 v[{b}:{b+1}], v{8+cb} offset:{base}")
        a(f"ds_read_b64_tr_b16 v[{b+2}:{b+3}], v{8+cb} offset:{base+512}")
        lq.append(("f", n)); lq.append(("f", n))
    pend = []
    for s in range(NS):
        pend += [("w", s, 0), ("w", s, 1)] + [("x", 2*s+j, rb) for j in range(2) for rb in range(2)]
        if s == 3: pend += [("t", s, i) for i in range(4)]
    WFP = int(E("WFP", "11"))
    ZN = int(E("ZN", "104")); BN0 = int(E("BN0", "113"))
    assert ZN >= 92
    if HSW: pend.append(("z", 0, 0))
    for j in range(11): pend += [("b", j, 0), ("b", j, 1)]
    def issue1(t):
        k, s, i = t
        if k == "w":
            a(f"s_add_u32 s41, s40, {(32*s+8*i)*3584}")
            a(f"s_add_u32 m0, s42, {(s%NSL)*8192+i*1024}")
            a("s_nop 0")
            a(f"buffer_load_dwordx4 v2, s[24:27], s41 offen lds")
        elif k == "x":
            r = xr(s, i)
            a(f"buffer_load_dwordx4 v[{r}:{r+3}], v1, s[20:23], s{sx[i*8+(s>>2)]} offen offset:{(s&3)*1024}")
        elif k == "t":
            a(f"s_mov_b32 m0, s63")
            a("s_nop 0")
            a(f"buffer_load_dwordx4 v4, s[80:83], s62 offen offset:{i*1024} lds")
        elif k == "z":
            a(WFV3.replace("v3,", "v249,"))
            a("s_nop 0")
            a("buffer_load_dword v248, v249, s[84:87], s4 offen sc1")
        else:
            if HSW and s == 0 and i == 0:
                wait_for(("z", 0))
                a(WFCHK.format(vr=248))
                a("s_cbranch_scc1 Lpd_wf")
                wfpoll(a, "wf", 248, 249)
            g2_b1(a, s, i)
        q.append((k, s))
    PRO = int(E("PRO", "3"))
    def allowed(t, n):
        k, s, i = t
        ahead = (first_use[2*s if k == "w" else s] - n) if k in "wx" else 0
        if k == "w": return (s < NSL or barr >= s-(NSL-2)) and ahead <= 8*PRO+8
        if k == "x": return (s < XS or last_use[s-XS] <= n) and ahead <= 8*PRO+8
        if k == "t": return True
        if k == "z": return n >= ZN
        return last_use[21+s] <= n and (n >= BN0 or not HSW)
    for _ in range(6*min(PRO, 3)): issue1(pend.pop(0))
    a("""
    v_bfe_u32 v7, v0, 2, 2          ; r
    v_lshrrev_b32 v6, 5, v0
    v_lshl_add_u32 v6, v6, 3, v7    ; row_l
    v_bfe_u32 v10, v0, 4, 1
    v_bfe_u32 v11, v0, 1, 1
    v_lshl_add_u32 v10, v10, 1, v11 ; gc0
    v_lshlrev_b32 v7, 1, v7
    v_xor_b32 v10, v10, v7          ; pc
    v_lshlrev_b32 v8, 7, v6
    v_lshl_add_u32 v8, v10, 4, v8
    v_and_b32 v11, 1, v0
    v_lshl_add_u32 v8, v11, 3, v8
    v_xor_b32 v9, 64, v8
    """)
    g2_early(a)
    srd(a, 80, 16, 17, TB, 16384)
    a(f"""
    s_lshl_b32 s62, s3, 12
    s_and_b32 s63, s3, 1
    s_lshl_b32 s63, s63, 12
    s_lshr_b32 s14, s3, 1
    s_lshl_b32 s14, s14, 16
    s_add_u32 s63, s63, s14
    s_lshl_b32 s12, s11, 3
    s_lshl_b32 s13, s3, 1
    s_add_u32 s12, s12, s13
    s_mul_i32 s12, s12, {RSH}
    s_lshl_b32 s13, s10, 2
    s_mul_i32 s14, s97, {SKEW}
    s_add_u32 s13, s13, s14
    s_lshl_b32 s13, s13, 10
    s_add_u32 s12, s12, s13
    s_add_u32 s13, s12, {RSH}
    s_mov_b32 s46, 0x{TLO*0x10001:x}
    s_mov_b32 s47, {f32(KB)}
    s_mov_b32 s98, 0x8fff8fff
    v_mov_b32 v10, {f32(KA)}
    s_lshl_b32 s60, s11, 2
    s_add_u32 s60, s60, s3
    s_lshl_b32 s60, s60, 2
    s_add_u32 s60, s60, s97
    s_lshl_b32 s60, s60, 8
    """)
    TS(a, 1)
    PD = int(E("PD", "4"))
    assert PD < NR
    PT = [[12, 13, 14, 15], [1, 2, 3, 6]]
    units = [(cb, rb, sp) for cb in range(2) for rb in range(2) for sp in range(2)]
    def EA(k):
        cb, rb, sp = units[k]
        g = acc(0, cb, rb) + 8*sp; P = PT[k % 2]; S = 90 + 2*(k % 2)
        o = []
        for i in range(4): o.append(f"v_cvt_pk_bf16_f32 v{P[i]}, v{g+2*i}, v{g+2*i+1}")
        for i in range(4): o.append(f"v_subrev_u32 v{P[i]}, s46, v{P[i]}")
        o.append(f"v_or3_b32 v11, v{P[0]}, v{P[1]}, v{P[2]}")
        o.append(f"v_or_b32 v11, v11, v{P[3]}")
        o.append(f"v_and_b32 v11, 0x70007000, v11")
        o.append(f"v_cmp_ne_u32_e64 s[{S}:{S+1}], 0, v11")
        for i in range(4):
            o.append(f"v_and_b32 v7, s98, v{P[i]}")
            for h in range(2):
                o.append(f"v_lshlrev_b32_sdwa v{g+2*i+h}, 1, v7 dst_sel:DWORD dst_unused:UNUSED_PAD src0_sel:DWORD src1_sel:WORD_{h}")
        for j in range(8):
            def f(j=j):
                a(f"ds_read_u16_d16_hi v{g+j}, v{g+j}")
                lq.append(("g", k))
            o.append(f)
        SLOW.append((k, g, P))
        return o
    def EB(k):
        cb, rb, sp = units[k]
        g = acc(0, cb, rb) + 8*sp; u = acc(1, cb, rb) + 8*sp; S = 90 + 2*(k % 2)
        o = []
        for j in range(8): o.append(f"v_cvt_pk_bf16_f32 v{u+j}, 0, v{u+j}")
        def f():
            wait_l(("g", k))
            a(f"s_cmp_lg_u64 s[{S}:{S+1}], 0")
            a(f"s_cbranch_scc1 Lslow_{k}")
            a(f"Lback_{k}:")
        o.append(f)
        for j in range(8): o.append(f"v_mul_f32_e32 v{u+j}, v{g+j}, v{u+j}")
        for i in range(4): o.append(f"v_cvt_pk_bf16_f32 v{g+i}, v{u+2*i}, v{u+2*i+1}")
        def s():
            a(f"buffer_store_dwordx4 v[{g}:{g+3}], v4, s[28:31], s{12+rb} offen offset:{(cb*2+sp)*1024} sc1")
            q.append(("h", cb))
        o.append(s)
        return o
    def stream(k0):
        return EA(k0) + EA(k0+1) + EB(k0) + EA(k0+2) + EB(k0+1) + EA(k0+3) + EB(k0+2) + EB(k0+3)
    def emit(o):
        if callable(o): o()
        else: a(o)
    ES = stream(0)
    per = -(-len(ES)//(2*(NF-NB1-int(E("EFL", "2")))))
    for n in range(PD): trread(n)
    for n in range(NF):
        ks, cb, mat = FR[n]
        if n == 0: TS(a, 2)
        if n == 64: TS(a, 3)
        if n == NB1:
            TS(a, 4)
            assert all(t[0] in "bz" for t in pend)
        if n+PD < NF: trread(n+PD)
        if n == first_use[ks]: wait_for(("x", ks))
        wait_l(("f", n))
        b = WFr + (n % NR)*4
        for rb in range(2):
            c = acc(mat, cb, rb)
            cin = "0" if ks == 0 else f"v[{c}:{c+15}]"
            a(f"v_mfma_f32_32x32x16_bf16 v[{c}:{c+15}], v[{b}:{b+3}], v[{xr(ks,rb)}:{xr(ks,rb)+3}], {cin}")
            if n > NB1:
                for _ in range(per):
                    if ES: emit(ES.pop(0))
        for _ in range(2 if n >= 4*KT - 16 else 1):
            if pend and allowed(pend[0], n): issue1(pend.pop(0))
    while ES: emit(ES.pop(0))
    while pend: issue1(pend.pop(0))
    TS(a, 6)
    g2_late(a)
    a("s_barrier")
    BL = []
    def mkb(cb):
        def f():
            a(f"s_add_u32 s14, s19, {kk(11)*1024}")
            r = breg(11) + cb*4
            a(f"buffer_load_dwordx4 v[{r}:{r+3}], v{4+cb}, s[84:87], s14 offen")
            q.append(("b", 11))
        return f
    def mkl(j, cb):
        def f():
            st = NBR + j; c = j*2+cb
            a(f"s_add_u32 s14, s19, {kk(st)*1024}")
            a(f"s_add_u32 m0, s{61 if c < 8 else 8}, {(c%8)*1024}")
            a("s_nop 0")
            a(f"buffer_load_dwordx4 v{4+cb}, s[84:87], s14 offen lds")
            q.append(("bl", st))
        return f
    BL = [mkb(0), mkb(1)] + [mkl(j, cb) for j in range(NBL) for cb in range(2)]
    def flag(cb):
        wait_for(("h", cb))
        a(f"""
        v_mov_b32 v8, 0
        v_mov_b32 v9, 1
        s_mov_b64 exec, 1
        buffer_atomic_add v9, v8, s[32:35], s60 offen offset:{128*cb}
        s_mov_b64 exec, -1
        """)
        q.append(("fl", cb))
    ES = stream(4)
    FAP = int(len(ES)*float(E("FAP", "1.0")))
    BSP = float(E("BSP", "0"))
    nb = len(BL); done = 0
    for i, o in enumerate(ES):
        if i == FAP:
            flag(0); TS(a, 5)
        want = nb if BSP <= 0 else min(nb, int(nb*(i+1)/(BSP*len(ES)))+1)
        if BSP <= 1.0:
            while done < want:
                BL[done](); done += 1
        emit(o)
    TS(a, 7)
    if FAP >= len(ES):
        flag(0); TS(a, 5)
    while done < nb:
        BL[done](); done += 1
    flag(1)
    TS(a, 8)

def slowpaths(a):
    for (k, g, P) in SLOW:
        a(f"Lslow_{k}:")
        a("s_waitcnt lgkmcnt(0)")
        for i in range(4):
            a(f"""
            v_add_u32 v{P[i]}, s46, v{P[i]}
            v_lshlrev_b32 v7, 16, v{P[i]}
            v_and_b32 v{P[i]}, 0xffff0000, v{P[i]}
            """)
            for (G, S) in ((7, g+2*i), (P[i], g+2*i+1)):
                a(f"""
                v_mul_f32_e32 v{S}, v{G}, v{G}
                v_fma_f32 v{S}, v{S}, s47, v10
                v_mul_f32_e32 v{S}, v{S}, v{G}
                v_exp_f32_e32 v{S}, v{S}
                s_nop 0
                v_add_f32_e32 v{S}, 1.0, v{S}
                v_rcp_f32_e32 v{S}, v{S}
                s_nop 0
                v_mul_f32_e32 v{S}, v{S}, v{G}
                v_cvt_pk_bf16_f32 v{S}, 0, v{S}
                """)
        a(f"s_branch Lback_{k}")

def k1(a):
    header(a, "main_kernel")
    a(f"""
    s_cmp_ge_u32 s2, 512
    s_cbranch_scc1 L1_exit
    s_load_dwordx4 s[4:7], s[0:1], 64
    s_load_dwordx2 s[8:9], s[0:1], 48
    s_load_dwordx2 s[16:17], s[0:1], 104
    s_load_dwordx2 s[56:57], s[0:1], 0
    s_load_dwordx2 s[58:59], s[0:1], 88
    v_lshrrev_b32 v5, 6, v0
    v_mov_b32 v15, v0
    v_readfirstlane_b32 s3, v5      ; wave
    v_and_b32 v0, 63, v0
    s_mov_b32 s96, s2
    {"s_memrealtime s[98:99]" if TSALL else ""}
    s_waitcnt lgkmcnt(0)
    {"s_mov_b32 s99, s98" if TSALL else ""}
    s_cmp_lt_u32 s2, 256
    s_cbranch_scc1 {"L1_exit" if E("NOC") else "L1_conv"}
    {"s_endpgm" if E("NOG") else ""}
    s_sub_u32 s2, s2, 256
    """)
    srd(a, 28, 16, 17, HB, HSZ)
    a("""
    s_cmp_ge_u32 s2, 224
    s_cbranch_scc1 L1_h
    """)
    gemm1(a)
    gemm2(a)
    slowpaths(a)
    a("L1_h:")
    TS(a, 0)
    g2_early(a)
    g2_late(a)
    if HSW:
        if E("HPRIO"): a(f"s_setprio {E('HPRIO')}")
        a(f"""
        s_sub_u32 s20, s2, 224
        s_cmp_ge_u32 s20, 28
        s_cbranch_scc1 Lh_nosw
        s_load_dwordx2 s[22:23], s[0:1], 80
        s_lshl_b32 s21, s20, 16
        s_lshl_b32 s14, s3, 12
        s_add_u32 s21, s21, s14
        s_mul_i32 s40, s20, 37
        s_lshr_b32 s40, s40, 8
        s_lshl_b32 s41, s20, 2
        s_mul_i32 s42, s40, {SKEW}
        s_add_u32 s41, s41, s42
        s_lshl_b32 s41, s41, 10
        s_mul_i32 s42, s3, {4*RSH}
        s_add_u32 s41, s41, s42         ; + 4w blocks
        v_lshrrev_b32 v1, 5, v0
        v_bfe_u32 v2, v0, 2, 2
        v_lshl_add_u32 v1, v1, 2, v2
        v_lshlrev_b32 v1, 10, v1
        v_bfe_u32 v2, v0, 4, 1
        v_lshl_add_u32 v1, v2, 5, v1
        v_and_b32 v2, 3, v0
        v_lshl_add_u32 v1, v2, 3, v1
        s_lshl_b32 s42, s3, 8
        v_add_u32 v1, s42, v1           ; + 4w blocks*64B
        s_waitcnt lgkmcnt(0)
        """)
        srd(a, 24, 22, 23, 0, 1792*1024)
        for u in range(4):
            a(f"s_add_u32 s15, s21, {u*16384}")
            a(f"s_add_u32 m0, s14, {u*16384}")
            a("s_nop 0")
            for e in range(4):
                a(f"buffer_load_dwordx4 v4, s[24:27], s15 offen offset:{e*1024} lds")
        for u in range(4):
            a(f"s_waitcnt vmcnt({12 - 4*u}) lgkmcnt(0)")
            a("s_barrier")
            for b in range(4):
                r = 16 + 16*u + 4*b
                a(f"ds_read_b64_tr_b16 v[{r}:{r+1}], v1 offset:{u*16384 + b*64}")
                a(f"ds_read_b64_tr_b16 v[{r+2}:{r+3}], v1 offset:{u*16384 + b*64 + 8192}")
        for u in range(4):
            for b in range(4):
                r = 16 + 16*u + 4*b
                if u == 3: a(f"s_waitcnt lgkmcnt({6 - 2*b})")
                a(f"s_add_u32 s15, s41, {b*RSH + u*1024}")
                a(f"buffer_store_dwordx4 v[{r}:{r+3}], v4, s[84:87], s15 offen sc1")
        TS(a, 1)
        a(f"""
        s_mul_i32 s42, s40, 7
        s_sub_u32 s42, s20, s42
        s_lshl_b32 s42, s42, 2
        s_add_u32 s42, s42, s3
        s_lshl_b32 s42, s42, 2
        s_lshl_b32 s40, s40, 13
        s_add_u32 s40, s40, {FLG - WF + 32768}
        {"s_add_u32 s40, s40, s42" if FST else ""}
        v_lshlrev_b32 v8, 8, v0
        v_mov_b32 v9, 1
        s_waitcnt vmcnt(0)
        s_mov_b32 exec_hi, 0
        {"buffer_store_dword v9, v8, s[84:87], s40 offen sc1" if FST else "buffer_atomic_add v9, v8, s[84:87], s40 offen"}
        s_mov_b64 exec, -1
        s_barrier
        """)
        TS(a, 2)
        a("Lh_nosw:")
        if E("HPRIO"): a(f"s_setprio 0")
    for _ in range(int(E("HSLP", "12" if not HSW else "6"))): a("s_sleep 10")
    if HSW:
        a(WFV3)
        wfpoll(a, "wfh", 7, 3)
        TS(a, 3)
    for st in range(NBR):
        g2_b1(a, st, 0); g2_b1(a, st, 1)
    g2_bpre_lds(a)
    a("s_branch L1_g2")
    a("L1_conv:")
    cpath(a)
    a("""
    L1_exit:
    s_endpgm
    """)

def build():
    launches = [f"; @launch kernel=prep_kernel grid=({NK0},1,1) block=(256,1,1) lds=16384",
                "; @launch kernel=main_kernel grid=(512,1,1) block=(256,1,1) lds=81920"]
    descs = [desc("prep_kernel", 72), desc("main_kernel", 256, acc=256)]
    body = A()
    k0(body)
    k1(body)
    txt = "\n".join(launches) + "\n"
    txt += '.amdgcn_target "amdgcn-amd-amdhsa--gfx950"\n.text\n'
    txt += body.text()
    txt += '.section .rodata,"a"\n' + "".join(descs)
    return txt

if __name__ == "__main__":
    out = sys.argv[1]
    open(out, "w").write(build())
    print("wrote", out)
```

```python
import sys, struct, math, os
OUT = "parallel_sum__ssm_conv_s4d__glu_gated_geglu__prompt.s"

class A:
    def __init__(self): self.l = []
    def __call__(self, s):
        for ln in s.strip("\n").split("\n"):
            self.l.append("    " + ln.strip() if not ln.strip().endswith(":") else ln.strip())
    def raw(self, s): self.l.append(s)
    def text(self): return "\n".join(self.l) + "\n"

def f32(x): return "0x%08x" % struct.unpack("<I", struct.pack("<f", x))[0]
LOG2E = 1.4426950408889634

XN, XNT, HB, AT, WF, FLG, TB = 0, 4<<20, 8<<20, 16<<20, 18<<20, 20<<20, 22<<20
SKEW = int(os.environ.get("SKEW", "1"))
WS_ = 29 if SKEW else 28
RSH = 4*WS_*1024 + (768 if SKEW else 0)
XRS = 32768 + (256 if SKEW else 0)
TLO = 0x3100
C0 = math.sqrt(2.0/math.pi)
KA = -2.0*LOG2E*C0
KB = KA*0.044715
SZ2M = 2<<20
HSZ = 64*RSH
WSZ = 16*RSH
POLL_LIMIT = 60000

def srd(a, s, lo, hi, off, size):
    if off:
        a(f"s_add_u32 s{s}, s{lo}, 0x{off:x}")
        a(f"s_addc_u32 s{s+1}, s{hi}, 0")
        a(f"s_and_b32 s{s+1}, s{s+1}, 0xffff")
    else:
        a(f"s_mov_b32 s{s}, s{lo}")
        a(f"s_and_b32 s{s+1}, s{hi}, 0xffff")
    a(f"s_mov_b32 s{s+2}, 0x{size:x}")
    a(f"s_mov_b32 s{s+3}, 0x20000")

def srd_dyn(a, s, lo, hi, off, sx, size):
    a(f"s_add_u32 s{s}, s{lo}, 0x{off:x}")
    a(f"s_addc_u32 s{s+1}, s{hi}, 0")
    a(f"s_add_u32 s{s}, s{s}, s{sx}")
    a(f"s_addc_u32 s{s+1}, s{s+1}, 0")
    a(f"s_and_b32 s{s+1}, s{s+1}, 0xffff")
    a(f"s_mov_b32 s{s+2}, 0x{size:x}")
    a(f"s_mov_b32 s{s+3}, 0x20000")

def header(a, name):
    a.raw(f".globl {name}")
    a.raw(".p2align 8")
    a.raw(f".type {name},@function")
    a.raw(f"{name}:")

def desc(name, vgpr, sgpr=100, acc=None):
    if acc is None: acc = (vgpr + 3)//4*4
    return f""".p2align 6
.amdhsa_kernel {name}
  .amdhsa_next_free_vgpr {vgpr}
  .amdhsa_next_free_sgpr {sgpr}
  .amdhsa_accum_offset {acc}
  .amdhsa_group_segment_fixed_size 0
  .amdhsa_kernarg_size 112
  .amdhsa_user_sgpr_count 2
  .amdhsa_user_sgpr_kernarg_segment_ptr 1
  .amdhsa_system_sgpr_workgroup_id_x 1
.end_amdhsa_kernel
"""

TSON = os.environ.get("TS", "") != ""
TSALL = os.environ.get("TS", "") == "all"
TSWG = 0 if TSALL else int(os.environ.get("TS", "0") or 0)
def TS(a, i):
    if not TSON: return
    a("s_memtime s[94:95]")
    a("s_waitcnt lgkmcnt(0)")
    a(f"s_mov_b32 s{64+i}, s94")
def TR(a, i):
    if not TSON: return
    a("s_memrealtime s[94:95]")
    a("s_waitcnt lgkmcnt(0)")
    a(f"s_mov_b32 s{64+i}, s94")
def TSDUMP(a, n, tag):
    if not TSON: return
    if TSALL:
        a(f"""
        s_cmp_lg_u32 s3, 0
        s_cbranch_scc1 Lts_{tag}
        s_memrealtime s[94:95]
        s_getreg_b32 s76, hwreg(HW_REG_HW_ID)
        s_getreg_b32 s77, hwreg(HW_REG_XCC_ID)
        s_lshl_b32 s92, s96, 7
        v_mov_b32 v1, s92
        s_waitcnt lgkmcnt(0)
        s_mov_b32 s78, s99
        s_mov_b32 s79, s94
        """)
        srd(a, 88, 16, 17, 24 << 20, 65536)
        for i in range(16):
            a(f"v_mov_b32 v2, s{64+i}")
            a(f"buffer_store_dword v2, v1, s[88:91], 0 offen offset:{4*i}")
        a(f"Lts_{tag}:")
        return
    a(f"""
    s_cmp_lg_u32 s96, {TSWG}
    s_cbranch_scc1 Lts_{tag}
    s_cmp_lg_u32 s3, 0
    s_cbranch_scc1 Lts_{tag}
    s_load_dwordx2 s[92:93], s[0:1], 96
    s_waitcnt lgkmcnt(0)
    """)
    srd(a, 88, 92, 93, 0, 256)
    a("v_mov_b32 v1, 0")
    for i in range(n):
        a(f"v_mov_b32 v2, s{64+i}")
        a(f"buffer_store_dword v2, v1, s[88:91], 0 offen offset:{4*i}")
    a(f"Lts_{tag}:")

PFN = int(os.environ.get("PFN", "0"))
HSW = int(os.environ.get("HSW", "1"))
NXT = int(os.environ.get("NXT", "0"))
CAF = int(os.environ.get("CAF", "0"))
XLP = int(os.environ.get("XLP", "1"))
CFP = int(os.environ.get("CFP", "0"))
NK0 = 245 + (128 if PFN else 0) - (112 if HSW else 0)
def k0(a):
    n0 = len(a.l)
    k0_(a)
    PSC = os.environ.get("PSC", "")
    if PSC:
        for i in range(n0, len(a.l)):
            if "buffer_store" in a.l[i] and "s[88:91]" not in a.l[i]:
                a.l[i] = a.l[i].split(";")[0].rstrip() + " " + PSC
def k0_(a):
    header(a, "prep_kernel")
    a(f"""
    s_cmp_ge_u32 s2, {NK0}
    s_cbranch_scc1 L0_exit
    s_load_dwordx2 s[4:5], s[0:1], 0
    s_load_dwordx2 s[18:19], s[0:1], 80
    s_load_dwordx2 s[16:17], s[0:1], 104
    {"s_memrealtime s[98:99]" if TSALL else ""}
    s_waitcnt lgkmcnt(0)
    s_cmp_ge_u32 s2, 128
    s_cbranch_scc1 L0_swz
    """)
    if os.environ.get("LNMAP"):
        a("""
        s_and_b32 s3, s2, 7
        s_lshl_b32 s3, s3, 4
        s_lshr_b32 s2, s2, 3
        s_add_u32 s2, s2, s3
        """)
    srd(a, 20, 4, 5, 0, SZ2M)
    srd(a, 24, 16, 17, XN, 64*XRS)
    srd(a, 28, 16, 17, XNT, SZ2M)
    a("""
    s_lshl_b32 s3, s2, 4            ; r0
    v_lshrrev_b32 v1, 4, v0
    v_and_b32 v2, 15, v0            ; j
    v_add_u32 v3, s3, v1            ; row
    v_lshlrev_b32 v3, 10, v3
    v_lshl_add_u32 v3, v2, 4, v3    ; voffset
    """)
    for c in range(4):
        a(f"buffer_load_dwordx4 v[{8+4*c}:{11+4*c}], v3, s[20:23], 0 offen offset:{c*256}")
    srd(a, 40, 16, 17, AT, SZ2M)
    a("""
    v_mov_b32 v32, -1
    v_mov_b32 v33, -1
    v_mov_b32 v34, -1
    v_mov_b32 v35, -1
    v_lshlrev_b32 v36, 4, v0
    s_lshl_b32 s32, s2, 14
    """)
    for c in range(0 if CAF else 4):
        a(f"s_add_u32 s33, s32, {c*4096}")
        a(f"buffer_store_dwordx4 v[32:35], v36, s[40:43], s33 offen {os.environ.get('PSCA', '')}")
    a(f"s_waitcnt vmcnt({0 if CAF else 4})")
    for i in range(16):
        a(f"v_lshlrev_b32 v{32+2*i}, 16, v{8+i}")
        a(f"v_and_b32 v{33+2*i}, 0xffff0000, v{8+i}")
    a("v_add_f32 v4, v32, v33")
    a("v_add_f32 v5, v34, v35")
    for i in range(36, 64, 2):
        a(f"v_add_f32 v4, v4, v{i}")
        a(f"v_add_f32 v5, v5, v{i+1}")
    a("v_add_f32 v4, v4, v5")
    def rowsum(r):
        for ror in (8, 4, 2, 1):
            a("s_nop 1")
            a(f"v_add_f32_dpp v{r}, v{r}, v{r} row_ror:{ror} row_mask:0xf bank_mask:0xf")
    rowsum(4)
    a(f"v_mul_f32 v4, {f32(1.0/512)}, v4")
    a("v_sub_f32 v6, v32, v4")
    a("v_mul_f32 v5, v6, v6")
    a("v_sub_f32 v6, v33, v4")
    a("v_mul_f32 v7, v6, v6")
    for i in range(34, 64, 2):
        a(f"v_sub_f32 v6, v{i}, v4")
        a(f"v_fma_f32 v5, v6, v6, v5")
        a(f"v_sub_f32 v64, v{i+1}, v4")
        a(f"v_fma_f32 v7, v64, v64, v7")
    a("v_add_f32 v5, v5, v7")
    rowsum(5)
    a(f"""
    v_mul_f32 v5, {f32(1.0/512)}, v5
    v_cvt_pk_bf16_f32 v4, v4, v5
    v_and_b32 v5, 0xffff0000, v4
    v_lshlrev_b32 v4, 16, v4
    v_add_f32 v5, {f32(1e-5)}, v5
    v_cvt_pk_bf16_f32 v5, v5, v5
    v_lshlrev_b32 v5, 16, v5
    v_sqrt_f32 v5, v5
    s_nop 0
    v_cvt_pk_bf16_f32 v5, v5, v5
    v_lshlrev_b32 v5, 16, v5         ; s (bf16)
    v_rcp_f32 v6, v5
    s_nop 0
    """)
    for i in range(16):
        x0, x1 = 32+2*i, 33+2*i
        a(f"""
        v_sub_f32 v{x0}, v{x0}, v4
        v_sub_f32 v{x1}, v{x1}, v4
        v_cvt_pk_bf16_f32 v7, v{x0}, v{x1}
        v_lshlrev_b32 v{x0}, 16, v7
        v_and_b32 v{x1}, 0xffff0000, v7
        v_mul_f32 v64, v{x0}, v6
        v_mul_f32 v65, v{x1}, v6
        v_fma_f32 v66, -v64, v5, v{x0}
        v_fma_f32 v67, -v65, v5, v{x1}
        v_fma_f32 v64, v66, v6, v64
        v_fma_f32 v65, v67, v6, v65
        v_cvt_pk_bf16_f32 v{8+i}, v64, v65
        """)
    a(f"""
    v_lshlrev_b32 v7, 10, v1
    v_lshl_add_u32 v7, v2, 4, v7
    v_lshrrev_b32 v64, 1, v2
    v_lshlrev_b32 v64, 10, v64
    v_and_b32 v65, 1, v2
    v_lshl_add_u32 v64, v65, 9, v64
    v_lshl_add_u32 v64, v1, 4, v64
    s_lshr_b32 s34, s2, 1
    s_mul_i32 s34, s34, {XRS}
    s_and_b32 s35, s2, 1
    s_lshl_b32 s35, s35, 8
    s_add_u32 s34, s34, s35
    s_add_u32 s35, s34, 0x2000
    s_add_u32 s36, s34, 0x4000
    s_add_u32 s37, s34, 0x6000
    """)
    for c in range(4):
        a(f"buffer_store_dwordx4 v[{8+4*c}:{11+4*c}], v64, s[24:27], s{34+c} offen {os.environ.get('PSCX', '')}")
        if not NXT: a(f"ds_write_b128 v7, v[{8+4*c}:{11+4*c}] offset:{c*256}")
    if NXT: a("s_branch L0_fin")
    a("""
    s_waitcnt lgkmcnt(0)
    s_barrier
    v_lshlrev_b32 v7, 2, v0
    """)
    for r in range(16):
        a(f"ds_read_b32 v{32+r}, v7 offset:{r*1024}")
    a("""
    s_mov_b32 s32, 0x05040100
    s_mov_b32 s33, 0x07060302
    v_lshlrev_b32 v3, 13, v0        ; d=2*tid -> d*4096
    s_lshl_b32 s3, s3, 1            ; r0*2 bytes
    v_add_u32 v3, s3, v3
    s_waitcnt lgkmcnt(0)
    """)
    for q in range(8):
        a(f"v_perm_b32 v{48+q}, v{33+2*q}, v{32+2*q}, s32")
        a(f"v_perm_b32 v{56+q}, v{33+2*q}, v{32+2*q}, s33")
    PT_ = os.environ.get('PSCT', '')
    a(f"""
    buffer_store_dwordx4 v[48:51], v3, s[28:31], 0 offen {PT_}
    buffer_store_dwordx4 v[52:55], v3, s[28:31], 0 offen offset:16 {PT_}
    v_add_u32 v3, 0x1000, v3
    buffer_store_dwordx4 v[56:59], v3, s[28:31], 0 offen {PT_}
    buffer_store_dwordx4 v[60:63], v3, s[28:31], 0 offen offset:16 {PT_}
    s_branch L0_fin
    """)
    a(f"""
    L0_swz:
    {"s_add_u32 s2, s2, 112" if HSW else ""}
    s_cmp_ge_u32 s2, 240
    s_cbranch_scc1 L0_zero
    """)
    srd(a, 24, 16, 17, WF, WSZ)
    srd(a, 20, 18, 19, 0, 1792*1024)
    a("""
    s_sub_u32 s3, s2, 128
    s_lshl_b32 s32, s3, 14
    v_lshlrev_b32 v1, 2, v0
    s_add_u32 s33, s32, 0x1000
    s_add_u32 s34, s32, 0x2000
    s_add_u32 s35, s32, 0x3000
    """)
    for e in range(16):
        a(f"buffer_load_dword v{8+e}, v1, s[20:23], s{32+e//4} offen offset:{(e%4)*1024}")
    a(f"""
    v_lshrrev_b32 v2, 4, v0
    v_mul_u32_u24 v2, {RSH}, v2
    v_and_b32 v3, 15, v0
    v_lshl_add_u32 v2, v3, 5, v2
    s_mul_i32 s36, s3, {147*SKEW}
    s_lshr_b32 s36, s36, 12
    s_add_u32 s36, s36, s3
    s_lshl_b32 s36, s36, 10
    s_mov_b32 s37, 0x05040100
    s_mov_b32 s38, 0x07060302
    """)
    for h in range(2):
        a(f"s_waitcnt vmcnt({4*(1-h)})")
        Rr = [4*h, 4*h+1, 4*h+2, 4*h+3, 8+4*h, 9+4*h, 10+4*h, 11+4*h]
        for p in range(4):
            a(f"v_perm_b32 v{32+8*h+p}, v{8+Rr[2*p+1]}, v{8+Rr[2*p]}, s37")
            a(f"v_perm_b32 v{36+8*h+p}, v{8+Rr[2*p+1]}, v{8+Rr[2*p]}, s38")
    for h in range(2):
        a(f"buffer_store_dwordx4 v[{32+8*h}:{35+8*h}], v2, s[24:27], s36 offen offset:{512*h} {os.environ.get('PSCW', '')}")
        a(f"buffer_store_dwordx4 v[{36+8*h}:{39+8*h}], v2, s[24:27], s36 offen offset:{512*h+16} {os.environ.get('PSCW', '')}")
    a("s_branch L0_fin")
    a("L0_zero:")
    a("""
    s_cmp_ge_u32 s2, 241
    s_cbranch_scc1 L0_tab
    """)
    srd(a, 24, 16, 17, FLG, 98304)
    a("""
    v_lshlrev_b32 v1, 4, v0
    v_mov_b32 v4, 0
    v_mov_b32 v5, 0
    v_mov_b32 v6, 0
    v_mov_b32 v7, 0
    """)
    for i in range(24):
        a(f"s_mov_b32 s32, {i*4096}")
        a("buffer_store_dwordx4 v[4:7], v1, s[24:27], s32 offen")
    a("""
    s_branch L0_fin
    L0_tab:
    """)
    if PFN:
        a("""
        s_cmp_ge_u32 s2, 245
        s_cbranch_scc1 L0_pf
        """)
    srd(a, 24, 16, 17, TB, 16384)
    a(f"""
    s_sub_u32 s3, s2, 241
    s_lshl_b32 s32, s3, 11
    v_lshl_add_u32 v1, v0, 3, s32   ; idx
    v_lshrrev_b32 v2, 12, v1        ; sign
    v_and_b32 v3, 4095, v1
    v_lshl_add_u32 v3, v2, 15, v3
    v_add_u32 v3, 0x{TLO:x}, v3
    v_lshlrev_b32 v3, 16, v3
    v_lshlrev_b32 v1, 1, v1
    s_mov_b32 s47, {f32(KB)}
    v_mov_b32 v10, {f32(KA)}
    """)
    for e in range(8): a(f"v_add_u32 v{16+e}, 0x{e<<16:x}, v3")
    gelu8(a, 16, 24)
    for i in range(4): a(f"v_cvt_pk_bf16_f32 v{32+i}, v{24+2*i}, v{25+2*i}")
    a("""
    buffer_store_dwordx4 v[32:35], v1, s[24:27], 0 offen
    L0_fin:
    """)
    if TSALL:
        a("""
        s_waitcnt vmcnt(0)
        s_memrealtime s[96:97]
        s_lshl_b32 s92, s2, 3
        v_mov_b32 v1, s92
        s_waitcnt lgkmcnt(0)
        v_mov_b32 v2, s98
        v_mov_b32 v3, s96
        """)
        srd(a, 88, 16, 17, 25 << 20, 65536)
        a("buffer_store_dwordx2 v[2:3], v1, s[88:91], 0 offen")
    a("""
    L0_exit:
    s_endpgm
    """)
    if PFN:
        a("""
        L0_pf:
        s_load_dwordx4 s[40:43], s[0:1], 64
        s_load_dwordx8 s[48:55], s[0:1], 8
        s_load_dwordx2 s[56:57], s[0:1], 88
        s_sub_u32 s3, s2, 245
        v_lshlrev_b32 v1, 4, v0
        s_waitcnt lgkmcnt(0)
        s_cmp_ge_u32 s3, 112
        s_cbranch_scc1 L0_pf2
        """)
        srd(a, 20, 40, 41, 0, 1792*1024)
        srd(a, 24, 42, 43, 0, 1792*1024)
        a("s_lshl_b32 s32, s3, 14")
        for c in range(4):
            a(f"s_add_u32 s33, s32, {c*4096}")
            a(f"buffer_load_dwordx4 v[{8+8*c}:{11+8*c}], v1, s[20:23], s33 offen")
            a(f"buffer_load_dwordx4 v[{12+8*c}:{15+8*c}], v1, s[24:27], s33 offen")
        if os.environ.get("PFD"):
            srd(a, 28, 18, 19, 0, 1792*1024)
            a("""
            s_add_u32 s34, s3, 5
            s_and_b32 s34, s34, 7           ; xcd
            s_lshr_b32 s35, s3, 4           ; j>>1
            s_lshl_b32 s35, s35, 3
            s_add_u32 s34, s34, s35         ; hw
            s_cmp_ge_u32 s34, 28
            s_cbranch_scc1 L0_pfd
            s_lshl_b32 s34, s34, 16
            s_bfe_u32 s35, s3, 0x10003
            s_lshl_b32 s35, s35, 15
            s_add_u32 s34, s34, s35
            """)
            for c in range(8):
                a(f"s_add_u32 s33, s34, {c*4096}")
                a(f"buffer_load_dwordx4 v[{40+4*c}:{43+4*c}], v1, s[28:31], s33 offen")
            a("L0_pfd:")
        if PFN >= 2:
            srd(a, 28, 16, 17, HB, 8<<20)
            srd(a, 36, 56, 57, 0, SZ2M)
            a("""
            v_lshlrev_b32 v2, 15, v0
            v_lshlrev_b32 v3, 13, v0
            buffer_load_dword v40, v2, s[28:31], 0 offen
            buffer_load_dword v41, v3, s[36:39], 0 offen
            """)
        a("""
        s_waitcnt vmcnt(0)
        s_branch L0_fin
        L0_pf2:
        s_sub_u32 s3, s3, 112
        s_lshl_b32 s60, s3, 13
        """)
        for q in range(4):
            srd(a, 20+4*q, 48+2*q, 49+2*q, 0, 131072)
        for q in range(4):
            for c in range(2):
                a(f"s_add_u32 s61, s60, {c*4096}")
                a(f"buffer_load_dwordx4 v[{8+8*q+4*c}:{11+8*q+4*c}], v1, s[{20+4*q}:{23+4*q}], s61 offen")
        a("""
        s_waitcnt vmcnt(0)
        s_branch L0_fin
        """)

def gelu8(a, G, S):
    for j in range(8): a(f"v_mul_f32_e32 v{S+j}, v{G+j}, v{G+j}")
    for j in range(8): a(f"v_fma_f32 v{S+j}, v{S+j}, s47, v10")
    for j in range(8): a(f"v_mul_f32_e32 v{S+j}, v{S+j}, v{G+j}")
    for j in range(8): a(f"v_exp_f32_e32 v{S+j}, v{S+j}")
    a("s_nop 0")
    for j in range(8): a(f"v_add_f32_e32 v{S+j}, 1.0, v{S+j}")
    for j in range(8): a(f"v_rcp_f32_e32 v{S+j}, v{S+j}")
    a("s_nop 0")
    for j in range(8): a(f"v_mul_f32_e32 v{S+j}, v{S+j}, v{G+j}")

def cpath(a):
    RS = 528
    WB = 16*RS
    TRS = 208
    KH, KL, UB = 0, 7680, 15360
    CB = 32768
    TS(a, 0)
    TR(a, 7)
    if os.environ.get("CPRIO"): a(f"s_setprio {os.environ['CPRIO']}")
    if os.environ.get("CRM"):
        a("""
        s_and_b32 s10, s2, 7
        s_lshl_b32 s10, s10, 3
        s_lshr_b32 s11, s2, 5
        s_add_u32 s10, s10, s11
        s_lshl_b32 s10, s10, 2
        s_bfe_u32 s11, s2, 0x20003
        s_add_u32 s2, s10, s11
        """)
    a("""
    s_load_dwordx8 s[72:79], s[0:1], 8
    s_load_dwordx2 s[80:81], s[0:1], 40
    s_lshl_b32 s10, s2, 1           ; channel c0
    s_lshl_b32 s11, s10, 12
    """)
    if NXT: srd(a, 20, 16, 17, XN, 64*XRS)
    else: srd_dyn(a, 20, 16, 17, XNT, 11, 8192)
    srd_dyn(a, 32, 16, 17, AT, 11, 8192)
    srd(a, 36, 8, 9, 0, 1024)
    a("s_waitcnt lgkmcnt(0)")
    srd(a, 24, 72, 73, 0, 131072)
    srd(a, 28, 74, 75, 0, 131072)
    srd(a, 48, 76, 77, 0, 131072)
    srd(a, 52, 78, 79, 0, 131072)
    srd(a, 56, 80, 81, 0, 1024)
    a(f"""
    s_lshl_b32 s12, s2, 9           ; c0*256 bytes
    v_lshl_add_u32 v2, v15, 1, s12
    s_lshl_b32 s12, s2, 2
    v_lshrrev_b32 v3, 7, v15
    v_lshl_add_u32 v3, v3, 1, s12
    buffer_load_ushort v16, v2, s[24:27], 0 offen
    buffer_load_ushort v17, v2, s[28:31], 0 offen
    buffer_load_ushort v18, v2, s[48:51], 0 offen
    buffer_load_ushort v19, v2, s[52:55], 0 offen
    buffer_load_ushort v20, v3, s[56:59], 0 offen
    """)
    XT0 = 65536 + 16
    def afill():
        a("""
        v_mov_b32 v248, -1
        v_mov_b32 v249, -1
        v_mov_b32 v250, -1
        v_mov_b32 v251, -1
        v_lshlrev_b32 v252, 4, v15
        s_mov_b32 s44, 4096
        buffer_store_dwordx4 v[248:251], v252, s[32:35], 0 offen sc1
        buffer_store_dwordx4 v[248:251], v252, s[32:35], s44 offen sc1
        """)
    if CAF and CFP == 0: afill()
    def xload():
        a(f"""
        v_lshrrev_b32 v238, 5, v15
        v_mul_u32_u24 v238, {XRS}, v238
        v_and_b32 v239, 31, v15
        v_lshl_add_u32 v238, v239, 4, v238
        s_lshr_b32 s46, s2, 2
        s_lshl_b32 s46, s46, 9
        s_and_b32 s47, s2, 3
        s_lshl_b32 s47, s47, 2
        s_add_u32 s46, s46, s47
        s_lshl_b32 s47, s10, 1
        v_mov_b32 v239, s47
        """)
        for i in range(8):
            a(f"s_add_u32 s47, s46, {i*8*XRS}")
            a(f"buffer_load_dword v{240+i}, v238, s[20:23], s47 offen")
        a("buffer_load_ushort v253, v239, s[36:39], 0 offen")
        a("buffer_load_ushort v254, v239, s[36:39], 0 offen offset:2")
    a(f"""
    s_lshr_b32 s14, s3, 1
    s_lshl_b32 s14, s14, 15
    s_and_b32 s15, s3, 1
    s_mul_i32 s15, s15, {WB}
    s_add_u32 s14, s14, s15
    s_add_u32 s14, s14, {UB}
    v_lshl_add_u32 v2, v0, 3, s14
    v_and_b32 v4, 15, v0            ; r / j
    v_lshrrev_b32 v5, 4, v0         ; q
    v_mul_u32_u24 v3, {RS}, v4
    v_lshl_add_u32 v3, v5, 4, v3
    v_add_u32 v3, s14, v3
    v_mul_u32_u24 v60, {4*TRS}, v5
    v_lshl_add_u32 v60, v4, 2, v60
    v_add_u32 v60, s14, v60
    v_mov_b32 v6, 0
    v_cmp_le_u32 vcc, 32, v15
    s_nop 1
    v_addc_co_u32 v6, vcc, 0, v6, vcc
    v_cmp_le_u32 vcc, 64, v15
    s_nop 1
    v_addc_co_u32 v6, vcc, 0, v6, vcc
    v_cmp_le_u32 vcc, 128, v15
    s_nop 1
    v_addc_co_u32 v6, vcc, 0, v6, vcc     ; s
    v_lshlrev_b32 v7, v6, 1
    v_lshrrev_b32 v7, 1, v7
    v_add_u32 v7, -1, v7                  ; half-1
    v_lshlrev_b32 v8, 3, v15              ; l0
    v_lshlrev_b32 v9, 3, v6               ; 8s
    v_lshrrev_b32 v12, v6, 16             ; 16>>s
    v_cmp_eq_u32 vcc, 0, v6
    """)
    for e in range(8):
        a(f"""
        v_add_u32 v10, {e}, v8
        v_lshrrev_b32 v11, v6, v10
        v_and_b32 v11, 1, v11
        v_add3_u32 v11, v10, v7, v11
        v_lshrrev_b32 v11, v6, v11
        v_cndmask_b32 v11, v11, v10, vcc      ; m
        v_lshlrev_b32 v11, v6, v11            ; p
        v_lshrrev_b32 v10, 8, v11
        v_mad_u32_u24 v10, v10, v12, v9       ; 8s + (p>>8)*(16>>s)
        v_and_b32 v13, 15, v11
        v_lshrrev_b32 v13, v6, v13
        v_add_u32 v10, v10, v13               ; col
        v_bfe_u32 v11, v11, 4, 4              ; row
        v_mul_u32_u24 v11, {TRS}, v11
        v_lshl_add_u32 v{52+e}, v10, 2, v11
        """)
    a(f"s_waitcnt vmcnt({2 if CAF and CFP == 0 else 0})")
    TS(a, 1)
    if NXT and XLP == 0: xload()
    a(f"""
    v_lshlrev_b32 v16, 16, v16
    v_lshlrev_b32 v17, 16, v17
    v_lshlrev_b32 v18, 16, v18
    v_lshlrev_b32 v19, 16, v19
    v_lshlrev_b32 v20, 16, v20
    v_mul_f32 v16, {f32(LOG2E)}, v16
    v_mul_f32 v20, {f32(LOG2E)}, v20
    v_exp_f32 v16, v16
    v_exp_f32 v20, v20
    s_nop 0
    v_cvt_pk_bf16_f32 v16, v16, v20
    v_and_b32 v20, 0xffff0000, v16    ; dt
    v_lshlrev_b32 v16, 16, v16
    v_mul_f32 v16, v16, v20
    v_mul_f32 v17, v17, v20
    v_mul_f32 v18, v18, v20
    v_mul_f32 v19, v19, v20
    v_mul_f32 v16, {f32(-LOG2E)}, v16
    v_mul_f32 v17, {f32(1.0/(2*math.pi))}, v17
    v_add_f32 v18, v18, v18
    v_mul_f32 v19, -2.0, v19
    """)
    regs = {"C": 18}
    nxt = [184]
    def R(name):
        if name not in regs:
            regs[name] = nxt[0]; nxt[0] += 2
            assert nxt[0] <= 250
        return regs[name]
    def pr(r): return f"v[{r}:{r+1}]"
    anch = [("W16", 16, 1), ("W64", 64, 1), ("W128", 128, 1), ("Z1", 1, 0), ("Z4", 4, 0), ("Z8", 8, 0), ("Z256", 256, 0), ("Z512", 512, 0), ("Z1024", 1024, 0)]
    for k, (nm, p, cj) in enumerate(anch):
        d = R(nm); t = 20 + 2*k
        a(f"v_mul_f32 v{t}, {f32(float(p))}, v16")
        a(f"v_mul_f32 v{t+1}, {f32(float(p))}, v17")
        a(f"v_exp_f32 v{t}, v{t}")
        a(f"v_cos_f32 v{d}, v{t+1}")
        a(f"v_sin_f32 v{d+1}, {'-' if cj else ''}v{t+1}")
    a("s_nop 0")
    for k, (nm, p, cj) in enumerate(anch):
        d = R(nm); t = 20 + 2*k
        a(f"v_mul_f32_e32 v{d}, v{d}, v{t}")
        a(f"v_mul_f32_e32 v{d+1}, v{d+1}, v{t}")
    tcnt = [0]
    def cmul(d, x, y):
        d, x, y = R(d), R(x), R(y)
        assert d != x and d != y
        a(f"v_mul_f32_e32 v{d}, v{x+1}, v{y+1}")
        a(f"v_mul_f32_e32 v{d+1}, v{x}, v{y+1}")
        a(f"v_fma_f32 v{d}, v{x}, v{y}, -v{d}")
        a(f"v_fmac_f32_e32 v{d+1}, v{x+1}, v{y}")
    scnt = [0]
    nds = [0]
    def put(nm, row):
        v = R(nm)
        h = 44 + 2*(scnt[0] % 2); u = 48 + 2*(scnt[0] % 2); scnt[0] += 1
        a(f"""
        v_cvt_pk_bf16_f32 v{h}, v{v}, v{v+1}
        v_lshlrev_b32 v{u}, 16, v{h}
        v_and_b32 v{u+1}, 0xffff0000, v{h}
        v_sub_f32_e32 v{u}, v{v}, v{u}
        v_sub_f32_e32 v{u+1}, v{v+1}, v{u+1}
        v_cvt_pk_bf16_f32 v{h+1}, v{u}, v{u+1}
        ds_write_b64 v2, {pr(h)} offset:{row*RS}
        """)
        nds[0] += 1
    A1, A2, BO, ACC = 64, 96, 128, 160
    cmul("w2", "W16", "W16"); cmul("w3", "w2", "W16"); cmul("W192", "W128", "W64")
    regs["w1"] = regs["W16"]
    for aa in range(4):
        if aa == 0: regs["CW"] = regs["C"]
        else:
            regs["CW"] = R("CWt"); cmul("CWt", "C", f"W{64*aa}")
        put("CW", 4*aa)
        for b in range(1, 4):
            nm = f"T{b%2}"
            cmul(nm, "CW", f"w{b}"); put(nm, 4*aa+b)
    for ks in range(8):
        a(f"ds_read_b128 v[{A1+4*ks}:{A1+4*ks+3}], v3 offset:{ks*64}")
        a(f"ds_read2_b32 v[{A2+4*ks}:{A2+4*ks+1}], v3 offset0:{ks*16+1} offset1:{ks*16}")
        a(f"ds_read2_b32 v[{A2+4*ks+2}:{A2+4*ks+3}], v3 offset0:{ks*16+3} offset1:{ks*16+2}")
        nds[0] += 3
    def breads():
        for ks in range(8):
            a(f"ds_read_b128 v[{BO+4*ks}:{BO+4*ks+3}], v3 offset:{ks*64}")
            nds[0] += 1
        return nds[0]
    def mfmas(tau, mark):
        n = nds[0] - mark
        assert n <= 15
        a(f"s_waitcnt lgkmcnt({n})")
        for ks in range(8):
            for h, A_ in enumerate((A1, A2)):
                c = ACC + tau*8 + h*4
                cin = "0" if ks == 0 else f"v[{c}:{c+3}]"
                a(f"v_mfma_f32_16x16x32_bf16 v[{c}:{c+3}], v[{A_+4*ks}:{A_+4*ks+3}], v[{BO+4*ks}:{BO+4*ks+3}], {cin}")
    a(f"v_mov_b32 v{R('Z0')}, 1.0")
    a(f"v_mov_b32 v{R('Z0')+1}, 0")
    cmul("Z2", "Z1", "Z1"); cmul("Z3", "Z2", "Z1"); cmul("Z12", "Z8", "Z4")
    for aa in range(4):
        put(f"Z{4*aa}", 4*aa)
        for b in range(1, 4):
            j = 4*aa+b
            if aa > 0:
                nm = f"Z{j}" if j % 2 == 0 else f"T{(j//2)%2}"
                cmul(nm, f"Z{4*aa}", f"Z{b}")
            else: nm = f"Z{j}"
            put(nm, j)
    mark = breads()
    if CAF and CFP == 1: afill()
    if NXT and XLP == 1: xload()
    cmul("Z768", "Z512", "Z256")
    vals = [("Z256", 2*j) for j in range(8)] + [("Z512", 4*r) for r in range(4)] + [("Z768", 4*r) for r in range(4)]
    for j, (bs, e) in enumerate(vals):
        if e == 0: nm = bs
        else:
            nm = f"T{j%2}"; cmul(nm, bs, f"Z{e}")
        put(nm, j)
        if j == 3: mfmas(0, mark)
    mark = breads()
    if CAF and CFP == 2: afill()
    if NXT and XLP == 2: xload()
    cmul("Z1280", "Z1024", "Z256"); cmul("Z1536", "Z1024", "Z512"); cmul("Z1792", "Z1024", "Z768"); cmul("Z2048", "Z1024", "Z1024")
    vals = [(f"Z{1024+256*c}", 8*e) for c in range(4) for e in range(2)] + [("Z2048", 0)]
    for j, (bs, e) in enumerate(vals):
        if e == 0: nm = bs
        else:
            nm = f"T{j%2}"; cmul(nm, bs, f"Z{e}")
        put(nm, j)
        if j == 3: mfmas(1, mark)
    mark = breads()
    LR = [dict(U=184, Um=188, D=253 if NXT else 190, Ue=192), dict(U=200, Um=204, D=254 if NXT else 206, Ue=208)]
    if CAF and not NXT: a("s_waitcnt vmcnt(0)")
    a(f"""
    v_lshlrev_b32 v1, 4, v15
    v_add_u32 v4, -8, v1
    s_lshl_b32 s12, s10, 1
    v_mov_b32 v8, s12
    s_mov_b32 s43, 0
    s_mov_b32 s44, 4096
    v_and_b32 v5, 31, v0
    v_lshrrev_b32 v6, 5, v0
    s_lshr_b32 s13, s3, 1
    s_lshl_b32 s13, s13, 11
    s_and_b32 s14, s3, 1
    s_lshl_b32 s14, s14, 5
    s_add_u32 s13, s13, s14
    v_lshlrev_b32 v13, 6, v5
    v_lshl_add_u32 v13, v6, 4, v13
    v_add_u32 v13, s13, v13
    """)
    for c in range(0 if NXT else 2):
        R_ = LR[c]
        a(f"""
        buffer_load_dwordx4 v[{R_['U']}:{R_['U']+3}], v1, s[20:23], s{43+c} offen
        buffer_load_dwordx2 v[{R_['Um']}:{R_['Um']+1}], v4, s[20:23], s{43+c} offen
        """)
    for c in range(0 if NXT else 2):
        R_ = LR[c]
        a(f"""
        buffer_load_ushort v{R_['D']}, v8, s[36:39], 0 offen offset:{2*c}
        buffer_load_dwordx4 v[{R_['Ue']}:{R_['Ue']+3}], v13, s[20:23], s{43+c} offen
        """)
    if CAF and CFP == 3: afill()
    mfmas(2, mark)
    TS(a, 2)
    if os.environ.get("CPRIOI"): a(f"s_setprio {os.environ['CPRIOI']}")
    if NXT:
        a(f"""
        s_waitcnt vmcnt(0)
        v_lshlrev_b32 v239, 1, v15
        v_add_u32 v239, {XT0}, v239
        v_add_u32 v252, {XT0-8}, v1
        v_add_u32 v255, {XT0}, v13
        """)
        for i in range(8):
            a(f"ds_write_b16 v239, v{240+i} offset:{i*512}")
            a(f"ds_write_b16_d16_hi v239, v{240+i} offset:{i*512+4112}")
    a(f"""
    v_mov_b32 v40, 0
    v_mov_b32 v41, 0
    v_mov_b32 v42, 0
    v_mov_b32 v43, 0
    v_cmp_gt_u32 vcc, 160, v15
    s_and_saveexec_b64 s[40:41], vcc
    ds_write_b128 v1, v[40:43] offset:{KH}
    ds_write_b128 v1, v[40:43] offset:{KL}
    ds_write_b128 v1, v[40:43] offset:{CB+KH}
    ds_write_b128 v1, v[40:43] offset:{CB+KL}
    s_mov_b64 exec, s[40:41]
    s_nop 3
    """)
    for tau in range(3):
        for r in range(4):
            c = ACC + tau*8 + r
            a(f"v_add_f32 v{c}, v{c}, v{c+4}")
            a(f"ds_write_b32 v60, v{c} offset:{r*TRS+tau*64}")
    a(f"""
    v_lshrrev_b32 v7, 2, v15
    v_mul_u32_u24 v7, 80, v7
    v_and_b32 v12, 3, v15
    v_lshl_add_u32 v7, v12, 4, v7
    v_lshrrev_b32 v9, 2, v15
    v_mul_u32_u24 v9, 4160, v9
    v_lshl_add_u32 v9, v12, 4, v9
    v_sub_u32 v12, 255, v15
    v_lshlrev_b32 v12, 4, v12
    s_mov_b32 s42, 0xffff
    ; A base
    v_sub_u32 v3, 3, v5
    v_and_b32 v3, 3, v3             ; r
    v_mul_u32_u24 v1, 4160, v3
    v_add_u32 v3, v3, v5            ; b+r
    v_lshlrev_b32 v3, 1, v3
    v_sub_u32 v1, v1, v3
    v_lshl_add_u32 v1, v6, 4, v1
    s_lshl_b32 s14, s3, 6
    s_sub_u32 s15, {UB+4094-3840}, s14
    v_add_u32 v1, s15, v1
    ; B base
    v_mul_u32_u24 v2, 80, v5
    v_lshl_add_u32 v2, v6, 4, v2
    s_sub_u32 s14, 3, s3
    s_mul_i32 s14, s14, 80
    v_add_u32 v2, s14, v2
    s_waitcnt lgkmcnt(0)
    s_barrier
    """)
    if NXT:
        for c in range(2):
            R_ = LR[c]
            a(f"""
            ds_read_b128 v[{R_['U']}:{R_['U']+3}], v252 offset:{8+4112*c}
            ds_read_b64 v[{R_['Um']}:{R_['Um']+1}], v252 offset:{4112*c}
            ds_read_b128 v[{R_['Ue']}:{R_['Ue']+3}], v255 offset:{4112*c}
            """)
    def aflag():
        a("""
        s_cmp_lg_u32 s3, 0
        s_cbranch_scc1 Lc_nf
        """)
        srd(a, 24, 16, 17, FLG, 98304)
        a("""
        s_lshr_b32 s14, s2, 5
        s_lshl_b32 s14, s14, 8
        s_and_b32 s15, s2, 31
        s_lshl_b32 s15, s15, 2
        s_add_u32 s14, s14, s15
        s_add_u32 s14, s14, 65536
        v_mov_b32 v248, 1
        v_mov_b32 v249, 0
        s_mov_b64 exec, 1
        buffer_store_dword v248, v249, s[24:27], s14 offen sc1
        s_mov_b64 exec, -1
        Lc_nf:
        """)
    if CAF and CFP < 3: aflag()
    for c in range(2):
        for e in range(8):
            a(f"ds_read2st64_b32 v[{64+c*16+2*e}:{65+c*16+2*e}], v{52+e} offset0:{128*c+60} offset1:{128*c+93}")
    for c in range(2):
        a(f"s_waitcnt lgkmcnt({8*(1-c)})")
        for e in range(8):
            a(f"v_add_f32 v{64+c*16+2*e}, v{64+c*16+2*e}, v{65+c*16+2*e}")
        if c == 1:
            a("s_barrier")
        for i in range(4):
            k0_, k1_ = 64+c*16+4*i, 66+c*16+4*i
            a(f"""
            v_cvt_pk_bf16_f32 v{32+8*c+i}, v{k0_}, v{k1_}
            v_lshlrev_b32 v20, 16, v{32+8*c+i}
            v_and_b32 v21, 0xffff0000, v{32+8*c+i}
            v_sub_f32 v20, v{k0_}, v20
            v_sub_f32 v21, v{k1_}, v21
            v_cvt_pk_bf16_f32 v{36+8*c+i}, v20, v21
            """)
        a(f"ds_write_b128 v7, v[{32+8*c}:{35+8*c}] offset:{c*CB+KH+32*80}")
        a(f"ds_write_b128 v7, v[{36+8*c}:{39+8*c}] offset:{c*CB+KL+32*80}")
    a(f"""
    v_mov_b32 v16, 0
    v_mov_b32 v17, 0
    v_mov_b32 v18, 0
    v_mov_b32 v19, 0
    v_cmp_gt_u32 vcc, 16, v15
    s_and_saveexec_b64 s[40:41], vcc
    ds_write_b128 v9, v[16:19] offset:{UB+4096}
    ds_write_b128 v9, v[16:19] offset:{CB+UB+4096}
    s_mov_b64 exec, s[40:41]
    v_cmp_eq_u32 vcc, 0, v15
    """)
    for c in range(2):
        R_ = LR[c]
        a(f"s_waitcnt vmcnt({4+2*(1-c)+(2 if CAF and CFP == 3 else 0)})" if not NXT else "s_nop 1")
        if c == 1 or NXT:
            a(f"v_cndmask_b32_e64 v{R_['Um']}, v{R_['Um']}, 0, vcc")
            a(f"v_cndmask_b32_e64 v{R_['Um']+1}, v{R_['Um']+1}, 0, vcc")
        S = {-2: R_['Um'], -1: R_['Um']+1, 0: R_['U'], 1: R_['U']+1, 2: R_['U']+2, 3: R_['U']+3}
        for r in range(4):
            d = 96 + 16*c + 4*r
            for j in range(4):
                if r % 2 == 0:
                    p = 3 - r//2 - j
                    a(f"v_alignbit_b32 v{d+j}, v{S[p]}, v{S[p]}, 16")
                else:
                    p = (7-r)//2 - j
                    a(f"v_bfi_b32 v{d+j}, s42, v{S[p]}, v{S[p-1]}")
            a(f"ds_write_b128 v12, v[{d}:{d+3}] offset:{c*CB+UB+r*4160}")
    a("s_waitcnt lgkmcnt(0)" + (" vmcnt(0)" if CAF and CFP == 3 else ""))
    a("s_barrier")
    if CAF and CFP == 3: aflag()
    TS(a, 3)
    if os.environ.get("CPRIO2"): a(f"s_setprio {os.environ['CPRIO2']}")
    steps = [(c, i, ks) for c in range(2) for i in range(8) for ks in range(2)]
    def loads(n):
        c, i, ks = steps[n]
        af = 16 + (n % 2)*24; bf_ = af + 8
        for z in range(2):
            off = c*CB + 64*(60-4*(i+8*z)) + 32*ks
            a(f"ds_read_b64 v[{af+4*z}:{af+4*z+1}], v1 offset:{off}")
            a(f"ds_read_b64 v[{af+4*z+2}:{af+4*z+3}], v1 offset:{off+8}")
            for blk in ([0] if z == 0 else [1]):
                for hl in range(2):
                    img = KH if hl == 0 else KL
                    o = c*CB + img + (32+32*blk-4*i)*80 + 32*ks - 240
                    r_ = bf_ + (blk*2+hl)*4
                    a(f"ds_read_b128 v[{r_}:{r_+3}], v2 offset:{o}")
        return 8
    loads(0)
    NST = len(steps)
    for n in range(NST):
        c, i, ks = steps[n]
        if n+1 < NST:
            cn = loads(n+1)
            a(f"s_waitcnt lgkmcnt({cn})")
        else:
            a("s_waitcnt lgkmcnt(0)")
        af = 16 + (n % 2)*24; bf_ = af + 8
        first = (i == 0 and ks == 0)
        a0, a1 = 64 + c*32, 80 + c*32
        for j, (ac, z, blk, hl) in enumerate([(a0,0,0,0), (a1,1,0,0), (a0,0,0,1), (a1,0,1,0), (a1,1,0,1), (a1,0,1,1)]):
            r_ = bf_ + (blk*2+hl)*4
            cin = "0" if (first and j < 2) else f"v[{ac}:{ac+15}]"
            a(f"v_mfma_f32_32x32x16_bf16 v[{ac}:{ac+15}], v[{af+4*z}:{af+4*z+3}], v[{r_}:{r_+3}], {cin}")
    TS(a, 4)
    if os.environ.get("CPRIO3"): a(f"s_setprio {os.environ['CPRIO3']}")
    srd(a, 24, 16, 17, FLG, 98304)
    a("""
    s_nop 7
    s_barrier
    s_lshl_b32 s14, s3, 13
    v_lshlrev_b32 v1, 4, v0
    v_add_u32 v2, s14, v1
    """)
    for c in range(2):
        for qq in range(8):
            a(f"ds_write_b128 v2, v[{64+32*c+4*qq}:{67+32*c+4*qq}] offset:{c*CB+qq*1024}")
    a("""
    s_lshl_b32 s14, s3, 11
    v_lshlrev_b32 v1, 4, v5
    v_lshl_add_u32 v1, v6, 10, v1
    v_add_u32 v1, s14, v1
    s_lshr_b32 s45, s2, 5
    s_lshr_b32 s14, s3, 1
    s_lshl_b32 s14, s14, 7
    s_add_u32 s45, s45, s14
    s_add_u32 s45, s45, 128
    s_lshl_b32 s45, s45, 8
    s_and_b32 s14, s2, 31
    s_lshl_b32 s14, s14, 1
    s_and_b32 s15, s3, 1
    s_add_u32 s14, s14, s15
    s_lshl_b32 s14, s14, 2
    s_add_u32 s45, s45, s14
    s_waitcnt lgkmcnt(0)
    s_barrier
    """)
    for c in range(2):
        for ww in range(4):
            for e in range(2):
                r_ = 64 + c*32 + (ww*2+e)*4
                a(f"ds_read_b128 v[{r_}:{r_+3}], v1 offset:{c*CB+ww*8192+e*512}")
    a("s_waitcnt lgkmcnt(0) vmcnt(0)")
    for c in range(2):
        R_ = LR[c]
        a(f"v_lshlrev_b32 v{R_['D']}, 16, v{R_['D']}")
        o = 56 + 4*c
        for e in range(2):
            for j in range(4):
                r_ = 64 + c*32 + e*4 + j
                a(f"v_add_f32 v{r_}, v{r_}, v{r_+8}")
                a(f"v_add_f32 v{r_+16}, v{r_+16}, v{r_+24}")
                a(f"v_add_f32 v{r_}, v{r_}, v{r_+16}")
            y = 64 + c*32 + e*4
            for p in range(2):
                uu = R_['Ue'] + 2*e + p
                a(f"""
                v_cvt_pk_bf16_f32 v48, v{y+2*p}, v{y+2*p+1}
                v_lshlrev_b32 v49, 16, v48
                v_and_b32 v50, 0xffff0000, v48
                v_lshlrev_b32 v51, 16, v{uu}
                v_and_b32 v52, 0xffff0000, v{uu}
                v_mul_f32 v51, v51, v{R_['D']}
                v_mul_f32 v52, v52, v{R_['D']}
                v_cvt_pk_bf16_f32 v48, v51, v52
                v_lshlrev_b32 v51, 16, v48
                v_and_b32 v52, 0xffff0000, v48
                v_add_f32 v49, v49, v51
                v_add_f32 v50, v50, v52
                v_cvt_pk_bf16_f32 v{o+2*e+p}, v49, v50
                """)
        a(f"buffer_store_dwordx4 v[{o}:{o+3}], v13, s[32:35], s{43+c} offen sc1")
    TS(a, 5)
    a(f"""
    {"s_waitcnt vmcnt(0)" if TSON else ""}
    """)
    TS(a, 6)
    TR(a, 9)
    TSDUMP(a, 10, "c")
    a("s_endpgm")

E = os.environ.get
NBR, NBL = 12, 8
XS = 11
def breg(j): return 160 if j == 11 else 168 + ((j + 10) % 11)*8
def kk(j): return (j//2)*4 + (j % 2) if j < 14 else ((j-14)//2)*4 + 2 + (j % 2)
def g2_early(a):
    srd(a, 84, 16, 17, WF, (FLG - WF + 98304) if HSW else WSZ)
    a(f"""
    s_and_b32 s44, s2, 7
    s_lshl_b32 s44, s44, 2
    s_bfe_u32 s45, s2, 0x20003
    s_add_u32 s44, s44, s45         ; tt
    s_lshr_b32 s45, s2, 5           ; dt
    s_mul_i32 s14, s3, {WS_*1024}
    s_mul_i32 s18, s44, {2*RSH}
    s_add_u32 s18, s18, s14
    s_mul_i32 s19, s45, {2*RSH}
    s_add_u32 s19, s19, s14
    s_lshl_b32 s43, s44, 2
    s_add_u32 s43, s43, s3
    s_lshl_b32 s43, s43, 8
    s_lshl_b32 s61, s3, 14
    s_add_u32 s8, s61, 8192
    s_cmp_eq_u32 s3, 0
    s_cselect_b32 s61, 73728, s61
    v_lshlrev_b32 v4, 4, v0         ; lane*16
    v_add_u32 v5, {RSH}, v4
    s_lshr_b32 s4, s2, 3
    s_lshl_b32 s14, s3, 5
    s_add_u32 s4, s4, s14
    s_lshl_b32 s4, s4, 8
    s_add_u32 s4, s4, {FLG - WF + 32768}
    """)
FST = int(E("FST", "1"))
WFCHK = """v_cmp_ne_u32_e64 s[14:15], 0, v{vr}
    s_nop 1
    s_cmp_eq_u32 s14, 0x0fffffff""" if FST else """v_readfirstlane_b32 s14, v{vr}
    s_cmp_ge_u32 s14, 28"""
WFV3 = "v_lshlrev_b32 v3, 2, v0" if FST else "v_mov_b32 v3, 0"
def wfpoll(a, tag, vr, vz):
    a(f"""
    s_mov_b32 s9, 0
    Lp_{tag}:
    buffer_load_dword v{vr}, v{vz}, s[84:87], s4 offen sc1
    s_waitcnt vmcnt(0)
    {WFCHK.format(vr=vr)}
    s_cbranch_scc1 Lpd_{tag}
    s_add_u32 s9, s9, 1
    s_cmp_ge_u32 s9, {POLL_LIMIT}
    s_cbranch_scc1 Lpd_{tag}
    s_sleep 4
    s_branch Lp_{tag}
    Lpd_{tag}:
    """)
def g2_late(a):
    srd(a, 32, 16, 17, FLG, 98304)
    srd(a, 36, 16, 17, AT, SZ2M)
    srd(a, 48, 56, 57, 0, SZ2M)
    srd(a, 52, 58, 59, 0, SZ2M)
def g2_b1(a, st, cb):
    r = breg(st) + cb*4
    if cb == 0: a(f"s_add_u32 s14, s19, {kk(st)*1024}")
    a(f"buffer_load_dwordx4 v[{r}:{r+3}], v{4+cb}, s[84:87], s14 offen")
def g2_bpre_lds(a, q=None):
    for j in range(NBL):
        st = NBR + j
        a(f"s_add_u32 s14, s19, {kk(st)*1024}")
        for cb in range(2):
            c = j*2+cb
            a(f"s_add_u32 m0, s{61 if c < 8 else 8}, {(c%8)*1024}")
            a("s_nop 0")
            a(f"buffer_load_dwordx4 v{4+cb}, s[84:87], s14 offen lds")
            if q is not None: q.append(("bl", st))

def poll(a, tag, soff, target, off=0, slp=2):
    a(f"""
    s_mov_b32 s9, 0
    Lp_{tag}:
    buffer_load_dword v7, v6, s[32:35], s{soff} offen offset:{off} sc1
    s_waitcnt vmcnt(0)
    v_readfirstlane_b32 s14, v7
    s_add_u32 s9, s9, 1
    s_cmp_ge_u32 s14, {target}
    s_cbranch_scc1 Lpd_{tag}
    s_cmp_ge_u32 s9, {POLL_LIMIT}
    s_cbranch_scc1 Lpd_{tag}
    s_sleep {slp}
    s_branch Lp_{tag}
    Lpd_{tag}:
    """)

def gemm2(a):
    a("L1_g2:")
    if E("PRIO2"): a(f"s_setprio {E('PRIO2')}")
    a("v_mov_b32 v6, 0")
    a("s_barrier")
    poll(a, "h", 43, 7)
    TS(a, 9)
    NS = 28
    q = []
    def wait_for(tags):
        idx = max(i for i, t in enumerate(q) if t in tags)
        n = len(q) - 1 - idx
        assert n <= 63
        a(f"s_waitcnt vmcnt({n})")
    free = [96 + 8*i for i in range(8)]
    pend = []
    for st in range(NS):
        pend.append(("A", st))
        if st >= NBR + NBL: pend.append(("B", st))
    loc = {}
    for st in range(NBR): loc[("B", st)] = breg(st)
    fb = [False]
    def issue():
        while pend and free:
            k, st = pend[0]
            if k == "A" and st >= 14 and not fb[0]:
                fb[0] = True
                wait_for([("F", 1)])
                a(f"""
                v_readfirstlane_b32 s14, v7
                s_cmp_ge_u32 s14, 7
                s_cbranch_scc1 Lpd_hb
                """)
                poll(a, "hb", 43, 7, off=128)
            pend.pop(0)
            r = free.pop(0)
            loc[(k, st)] = r
            a(f"s_add_u32 s41, s{18 if k == 'A' else 19}, {kk(st)*1024}")
            for j in range(2):
                a(f"buffer_load_dwordx4 v[{r+4*j}:{r+4*j+3}], v{4+j}, s[{28 if k == 'A' else 84}:{31 if k == 'A' else 87}], s41 offen")
                q.append((k, st))
    issue()
    FBI = int(E("FBI", "-1"))
    def fbload():
        a("buffer_load_dword v7, v6, s[32:35], s43 offen offset:128 sc1")
        q.append(("F", 1))
    if FBI < 0: fbload()
    a(f"""
    v_and_b32 v8, 15, v0
    v_lshrrev_b32 v9, 4, v0         ; dg
    s_lshl_b32 s62, s44, 6
    s_lshl_b32 s63, s45, 6
    s_lshl_b32 s14, s3, 4
    v_add_u32 v10, s14, v8          ; t local
    v_add_u32 v11, s62, v10
    v_lshlrev_b32 v13, 10, v11
    v_lshl_add_u32 v13, v9, 4, v13
    s_lshl_b32 s15, s63, 1
    v_add_u32 v13, s15, v13
    v_lshrrev_b32 v12, 3, v0
    v_add_u32 v12, s14, v12
    v_add_u32 v12, s63, v12
    v_lshlrev_b32 v12, 12, v12
    v_and_b32 v11, 7, v0
    v_lshl_add_u32 v12, v11, 4, v12
    s_lshl_b32 s15, s62, 1
    v_add_u32 v12, s15, v12
    s_lshl_b32 s20, s3, 11
    s_add_u32 s20, s20, 65536
    s_mov_b32 s21, 32768
    s_lshl_b32 s14, s44, 3
    s_add_u32 s45, s45, s14
    s_add_u32 s45, s45, 128
    s_lshl_b32 s45, s45, 8
    v_and_b32 v11, 31, v0
    v_lshrrev_b32 v14, 5, v0
    v_xor_b32 v14, v14, v8
    v_lshlrev_b32 v14, 4, v14
    v_lshl_add_u32 v14, v11, 8, v14
    s_lshl_b32 s14, s3, 14
    v_add_u32 v14, s14, v14
    v_lshlrev_b32 v15, 1, v9
    v_xor_b32 v15, v15, v8
    v_lshlrev_b32 v15, 4, v15
    v_lshl_add_u32 v15, v10, 8, v15
    v_lshrrev_b32 v1, 2, v8
    v_lshl_add_u32 v1, v9, 3, v1
    v_lshlrev_b32 v1, 7, v1
    v_and_b32 v11, 3, v0
    v_lshl_add_u32 v1, v11, 3, v1
    s_lshl_b32 s14, s3, 5
    s_add_u32 s14, s14, 65536
    v_add_u32 v1, s14, v1
    v_add_u32 v2, s61, v4
    v_add_u32 v3, s8, v4
    """)
    if CAF:
        a("""
        s_lshl_b32 s45, s63, 2
        s_add_u32 s45, s45, 65536
        v_lshlrev_b32 v9, 2, v0
        buffer_load_dword v10, v9, s[32:35], s45 offen sc1
        """)
        q.append(("Z", 0))
    ACC = 16
    X_R = 248
    def acc(cb, rb): return ACC + (cb*2+rb)*16
    def ldsb(st):
        j = st - NBR
        r = 80 + 8*(st % 2)
        loc[("B", st)] = r
        vb = 2 if j < 4 else 3
        a(f"ds_read_b128 v[{r}:{r+3}], v{vb} offset:{((2*j)%8)*1024}")
        a(f"ds_read_b128 v[{r+4}:{r+7}], v{vb} offset:{((2*j+1)%8)*1024}")
    def atload(r):
        for j in range(2):
            a(f"buffer_load_dwordx4 v[{r+4*j}:{r+4*j+3}], v12, s[36:39], {'0' if j == 0 else 's21'} offen sc1")
            q.append(("T", 0))
    def atchk(r):
        a(f"""
        v_max3_u32 v11, v{r}, v{r+1}, v{r+2}
        v_max3_u32 v7, v{r+3}, v{r+4}, v{r+5}
        v_max3_u32 v11, v11, v{r+6}, v{r+7}
        v_max_u32 v11, v11, v7
        v_cmp_eq_u32 vcc, {'-1' if not E("NOC") else '0x12345'}, v11
        s_nop 1
        s_cmp_eq_u64 vcc, 0
        """)
    FPOLL, FCHK = int(E("FPOLL", "18")), int(E("FCHK", "25"))
    TR_ = [None]
    for st in range(NS):
        lds_next = NBR <= st+1 < NBR+NBL
        if lds_next: ldsb(st+1)
        tags = [("A", st)] + ([("B", st)] if st >= NBR+NBL else [])
        wait_for(tags)
        if NBR <= st < NBR+NBL: a(f"s_waitcnt lgkmcnt({2 if lds_next else 0})")
        for rb in range(2):
            for cb in range(2):
                c = acc(cb, rb); x = loc[("A", st)] + 4*rb; y = loc[("B", st)] + 4*cb
                cin = "0" if st == 0 else f"v[{c}:{c+15}]"
                a(f"v_mfma_f32_32x32x16_bf16 v[{c}:{c+15}], v[{y}:{y+3}], v[{x}:{x+3}], {cin}")
        free.append(loc[("A", st)])
        if (st < NBR and loc[("B", st)] < X_R) or st >= NBR+NBL: free.append(loc[("B", st)])
        if st == FBI: fbload()
        issue()
        if st == FPOLL:
            assert fb[0] and not pend
            TR_[0] = free.pop(0)
            for j in range(2):
                a(f"buffer_load_dwordx4 v[{X_R+4*j}:{X_R+4*j+3}], v13, s[48:51], 0 offen offset:{64*j}")
                q.append(("X", 0))
            if CAF:
                wait_for([("Z", 0)])
                a(f"""
                s_mov_b32 s9, 0
                Lp_af:
                v_cmp_ne_u32 vcc, 0, v10
                s_nop 1
                s_cmp_eq_u32 vcc_lo, -1
                s_cbranch_scc1 Lpd_af
                s_add_u32 s9, s9, 1
                s_cmp_ge_u32 s9, {POLL_LIMIT}
                s_cbranch_scc1 Lpd_af
                s_sleep 4
                buffer_load_dword v10, v9, s[32:35], s45 offen sc1
                s_waitcnt vmcnt(0)
                s_branch Lp_af
                Lpd_af:
                """)
            atload(TR_[0])
        if st == FCHK:
            wait_for([("T", 0)])
            atchk(TR_[0])
            a("s_cselect_b32 s22, 0, 1")
    assert not pend
    TS(a, 10)
    a("s_nop 15")
    for cb in range(2):
        for rb in range(2):
            for i in range(4):
                c = acc(cb, rb) + 4*i
                dq = cb*8 + 2*i
                if dq == 0: vv = 14
                else:
                    vv = 11
                    a(f"v_xor_b32 v11, {dq*16}, v14")
                a(f"ds_write_b128 v{vv}, v[{c}:{c+3}] offset:{rb*8192}")
    a(f"""
    s_cmp_eq_u32 s22, 0
    s_cbranch_scc1 La_ok
    s_mov_b32 s9, 0
    Lp_a:
    """)
    atload(TR_[0])
    a("s_waitcnt vmcnt(0)")
    atchk(TR_[0])
    a(f"""
    s_cbranch_scc1 La_ok
    s_add_u32 s9, s9, 1
    s_cmp_ge_u32 s9, {POLL_LIMIT}
    s_cbranch_scc1 La_ok
    s_sleep {E("ASLP", "1")}
    s_branch Lp_a
    """)
    a("La_ok:")
    a("v_add_u32 v11, s20, v4")
    for j in range(2):
        a(f"ds_write_b128 v11, v[{TR_[0]+4*j}:{TR_[0]+4*j+3}] offset:{j*1024}")
    a("""
    v_xor_b32 v11, 16, v15
    v_xor_b32 v10, 128, v15
    v_xor_b32 v9, 144, v15
    s_waitcnt vmcnt(0) lgkmcnt(0)
    s_barrier
    """)
    AT_R = 80
    va = [15, 11, 10, 9]
    for j in range(2):
        for ww in range(4):
            for hh in range(2):
                r = 16 + j*32 + ww*8 + hh*4
                a(f"ds_read_b128 v[{r}:{r+3}], v{va[j*2+hh]} offset:{ww*16384}")
        for hh in range(2):
            a(f"ds_read_b64_tr_b16 v[{AT_R+4*j+2*hh}:{AT_R+4*j+2*hh+1}], v1 offset:{(32*j+4*hh)*128}")
    for j in range(2):
        a(f"s_waitcnt lgkmcnt({10*(1-j)})")
        b = 16 + j*32
        for e in range(8):
            a(f"v_add_f32 v{b+e}, v{b+e}, v{b+8+e}")
            a(f"v_add_f32 v{b+16+e}, v{b+16+e}, v{b+24+e}")
        for p in range(4):
            at = AT_R + 4*j + p; x0 = X_R + 4*j + p
            a(f"""
            v_lshlrev_b32 v{b+8+2*p}, 16, v{at}
            v_and_b32 v{b+9+2*p}, 0xffff0000, v{at}
            v_lshlrev_b32 v{b+24+2*p}, 16, v{x0}
            v_and_b32 v{b+25+2*p}, 0xffff0000, v{x0}
            """)
        for e in range(8):
            a(f"v_add_f32 v{b+e}, v{b+e}, v{b+16+e}")
            a(f"v_add_f32 v{b+8+e}, v{b+8+e}, v{b+24+e}")
        for e in range(8):
            a(f"v_cvt_pk_bf16_f32 v{b+e}, 0, v{b+e}")
            a(f"v_cvt_pk_bf16_f32 v{b+8+e}, 0, v{b+8+e}")
        for e in range(8):
            a(f"v_add_f32 v{b+e}, v{b+e}, v{b+8+e}")
        for p in range(4):
            a(f"v_cvt_pk_bf16_f32 v{b+16+p}, v{b+2*p}, v{b+2*p+1}")
        a(f"buffer_store_dwordx4 v[{b+16}:{b+19}], v13, s[52:55], 0 offen offset:{64*j}")
    if TSON: a("s_waitcnt vmcnt(0)")
    TS(a, 11)
    TSDUMP(a, 12, "g")
    a("s_endpgm")

SLOW = []
MAP0 = """
    s_lshr_b32 s12, s2, 3
    s_mul_i32 s13, s12, 37
    s_lshr_b32 s13, s13, 8          ; q/7
    s_mul_i32 s14, s13, 7
    s_sub_u32 s14, s12, s14         ; q%7
    s_and_b32 s15, s2, 3
    s_mov_b32 s97, s15              ; ct/7
    s_mul_i32 s15, s15, 7
    s_add_u32 s10, s15, s14         ; ct
    s_bfe_u32 s15, s2, 0x10002
    s_lshl_b32 s15, s15, 2
    s_add_u32 s11, s15, s13         ; rt
"""
def gemm1(a):
    TS(a, 0)
    if E("PRIO"): a(f"s_setprio {E('PRIO')}")
    srd(a, 20, 16, 17, XN, 64*XRS)
    a(f"""
    s_cmp_ge_u32 s3, 2
    s_cselect_b32 s24, s6, s4
    s_cselect_b32 s25, s7, s5
    s_and_b32 s25, s25, 0xffff
    s_mov_b32 s26, 0x1c0000
    s_mov_b32 s27, 0x20000
    {MAP0}
    s_lshl_b32 s12, s11, 3
    s_lshl_b32 s13, s3, 1
    s_add_u32 s12, s12, s13
    s_mul_i32 s12, s12, {XRS}
    v_lshlrev_b32 v1, 4, v0
    v_add_u32 v1, s12, v1
    v_lshrrev_b32 v5, 3, v0         ; row8
    v_and_b32 v6, 7, v0             ; c'
    v_and_b32 v7, 3, v5
    v_lshlrev_b32 v7, 1, v7
    v_xor_b32 v6, v6, v7
    v_mul_u32_u24 v2, 3584, v5
    s_lshl_b32 s13, s10, 7
    v_add_u32 v2, s13, v2
    v_lshl_add_u32 v2, v6, 4, v2
    s_and_b32 s14, s3, 1
    s_mul_i32 s40, s14, {16*3584}
    s_lshr_b32 s15, s3, 1
    s_lshl_b32 s42, s15, 12
    s_lshl_b32 s14, s14, 11
    s_add_u32 s42, s42, s14
    s_add_u32 s42, s42, 8192
    """)
    sx = [32,33,34,35,36,37,38,39,48,49,50,51,52,53,54,55]
    for rb in range(2):
        for h in range(8):
            a(f"s_mov_b32 s{sx[rb*8+h]}, {rb*XRS+h*4096}")
    ACC = 16
    def acc(mat, cb, rb): return ACC + ((cb*2+rb)*2+mat)*16
    NS, NSL = 16, 7
    KT = int(E("KT", "24"))
    assert KT % 2 == 0 and 22 <= KT <= 30
    FR = []
    for ks in range(KT): FR += [(ks,0,0),(ks,0,1),(ks,1,0),(ks,1,1)]
    for ks in range(KT, 32): FR += [(ks,0,0),(ks,0,1)]
    NB1 = len(FR)
    for ks in range(KT, 32): FR += [(ks,1,0),(ks,1,1)]
    NF = len(FR)
    last_use = {}
    first_use = {}
    for n, (ks, cb, mat) in enumerate(FR):
        last_use[ks] = n
        first_use.setdefault(ks, n)
    q = []
    def wait_for(tag):
        idx = max(i for i, t in enumerate(q) if t == tag)
        n = len(q) - 1 - idx
        assert n <= 63
        a(f"s_waitcnt vmcnt({n})")
    lq = []
    def wait_l(tag):
        idx = max(i for i, t in enumerate(lq) if t == tag)
        n = len(lq) - 1 - idx
        a(f"s_waitcnt lgkmcnt({min(n, 15)})")
    def xr(ks, rb): return 168 + (ks % XS)*8 + rb*4
    WFr, NR = 144, 6
    barr = -1
    def do_barrier(s):
        nonlocal barr
        wait_for(("w", s))
        a("s_barrier")
        barr = s
    def trread(n):
        ks, cb, mat = FR[n]
        if ks//2 > barr: do_barrier(ks//2)
        b = WFr + (n % NR)*4
        base = 8192 + ((ks//2) % NSL)*8192 + mat*4096 + (ks & 1)*2048
        a(f"ds_read_b64_tr_b16 v[{b}:{b+1}], v{8+cb} offset:{base}")
        a(f"ds_read_b64_tr_b16 v[{b+2}:{b+3}], v{8+cb} offset:{base+512}")
        lq.append(("f", n)); lq.append(("f", n))
    pend = []
    for s in range(NS):
        pend += [("w", s, 0), ("w", s, 1)] + [("x", 2*s+j, rb) for j in range(2) for rb in range(2)]
        if s == 3: pend += [("t", s, i) for i in range(4)]
    WFP = int(E("WFP", "11"))
    ZN = int(E("ZN", "104")); BN0 = int(E("BN0", "113"))
    assert ZN >= 92
    if HSW: pend.append(("z", 0, 0))
    for j in range(11): pend += [("b", j, 0), ("b", j, 1)]
    def issue1(t):
        k, s, i = t
        if k == "w":
            a(f"s_add_u32 s41, s40, {(32*s+8*i)*3584}")
            a(f"s_add_u32 m0, s42, {(s%NSL)*8192+i*1024}")
            a("s_nop 0")
            a(f"buffer_load_dwordx4 v2, s[24:27], s41 offen lds")
        elif k == "x":
            r = xr(s, i)
            a(f"buffer_load_dwordx4 v[{r}:{r+3}], v1, s[20:23], s{sx[i*8+(s>>2)]} offen offset:{(s&3)*1024}")
        elif k == "t":
            a(f"s_mov_b32 m0, s63")
            a("s_nop 0")
            a(f"buffer_load_dwordx4 v4, s[80:83], s62 offen offset:{i*1024} lds")
        elif k == "z":
            a(WFV3.replace("v3,", "v249,"))
            a("s_nop 0")
            a("buffer_load_dword v248, v249, s[84:87], s4 offen sc1")
        else:
            if HSW and s == 0 and i == 0:
                wait_for(("z", 0))
                a(WFCHK.format(vr=248))
                a("s_cbranch_scc1 Lpd_wf")
                wfpoll(a, "wf", 248, 249)
            g2_b1(a, s, i)
        q.append((k, s))
    PRO = int(E("PRO", "3"))
    def allowed(t, n):
        k, s, i = t
        ahead = (first_use[2*s if k == "w" else s] - n) if k in "wx" else 0
        if k == "w": return (s < NSL or barr >= s-(NSL-2)) and ahead <= 8*PRO+8
        if k == "x": return (s < XS or last_use[s-XS] <= n) and ahead <= 8*PRO+8
        if k == "t": return True
        if k == "z": return n >= ZN
        return last_use[21+s] <= n and (n >= BN0 or not HSW)
    for _ in range(6*min(PRO, 3)): issue1(pend.pop(0))
    a("""
    v_bfe_u32 v7, v0, 2, 2          ; r
    v_lshrrev_b32 v6, 5, v0
    v_lshl_add_u32 v6, v6, 3, v7    ; row_l
    v_bfe_u32 v10, v0, 4, 1
    v_bfe_u32 v11, v0, 1, 1
    v_lshl_add_u32 v10, v10, 1, v11 ; gc0
    v_lshlrev_b32 v7, 1, v7
    v_xor_b32 v10, v10, v7          ; pc
    v_lshlrev_b32 v8, 7, v6
    v_lshl_add_u32 v8, v10, 4, v8
    v_and_b32 v11, 1, v0
    v_lshl_add_u32 v8, v11, 3, v8
    v_xor_b32 v9, 64, v8
    """)
    g2_early(a)
    srd(a, 80, 16, 17, TB, 16384)
    a(f"""
    s_lshl_b32 s62, s3, 12
    s_and_b32 s63, s3, 1
    s_lshl_b32 s63, s63, 12
    s_lshr_b32 s14, s3, 1
    s_lshl_b32 s14, s14, 16
    s_add_u32 s63, s63, s14
    s_lshl_b32 s12, s11, 3
    s_lshl_b32 s13, s3, 1
    s_add_u32 s12, s12, s13
    s_mul_i32 s12, s12, {RSH}
    s_lshl_b32 s13, s10, 2
    s_mul_i32 s14, s97, {SKEW}
    s_add_u32 s13, s13, s14
    s_lshl_b32 s13, s13, 10
    s_add_u32 s12, s12, s13
    s_add_u32 s13, s12, {RSH}
    s_mov_b32 s46, 0x{TLO*0x10001:x}
    s_mov_b32 s47, {f32(KB)}
    s_mov_b32 s98, 0x8fff8fff
    v_mov_b32 v10, {f32(KA)}
    s_lshl_b32 s60, s11, 2
    s_add_u32 s60, s60, s3
    s_lshl_b32 s60, s60, 2
    s_add_u32 s60, s60, s97
    s_lshl_b32 s60, s60, 8
    """)
    TS(a, 1)
    PD = int(E("PD", "4"))
    assert PD < NR
    PT = [[12, 13, 14, 15], [1, 2, 3, 6]]
    units = [(cb, rb, sp) for cb in range(2) for rb in range(2) for sp in range(2)]
    def EA(k):
        cb, rb, sp = units[k]
        g = acc(0, cb, rb) + 8*sp; P = PT[k % 2]; S = 90 + 2*(k % 2)
        o = []
        for i in range(4): o.append(f"v_cvt_pk_bf16_f32 v{P[i]}, v{g+2*i}, v{g+2*i+1}")
        for i in range(4): o.append(f"v_subrev_u32 v{P[i]}, s46, v{P[i]}")
        o.append(f"v_or3_b32 v11, v{P[0]}, v{P[1]}, v{P[2]}")
        o.append(f"v_or_b32 v11, v11, v{P[3]}")
        o.append(f"v_and_b32 v11, 0x70007000, v11")
        o.append(f"v_cmp_ne_u32_e64 s[{S}:{S+1}], 0, v11")
        for i in range(4):
            o.append(f"v_and_b32 v7, s98, v{P[i]}")
            for h in range(2):
                o.append(f"v_lshlrev_b32_sdwa v{g+2*i+h}, 1, v7 dst_sel:DWORD dst_unused:UNUSED_PAD src0_sel:DWORD src1_sel:WORD_{h}")
        for j in range(8):
            def f(j=j):
                a(f"ds_read_u16_d16_hi v{g+j}, v{g+j}")
                lq.append(("g", k))
            o.append(f)
        SLOW.append((k, g, P))
        return o
    def EB(k):
        cb, rb, sp = units[k]
        g = acc(0, cb, rb) + 8*sp; u = acc(1, cb, rb) + 8*sp; S = 90 + 2*(k % 2)
        o = []
        for j in range(8): o.append(f"v_cvt_pk_bf16_f32 v{u+j}, 0, v{u+j}")
        def f():
            wait_l(("g", k))
            a(f"s_cmp_lg_u64 s[{S}:{S+1}], 0")
            a(f"s_cbranch_scc1 Lslow_{k}")
            a(f"Lback_{k}:")
        o.append(f)
        for j in range(8): o.append(f"v_mul_f32_e32 v{u+j}, v{g+j}, v{u+j}")
        for i in range(4): o.append(f"v_cvt_pk_bf16_f32 v{g+i}, v{u+2*i}, v{u+2*i+1}")
        def s():
            a(f"buffer_store_dwordx4 v[{g}:{g+3}], v4, s[28:31], s{12+rb} offen offset:{(cb*2+sp)*1024} sc1")
            q.append(("h", cb))
        o.append(s)
        return o
    def stream(k0):
        return EA(k0) + EA(k0+1) + EB(k0) + EA(k0+2) + EB(k0+1) + EA(k0+3) + EB(k0+2) + EB(k0+3)
    def emit(o):
        if callable(o): o()
        else: a(o)
    ES = stream(0)
    per = -(-len(ES)//(2*(NF-NB1-int(E("EFL", "2")))))
    for n in range(PD): trread(n)
    for n in range(NF):
        ks, cb, mat = FR[n]
        if n == 0: TS(a, 2)
        if n == 64: TS(a, 3)
        if n == NB1:
            TS(a, 4)
            assert all(t[0] in "bz" for t in pend)
        if n+PD < NF: trread(n+PD)
        if n == first_use[ks]: wait_for(("x", ks))
        wait_l(("f", n))
        b = WFr + (n % NR)*4
        for rb in range(2):
            c = acc(mat, cb, rb)
            cin = "0" if ks == 0 else f"v[{c}:{c+15}]"
            a(f"v_mfma_f32_32x32x16_bf16 v[{c}:{c+15}], v[{b}:{b+3}], v[{xr(ks,rb)}:{xr(ks,rb)+3}], {cin}")
            if n > NB1:
                for _ in range(per):
                    if ES: emit(ES.pop(0))
        for _ in range(2 if n >= 4*KT - 16 else 1):
            if pend and allowed(pend[0], n): issue1(pend.pop(0))
    while ES: emit(ES.pop(0))
    while pend: issue1(pend.pop(0))
    TS(a, 6)
    g2_late(a)
    a("s_barrier")
    BL = []
    def mkb(cb):
        def f():
            a(f"s_add_u32 s14, s19, {kk(11)*1024}")
            r = breg(11) + cb*4
            a(f"buffer_load_dwordx4 v[{r}:{r+3}], v{4+cb}, s[84:87], s14 offen")
            q.append(("b", 11))
        return f
    def mkl(j, cb):
        def f():
            st = NBR + j; c = j*2+cb
            a(f"s_add_u32 s14, s19, {kk(st)*1024}")
            a(f"s_add_u32 m0, s{61 if c < 8 else 8}, {(c%8)*1024}")
            a("s_nop 0")
            a(f"buffer_load_dwordx4 v{4+cb}, s[84:87], s14 offen lds")
            q.append(("bl", st))
        return f
    BL = [mkb(0), mkb(1)] + [mkl(j, cb) for j in range(NBL) for cb in range(2)]
    def flag(cb):
        wait_for(("h", cb))
        a(f"""
        v_mov_b32 v8, 0
        v_mov_b32 v9, 1
        s_mov_b64 exec, 1
        buffer_atomic_add v9, v8, s[32:35], s60 offen offset:{128*cb}
        s_mov_b64 exec, -1
        """)
        q.append(("fl", cb))
    ES = stream(4)
    FAP = int(len(ES)*float(E("FAP", "1.0")))
    BSP = float(E("BSP", "0"))
    nb = len(BL); done = 0
    for i, o in enumerate(ES):
        if i == FAP:
            flag(0); TS(a, 5)
        want = nb if BSP <= 0 else min(nb, int(nb*(i+1)/(BSP*len(ES)))+1)
        if BSP <= 1.0:
            while done < want:
                BL[done](); done += 1
        emit(o)
    TS(a, 7)
    if FAP >= len(ES):
        flag(0); TS(a, 5)
    while done < nb:
        BL[done](); done += 1
    flag(1)
    TS(a, 8)

def slowpaths(a):
    for (k, g, P) in SLOW:
        a(f"Lslow_{k}:")
        a("s_waitcnt lgkmcnt(0)")
        for i in range(4):
            a(f"""
            v_add_u32 v{P[i]}, s46, v{P[i]}
            v_lshlrev_b32 v7, 16, v{P[i]}
            v_and_b32 v{P[i]}, 0xffff0000, v{P[i]}
            """)
            for (G, S) in ((7, g+2*i), (P[i], g+2*i+1)):
                a(f"""
                v_mul_f32_e32 v{S}, v{G}, v{G}
                v_fma_f32 v{S}, v{S}, s47, v10
                v_mul_f32_e32 v{S}, v{S}, v{G}
                v_exp_f32_e32 v{S}, v{S}
                s_nop 0
                v_add_f32_e32 v{S}, 1.0, v{S}
                v_rcp_f32_e32 v{S}, v{S}
                s_nop 0
                v_mul_f32_e32 v{S}, v{S}, v{G}
                v_cvt_pk_bf16_f32 v{S}, 0, v{S}
                """)
        a(f"s_branch Lback_{k}")

def k1(a):
    header(a, "main_kernel")
    a(f"""
    s_cmp_ge_u32 s2, 512
    s_cbranch_scc1 L1_exit
    s_load_dwordx4 s[4:7], s[0:1], 64
    s_load_dwordx2 s[8:9], s[0:1], 48
    s_load_dwordx2 s[16:17], s[0:1], 104
    s_load_dwordx2 s[56:57], s[0:1], 0
    s_load_dwordx2 s[58:59], s[0:1], 88
    v_lshrrev_b32 v5, 6, v0
    v_mov_b32 v15, v0
    v_readfirstlane_b32 s3, v5      ; wave
    v_and_b32 v0, 63, v0
    s_mov_b32 s96, s2
    {"s_memrealtime s[98:99]" if TSALL else ""}
    s_waitcnt lgkmcnt(0)
    {"s_mov_b32 s99, s98" if TSALL else ""}
    s_cmp_lt_u32 s2, 256
    s_cbranch_scc1 {"L1_exit" if E("NOC") else "L1_conv"}
    {"s_endpgm" if E("NOG") else ""}
    s_sub_u32 s2, s2, 256
    """)
    srd(a, 28, 16, 17, HB, HSZ)
    a("""
    s_cmp_ge_u32 s2, 224
    s_cbranch_scc1 L1_h
    """)
    gemm1(a)
    gemm2(a)
    slowpaths(a)
    a("L1_h:")
    TS(a, 0)
    g2_early(a)
    g2_late(a)
    if HSW:
        if E("HPRIO"): a(f"s_setprio {E('HPRIO')}")
        a(f"""
        s_sub_u32 s20, s2, 224
        s_cmp_ge_u32 s20, 28
        s_cbranch_scc1 Lh_nosw
        s_load_dwordx2 s[22:23], s[0:1], 80
        s_lshl_b32 s21, s20, 16
        s_lshl_b32 s14, s3, 12
        s_add_u32 s21, s21, s14
        s_mul_i32 s40, s20, 37
        s_lshr_b32 s40, s40, 8
        s_lshl_b32 s41, s20, 2
        s_mul_i32 s42, s40, {SKEW}
        s_add_u32 s41, s41, s42
        s_lshl_b32 s41, s41, 10
        s_mul_i32 s42, s3, {4*RSH}
        s_add_u32 s41, s41, s42         ; + 4w blocks
        v_lshrrev_b32 v1, 5, v0
        v_bfe_u32 v2, v0, 2, 2
        v_lshl_add_u32 v1, v1, 2, v2
        v_lshlrev_b32 v1, 10, v1
        v_bfe_u32 v2, v0, 4, 1
        v_lshl_add_u32 v1, v2, 5, v1
        v_and_b32 v2, 3, v0
        v_lshl_add_u32 v1, v2, 3, v1
        s_lshl_b32 s42, s3, 8
        v_add_u32 v1, s42, v1           ; + 4w blocks*64B
        s_waitcnt lgkmcnt(0)
        """)
        srd(a, 24, 22, 23, 0, 1792*1024)
        for u in range(4):
            a(f"s_add_u32 s15, s21, {u*16384}")
            a(f"s_add_u32 m0, s14, {u*16384}")
            a("s_nop 0")
            for e in range(4):
                a(f"buffer_load_dwordx4 v4, s[24:27], s15 offen offset:{e*1024} lds")
        for u in range(4):
            a(f"s_waitcnt vmcnt({12 - 4*u}) lgkmcnt(0)")
            a("s_barrier")
            for b in range(4):
                r = 16 + 16*u + 4*b
                a(f"ds_read_b64_tr_b16 v[{r}:{r+1}], v1 offset:{u*16384 + b*64}")
                a(f"ds_read_b64_tr_b16 v[{r+2}:{r+3}], v1 offset:{u*16384 + b*64 + 8192}")
        for u in range(4):
            for b in range(4):
                r = 16 + 16*u + 4*b
                if u == 3: a(f"s_waitcnt lgkmcnt({6 - 2*b})")
                a(f"s_add_u32 s15, s41, {b*RSH + u*1024}")
                a(f"buffer_store_dwordx4 v[{r}:{r+3}], v4, s[84:87], s15 offen sc1")
        TS(a, 1)
        a(f"""
        s_mul_i32 s42, s40, 7
        s_sub_u32 s42, s20, s42
        s_lshl_b32 s42, s42, 2
        s_add_u32 s42, s42, s3
        s_lshl_b32 s42, s42, 2
        s_lshl_b32 s40, s40, 13
        s_add_u32 s40, s40, {FLG - WF + 32768}
        {"s_add_u32 s40, s40, s42" if FST else ""}
        v_lshlrev_b32 v8, 8, v0
        v_mov_b32 v9, 1
        s_waitcnt vmcnt(0)
        s_mov_b32 exec_hi, 0
        {"buffer_store_dword v9, v8, s[84:87], s40 offen sc1" if FST else "buffer_atomic_add v9, v8, s[84:87], s40 offen"}
        s_mov_b64 exec, -1
        s_barrier
        """)
        TS(a, 2)
        a("Lh_nosw:")
        if E("HPRIO"): a(f"s_setprio 0")
    for _ in range(int(E("HSLP", "12" if not HSW else "6"))): a("s_sleep 10")
    if HSW:
        a(WFV3)
        wfpoll(a, "wfh", 7, 3)
        TS(a, 3)
    for st in range(NBR):
        g2_b1(a, st, 0); g2_b1(a, st, 1)
    g2_bpre_lds(a)
    a("s_branch L1_g2")
    a("L1_conv:")
    cpath(a)
    a("""
    L1_exit:
    s_endpgm
    """)

def build():
    launches = [f"; @launch kernel=prep_kernel grid=({NK0},1,1) block=(256,1,1) lds=16384",
                "; @launch kernel=main_kernel grid=(512,1,1) block=(256,1,1) lds=81920"]
    descs = [desc("prep_kernel", 72), desc("main_kernel", 256, acc=256)]
    body = A()
    k0(body)
    k1(body)
    txt = "\n".join(launches) + "\n"
    txt += '.amdgcn_target "amdgcn-amd-amdhsa--gfx950"\n.text\n'
    txt += body.text()
    txt += '.section .rodata,"a"\n' + "".join(descs)
    return txt

if __name__ == "__main__":
    out = sys.argv[1]
    open(out, "w").write(build())
    print("wrote", out)
```
